```python
import torch

def _softmax(x, axis=-1):
    return torch.softmax(x, dim=axis)
def _gelu(x):
    return torch.nn.functional.gelu(x, approximate="tanh")
def _silu(x):
    return torch.nn.functional.silu(x)
def _sigmoid(x):
    return torch.sigmoid(x)
def _layernorm(x, axis=-1, eps=1e-5):
    m = x.mean(dim=axis, keepdim=True)
    v = x.var(dim=axis, keepdim=True, unbiased=False)
    return (x - m) / torch.sqrt(v + eps)
def _scatter_add(tgt, idx, src, axis=0):
    return tgt.clone().index_add_(axis, idx, src)
def _segment_sum(src, seg, n):
    out = torch.zeros((n,) + src.shape[1:], dtype=src.dtype)
    return out.index_add_(0, seg, src)
def _pad(x, pw):
    flat = tuple(v for pair in reversed(pw) for v in pair)
    return torch.nn.functional.pad(x, flat)

kernel_name = 'recurrent_scan__ssm_conv_s4d__dense_activation_relu__prompt'

def setup_inputs():

    _w = (lambda a: (lambda t: t.to(torch.bfloat16) if t.is_floating_point() else t)(torch.as_tensor(a)))
    def _A_setup():
        Bsz, L, D, N = 1, 2048, 448, 256
        return {
            "u": _w((lambda *s: torch.randn(*s, dtype=torch.bfloat16) * 0.05)(Bsz, L, D)),
            "log_A_real": _w((lambda *s: torch.randn(*s, dtype=torch.bfloat16) * 6.4)(D, N) * 0.5),
            "A_imag": _w((lambda *s: torch.randn(*s, dtype=torch.bfloat16) * 0.05)(D, N) * 3.14),
            "C_real": _w((lambda *s: torch.randn(*s, dtype=torch.bfloat16) * 0.05)(D, N) / N ** 0.5),
            "C_imag": _w((lambda *s: torch.randn(*s, dtype=torch.bfloat16) * 0.05)(D, N) / N ** 0.5),
            "log_dt": _w((lambda *s: torch.randn(*s, dtype=torch.bfloat16) * 0.05)(D) * 0.5 - 4.0),
            "D_skip": _w((lambda *s: torch.randn(*s, dtype=torch.bfloat16) * 0.05)(D)),
        }
    _A_in = _A_setup()

    def _B_setup():
        B, S, D, Dff = 1, 2048, 448, 1792
        return {
            "x": _w((lambda *s: torch.randn(*s, dtype=torch.bfloat16) * 0.05)(B, S, D)),
            "w1": _w((lambda *s: torch.randn(*s, dtype=torch.bfloat16) * 0.05)(D, Dff)),
            "w2": _w((lambda *s: torch.randn(*s, dtype=torch.bfloat16) * 0.05)(Dff, D)),
        }
    _B_in = _B_setup()

    return {
        "A_u": _A_in["u"],
        "A_log_A_real": _A_in["log_A_real"],
        "A_A_imag": _A_in["A_imag"],
        "A_C_real": _A_in["C_real"],
        "A_C_imag": _A_in["C_imag"],
        "A_log_dt": _A_in["log_dt"],
        "A_D_skip": _A_in["D_skip"],
        "B_x": _B_in["x"],
        "B_w1": _B_in["w1"],
        "B_w2": _B_in["w2"],
    }

def reference(A_u, A_log_A_real, A_A_imag, A_C_real, A_C_imag, A_log_dt, A_D_skip, B_x, B_w1, B_w2):
    def _A_ref(u, log_A_real, A_imag, C_real, C_imag, log_dt, D_skip):
        L = u.shape[1]
        dt = torch.exp(log_dt)
        A = -torch.exp(log_A_real) + 1j * A_imag
        C = (C_real + 1j * C_imag) * dt[:, None]
        pos = (lambda x, dt: x.to(dt))(torch.arange(L), log_dt.dtype)
        P = torch.exp((A * dt[:, None])[:, :, None] * pos[None, None, :])
        K = 2.0 * torch.einsum("dn,dnl->dl", C, P).real
        L2 = 2 * L
        u_t = (lambda x, *d: x.permute(*d))(u, 0, 2, 1)
        Kf = (lambda x, *a, **k: torch.fft.rfft(x.float(), *a, **k))(K, L2)
        Uf = (lambda x, *a, **k: torch.fft.rfft(x.float(), *a, **k))(u_t, L2)
        y = (lambda x, *a, **k: torch.fft.irfft(x, *a, **k).to(torch.bfloat16))(Uf * Kf[None, :, :], L2)[:, :, :L]
        y = (lambda x, *d: x.permute(*d))(y, 0, 2, 1)
        return y + u * D_skip[None, None, :]

    def _B_ref(x, w1, w2):
        h = torch.einsum("bsd,df->bsf", x, w1)
        zero = torch.zeros_like(h)
        h = torch.maximum(h, zero)
        return torch.einsum("bsf,fd->bsd", h, w2)

    x = A_u
    xn = _layernorm(x, axis=-1)
    s = _A_ref(xn, A_log_A_real, A_A_imag, A_C_real, A_C_imag, A_log_dt, A_D_skip)
    g = _silu(_B_ref(xn, B_w1, B_w2))
    return x + s * g
```

```python
class Asm:
    def __init__(self):
        self.lines = []
        self.vm = []
        self.uid = 0
    def __call__(self, s):
        for l in s.strip('\n').split('\n'):
            self.lines.append('    ' + l.strip())
    def label(self, name):
        self.lines.append(name + ':')
    def comment(self, s):
        self.lines.append('    ; ' + s)
    def newlabel(self, base):
        self.uid += 1
        return f"L_{base}_{self.uid}"
    def vm_issue(self, tag):
        self.vm.append(tag)
    def vm_wait(self, tag):
        idx = max(i for i, t in enumerate(self.vm) if t == tag)
        n = len(self.vm) - 1 - idx
        self.vm = self.vm[idx + 1:]
        assert n <= 63
        self(f"s_waitcnt vmcnt({n})")
    def vm_has(self, tag):
        return tag in self.vm
    def vm_clear(self):
        self.vm = []
    def text(self):
        return '\n'.join(self.lines) + '\n'

def srd(a, d, lo, hi, nbytes):
    a(f"s_mov_b32 s{d}, s{lo}")
    a(f"s_mov_b32 s{d+1}, s{hi}")
    a(f"s_mov_b32 s{d+2}, {nbytes}")
    a(f"s_mov_b32 s{d+3}, 0x00020000")

def kdesc(name, vgpr, sgpr=102, accum=None):
    if accum is None:
        accum = (vgpr + 3) // 4 * 4
    return f""".amdhsa_kernel {name}
  .amdhsa_next_free_vgpr {vgpr}
  .amdhsa_next_free_sgpr {sgpr}
  .amdhsa_accum_offset {accum}
  .amdhsa_group_segment_fixed_size 0
  .amdhsa_kernarg_size 104
  .amdhsa_user_sgpr_count 2
  .amdhsa_user_sgpr_kernarg_segment_ptr 1
  .amdhsa_system_sgpr_workgroup_id_x 1
  .amdhsa_float_denorm_mode_32 3
  .amdhsa_float_denorm_mode_16_64 3
.end_amdhsa_kernel
"""
```

```python
from asm import *
XN_OFF=0; XNT_OFF=0x200000; KR_OFF=0x400000; H_OFF=0x600000; ST_OFF=0xE00000
XN_SZ=2048*448*2; KRP=4224; KR_SZ=448*KRP; H_SZ=2048*1792*2
import struct
def f2u(f): return struct.unpack('<I', struct.pack('<f', f))[0]

LN_WGS=64
K0_LDS=44032

def ws_srd(a, d, off, nbytes, wlo=6, whi=7):
    a(f"s_add_u32 s{d}, s{wlo}, {off}")
    a(f"s_addc_u32 s{d+1}, s{whi}, 0")
    a(f"s_mov_b32 s{d+2}, {nbytes}")
    a(f"s_mov_b32 s{d+3}, 0x00020000")

def bf16r(a, dst, src, tmp=None):
    a(f"v_cvt_pk_bf16_f32 v{dst}, v{src}, v{src}")
    a(f"v_lshlrev_b32 v{dst}, 16, v{dst}")

def dpp_reduce8(a, v):
    a("s_nop 1")
    a(f"v_add_f32_dpp v{v}, v{v}, v{v} quad_perm:[1,0,3,2] row_mask:0xf bank_mask:0xf")
    a("s_nop 1")
    a(f"v_add_f32_dpp v{v}, v{v}, v{v} quad_perm:[2,3,0,1] row_mask:0xf bank_mask:0xf")
    a("s_nop 1")
    a(f"v_add_f32_dpp v{v}, v{v}, v{v} row_half_mirror row_mask:0xf bank_mask:0xf")

def ln_role(a):
    PITCH=928
    srd(a, 8, 4, 5, XN_SZ)
    ws_srd(a, 12, XN_OFF, XN_SZ)
    ws_srd(a, 16, XNT_OFF, XN_SZ)
    a("""
    v_lshrrev_b32 v2, 3, v0
    v_and_b32 v3, 7, v0
    s_lshl_b32 s20, s2, 5
    v_add_u32 v4, s20, v2
    v_mul_u32_u24 v1, 896, v4
    v_lshl_add_u32 v1, v3, 4, v1
    """)
    for i in range(7):
        a(f"buffer_load_dwordx4 v[{16+4*i}:{19+4*i}], v1, s[8:11], 0 offen offset:{i*128}")
    a("v_mov_b32 v5, 0x3f803f80")
    a("v_mov_b32 v6, 0")
    a("v_mov_b32 v7, 0")
    a("s_waitcnt vmcnt(0)")
    for i in range(28):
        a(f"v_dot2_f32_bf16 v{6+(i&1)}, v{16+i}, v5, v{6+(i&1)}")
    a("s_nop 3")
    a("v_add_f32 v6, v6, v7")
    dpp_reduce8(a, 6)
    a(f"v_mul_f32 v6, {hex(f2u(1.0/448))}, v6")
    for i in range(28):
        a(f"v_lshlrev_b32 v{44+2*i}, 16, v{16+i}")
        a(f"v_and_b32 v{45+2*i}, 0xffff0000, v{16+i}")
    a("v_mov_b32 v7, 0")
    a("v_mov_b32 v8, 0")
    for i in range(28):
        a(f"v_sub_f32 v9, v{44+2*i}, v6")
        a(f"v_sub_f32 v10, v{45+2*i}, v6")
        a("v_fma_f32 v7, v9, v9, v7")
        a("v_fma_f32 v8, v10, v10, v8")
    a("v_add_f32 v7, v7, v8")
    dpp_reduce8(a, 7)
    a(f"v_mul_f32 v7, {hex(f2u(1.0/448))}, v7")
    bf16r(a, 7, 7)
    a(f"v_add_f32 v7, {hex(f2u(1e-5))}, v7")
    bf16r(a, 7, 7)
    a("v_sqrt_f32 v7, v7")
    a("s_nop 0")
    bf16r(a, 7, 7)
    a("v_rcp_f32 v8, v7")
    bf16r(a, 6, 6)
    for i in range(28):
        lo, hi = 44+2*i, 45+2*i
        a(f"v_sub_f32 v{lo}, v{lo}, v6")
        a(f"v_sub_f32 v{hi}, v{hi}, v6")
        a(f"v_cvt_pk_bf16_f32 v9, v{lo}, v{hi}")
        a(f"v_lshlrev_b32 v{lo}, 16, v9")
        a(f"v_and_b32 v{hi}, 0xffff0000, v9")
        a(f"v_mul_f32 v9, v{lo}, v8")
        a(f"v_mul_f32 v10, v{hi}, v8")
        a(f"v_fma_f32 v11, -v9, v7, v{lo}")
        a(f"v_fma_f32 v12, -v10, v7, v{hi}")
        a(f"v_fma_f32 v9, v11, v8, v9")
        a(f"v_fma_f32 v10, v12, v8, v10")
        a(f"v_cvt_pk_bf16_f32 v{16+i}, v9, v10")
    a(f"v_mul_u32_u24 v9, {PITCH}, v2")
    a("v_lshl_add_u32 v9, v3, 4, v9")
    for i in range(7):
        a(f"buffer_store_dwordx4 v[{16+4*i}:{19+4*i}], v1, s[12:15], 0 offen offset:{i*128}")
        a(f"ds_write_b128 v9, v[{16+4*i}:{19+4*i}] offset:{i*128}")
    a("s_waitcnt lgkmcnt(0)")
    a("s_barrier")
    a("""
    v_and_b32 v10, 63, v0
    v_lshrrev_b32 v11, 6, v0          ; wave
    v_lshrrev_b32 v12, 4, v10         ; gam
    v_bfe_u32 v13, v10, 2, 2          ; r
    v_and_b32 v14, 3, v10             ; c
    v_lshl_add_u32 v13, v12, 3, v13
    """)
    a(f"v_mul_u32_u24 v13, {PITCH}, v13")
    a("v_lshl_add_u32 v13, v14, 3, v13")
    a("v_lshl_add_u32 v13, v11, 5, v13")
    a("""
    v_and_b32 v14, 15, v10
    v_lshl_add_u32 v14, v11, 4, v14   ; d = wave*16 + i
    v_lshlrev_b32 v14, 12, v14
    v_lshl_add_u32 v14, v12, 4, v14
    s_lshl_b32 s21, s2, 6             ; t0*2 = wg*32*2
    v_add_u32 v14, s21, v14
    """)
    for it in range(7):
        a(f"ds_read_b64_tr_b16 v[{16+4*it}:{17+4*it}], v13 offset:{it*128}")
        a(f"ds_read_b64_tr_b16 v[{18+4*it}:{19+4*it}], v13 offset:{it*128+4*PITCH}")
    a("s_waitcnt lgkmcnt(0)")
    for it in range(7):
        a(f"s_mov_b32 s22, {it*64*4096}")
        a(f"buffer_store_dwordx4 v[{16+4*it}:{19+4*it}], v14, s[16:19], s22 offen")
    a("s_endpgm")

class RA:
    def __init__(self, start): self.n=start
    def c(self):
        r=self.n; self.n+=2; return r
    def r(self):
        r=self.n; self.n+=1; return r

def cmul(a, d, x, y, t, negim=False):
    a(f"v_mul_f32 v{t}, v{x+1}, v{y+1}")
    a(f"v_mul_f32 v{t+1}, v{x+1}, v{y}")
    a(f"v_fma_f32 v{d}, v{x}, v{y}, -v{t}")
    if negim:
        a(f"v_fma_f32 v{d+1}, -v{x}, v{y+1}, -v{t+1}")
    else:
        a(f"v_fma_f32 v{d+1}, v{x}, v{y+1}, v{t+1}")

def acc_exp(a, dst, x, t0, t1):
    L2E=1.4426950408889634
    import numpy as np
    hi=np.float32(L2E); lo=np.float32(L2E-float(hi))
    a(f"s_mov_b32 s30, {hex(f2u(float(hi)))}")
    a(f"s_mov_b32 s31, {hex(f2u(float(lo)))}")
    a(f"v_mul_f32 v{t0}, s30, v{x}")
    a(f"v_fma_f32 v{t1}, v{x}, s30, -v{t0}")
    a(f"v_fma_f32 v{t1}, v{x}, s31, v{t1}")
    a(f"v_exp_f32 v{dst}, v{t0}")
    a(f"v_mul_f32 v{t1}, {hex(f2u(0.6931471805599453))}, v{t1}")
    a(f"v_fma_f32 v{dst}, v{dst}, v{t1}, v{dst}")

def kgen_role(a):
    UP=528
    WREG=16*UP
    RED_OFF=0
    KD_OFF=4*WREG
    a(f"s_sub_u32 s3, s2, {LN_WGS}")
    a("""
    s_load_dwordx2 s[32:33], s[0:1], 8
    s_load_dwordx2 s[34:35], s[0:1], 16
    s_load_dwordx2 s[36:37], s[0:1], 24
    s_load_dwordx2 s[38:39], s[0:1], 32
    s_load_dwordx2 s[40:41], s[0:1], 40
    s_waitcnt lgkmcnt(0)
    """)
    srd(a, 8, 32, 33, 448*512)
    srd(a, 12, 34, 35, 448*512)
    srd(a, 16, 36, 37, 448*512)
    srd(a, 20, 38, 39, 448*512)
    srd(a, 24, 40, 41, 448*2)
    ws_srd(a, 44, KR_OFF, KR_SZ)
    a("""
    s_lshl_b32 s28, s3, 9
    v_lshlrev_b32 v1, 1, v0
    v_add_u32 v1, s28, v1
    s_lshl_b32 s29, s3, 1
    v_mov_b32 v2, s29
    buffer_load_ushort v4, v1, s[8:11], 0 offen
    buffer_load_ushort v5, v1, s[12:15], 0 offen
    buffer_load_ushort v6, v1, s[16:19], 0 offen
    buffer_load_ushort v7, v1, s[20:23], 0 offen
    buffer_load_ushort v8, v2, s[24:27], 0 offen
    s_waitcnt vmcnt(0)
    v_lshlrev_b32 v4, 16, v4
    v_lshlrev_b32 v5, 16, v5
    v_lshlrev_b32 v6, 16, v6
    v_lshlrev_b32 v7, 16, v7
    v_lshlrev_b32 v8, 16, v8
    """)
    acc_exp(a, 9, 8, 10, 11)
    bf16r(a, 9, 9)
    acc_exp(a, 12, 4, 10, 11)
    bf16r(a, 12, 12)
    a("v_mul_f32 v12, v12, v9")
    a("v_mul_f32 v13, v5, v9")
    a("v_mul_f32 v6, v6, v9")
    a("v_mul_f32 v7, v7, v9")
    a("v_add_f32 v6, v6, v6")
    a("v_add_f32 v7, v7, v7")
    a(f"v_mul_f32 v12, {hex(f2u(-1.4426950408889634))}, v12")
    a(f"v_mul_f32 v13, {hex(f2u(0.15915494309189535))}, v13")
    ra=RA(20)
    T=16
    def direct(p):
        d=ra.c()
        a(f"v_mul_f32 v{T}, {hex(f2u(float(p)))}, v12")
        a(f"v_mul_f32 v{T+1}, {hex(f2u(float(p)))}, v13")
        a(f"v_exp_f32 v{T}, v{T}")
        a(f"v_fract_f32 v{T+1}, v{T+1}")
        a(f"v_cos_f32 v{d}, v{T+1}")
        a(f"v_sin_f32 v{d+1}, v{T+1}")
        a("s_nop 0")
        a(f"v_mul_f32 v{d}, v{d}, v{T}")
        a(f"v_mul_f32 v{d+1}, v{d+1}, v{T}")
        return d
    def prod(x,y,negim=False):
        d=ra.c(); cmul(a,d,x,y,T,negim); return d
    a("v_and_b32 v2, 63, v0")
    a("v_lshrrev_b32 v3, 6, v0")
    a(f"v_mul_u32_u24 v14, {WREG}, v3")
    a("v_lshl_add_u32 v14, v2, 3, v14")
    a("v_and_b32 v15, 15, v2")
    a(f"v_mul_u32_u24 v15, {UP}, v15")
    a("v_lshrrev_b32 v1, 4, v2")
    a("v_lshl_add_u32 v15, v1, 7, v15")
    a(f"v_mul_u32_u24 v1, {WREG}, v3")
    a("v_add_u32 v15, v15, v1")
    V={}
    V[1]=direct(8); V[2]=direct(16); V[4]=direct(32); V[8]=direct(64)
    V[3]=prod(V[1],V[2]); V[5]=prod(V[4],V[1]); V[6]=prod(V[4],V[2]); V[7]=prod(V[4],V[3])
    for j in range(9,16): V[j]=prod(V[8],V[j-8])
    one=ra.c()
    a(f"v_mov_b32 v{one}, 1.0"); a(f"v_mov_b32 v{one+1}, 0")
    V[0]=one
    for j in range(16):
        a(f"ds_write_b64 v14, v[{V[j]}:{V[j]+1}] offset:{j*UP}")
    BR=160; AR=192
    a("s_waitcnt lgkmcnt(0)")
    for i in range(8):
        a(f"ds_read_b128 v[{BR+4*i}:{BR+4*i+3}], v15 offset:{i*16}")
    ra=RA(20)
    S={}
    S[1]=direct(1); S[2]=direct(2); S[4]=direct(4)
    S[3]=prod(S[1],S[2]); S[5]=prod(S[1],S[4]); S[6]=prod(S[2],S[4]); S[7]=prod(S[3],S[4])
    G={}
    for m in (1,2,4,8,16): G[m]=direct(128*m)
    W={0:6}
    W[1]=prod(6,G[1]); W[2]=prod(6,G[2]); W[3]=prod(W[1],G[2]); W[4]=prod(6,G[4])
    W[5]=prod(W[1],G[4]); W[6]=prod(W[2],G[4]); W[7]=prod(W[3],G[4]); W[8]=prod(6,G[8])
    for m in range(9,16): W[m]=prod(W[m-8],G[8])
    W[16]=prod(6,G[16])
    assert ra.n<=120, ra.n
    for i in range(24): a(f"v_mov_b32 v{224+i}, 0")
    UT=120
    rows=[]
    rows.append([(i//8, i%8) for i in range(16)])
    rows.append([(2+i//4, 2*(i%4)) for i in range(8)]+[(4+i//2, 4*(i%2)) for i in range(8)])
    rows.append([(8+i,0) for i in range(8)]+[(16,0)]+[None]*7)
    for t in range(3):
        a("s_waitcnt lgkmcnt(0)")
        for i,rw in enumerate(rows[t]):
            d=UT+2*i
            if rw is None:
                a(f"v_mov_b32 v{d}, 0"); a(f"v_mov_b32 v{d+1}, 0")
            elif rw[1]==0:
                a(f"v_mov_b32 v{d}, v{W[rw[0]]}")
                a(f"v_sub_f32 v{d+1}, 0, v{W[rw[0]]+1}")
            else:
                cmul(a,d,W[rw[0]],S[rw[1]],T,negim=True)
            a(f"ds_write_b64 v14, v[{d}:{d+1}] offset:{i*UP}")
        a("s_waitcnt lgkmcnt(0)")
        for i in range(8):
            a(f"ds_read_b128 v[{AR+4*i}:{AR+4*i+3}], v15 offset:{i*16}")
        for i in range(8):
            a(f"s_waitcnt lgkmcnt({7-i})")
            for e in range(4):
                s=4*i+e
                acc=224+8*t+4*(s&1)
                a(f"v_mfma_f32_16x16x4_f32 v[{acc}:{acc+3}], v{AR+s}, v{BR+s}, v[{acc}:{acc+3}]")
    a("s_nop 15")
    for t in range(3):
        for r in range(4):
            a(f"v_add_f32 v{224+8*t+r}, v{224+8*t+r}, v{224+8*t+4+r}")
    a("s_barrier")
    a("v_mul_u32_u24 v1, 3072, v3")
    a("v_lshl_add_u32 v1, v2, 4, v1")
    for t in range(3):
        a(f"ds_write_b128 v1, v[{224+8*t}:{224+8*t+3}] offset:{t*1024}")
    a("s_waitcnt lgkmcnt(0)")
    a("s_barrier")
    skip=a.newlabel("kg_skip")
    a("v_readfirstlane_b32 s28, v3")
    a("s_nop 3")
    a("s_cmp_ge_u32 s28, 3")
    a(f"s_cbranch_scc1 {skip}")
    a("v_lshlrev_b32 v1, 10, v3")
    a("v_lshl_add_u32 v1, v2, 4, v1")
    for w in range(4):
        a(f"ds_read_b128 v[{20+4*w}:{23+4*w}], v1 offset:{w*3072}")
    a("s_waitcnt lgkmcnt(0)")
    for r in range(4):
        a(f"v_add_f32 v{20+r}, v{20+r}, v{24+r}")
        a(f"v_add_f32 v{28+r}, v{28+r}, v{32+r}")
        a(f"v_add_f32 v{20+r}, v{20+r}, v{28+r}")
    a("v_lshrrev_b32 v4, 4, v2")
    a("v_and_b32 v5, 15, v2")
    a("v_lshlrev_b32 v5, 5, v5")
    t1=a.newlabel("kg_t1"); t2=a.newlabel("kg_t2"); done=a.newlabel("kg_td")
    a("s_cmp_eq_u32 s28, 1"); a(f"s_cbranch_scc1 {t1}")
    a("s_cmp_eq_u32 s28, 2"); a(f"s_cbranch_scc1 {t2}")
    a("v_lshrrev_b32 v6, 1, v4"); a("v_lshlrev_b32 v6, 7, v6"); a("v_and_b32 v7, 1, v4"); a("v_lshl_add_u32 v6, v7, 2, v6")
    a("v_lshl_add_u32 v6, v6, 2, v5")
    for r in range(4): a(f"ds_write_b32 v6, v{20+r} offset:{KD_OFF+4*r}")
    a(f"s_branch {done}")
    a.label(t1)
    a("v_lshlrev_b32 v6, 7, v4"); a("v_add_u32 v6, 256, v6")
    a("v_lshlrev_b32 v7, 8, v4")
    a("v_cmp_gt_u32 vcc, 2, v4")
    a("s_nop 1")
    for r in range(4):
        a(f"v_add_u32 v8, {2*r}, v6")
        a(f"v_add_u32 v9, {128*(r//2)+4*(r%2)}, v7")
        a("v_cndmask_b32 v8, v9, v8, vcc")
        a("v_lshl_add_u32 v8, v8, 2, v5")
        a(f"ds_write_b32 v8, v{20+r} offset:{KD_OFF}")
    a(f"s_branch {done}")
    a.label(t2)
    a("v_lshlrev_b32 v6, 9, v4"); a("v_add_u32 v6, 1024, v6")
    for r in range(4):
        a(f"v_add_u32 v8, {128*r}, v6")
        a("v_min_u32 v8, 2176, v8")
        a("v_lshl_add_u32 v8, v8, 2, v5")
        a(f"ds_write_b32 v8, v{20+r} offset:{KD_OFF}")
    a.label(done)
    a.label(skip)
    a("s_waitcnt lgkmcnt(0)")
    a("s_barrier")
    a("v_lshlrev_b32 v1, 3, v0")
    a("v_sub_u32 v1, 2047, v1")
    for e in range(8):
        a(f"v_subrev_u32 v4, {e}, v1")
        a("v_cvt_f32_u32 v4, v4")
        a("v_cvt_pk_bf16_f32 v4, v4, v4")
        a("v_lshlrev_b32 v4, 16, v4")
        a("v_cvt_u32_f32 v4, v4")
        a("v_lshlrev_b32 v4, 2, v4")
        a(f"ds_read_b32 v{20+e}, v4 offset:{KD_OFF}")
    a("s_waitcnt lgkmcnt(0)")
    for e in range(4):
        a(f"v_cvt_pk_bf16_f32 v{28+e}, v{20+2*e}, v{21+2*e}")
    a(f"s_mul_i32 s28, s3, {KRP}")
    a("v_lshlrev_b32 v1, 4, v0")
    a("buffer_store_dwordx4 v[28:31], v1, s[44:47], s28 offen")
    a("v_mov_b32 v32, 0"); a("v_mov_b32 v33, 0"); a("v_mov_b32 v34, 0"); a("v_mov_b32 v35, 0")
    a("v_cmp_gt_u32 vcc, 8, v0")
    a("s_and_saveexec_b64 s[48:49], vcc")
    skipz=a.newlabel("kg_z")
    a(f"s_cbranch_execz {skipz}")
    a("s_add_u32 s28, s28, 4096")
    a("buffer_store_dwordx4 v[32:35], v1, s[44:47], s28 offen")
    a.label(skipz)
    a("s_endpgm")

def k0(name):
    a=Asm()
    a.label(name)
    a("""
    s_load_dwordx2 s[4:5], s[0:1], 0
    s_load_dwordx2 s[6:7], s[0:1], 96
    s_waitcnt lgkmcnt(0)
    """)
    a(f"s_cmp_ge_u32 s2, {LN_WGS+448}")
    a(f"s_cbranch_scc1 {name}_exit")
    a(f"s_cmp_ge_u32 s2, {LN_WGS}")
    a(f"s_cbranch_scc1 {name}_kgen")
    ln_role(a)
    a.label(f"{name}_kgen")
    kgen_role(a)
    a.label(f"{name}_exit")
    a("s_endpgm")
    return a.text()
```

```python
from asm import *
from k0 import *

G1_WGS=224
CONV_WGS=224
K1_LDS=81920
CS=4160
KC_SZ=8*CS
XB_SZ=95*80
CH_SZ=KC_SZ+XB_SZ

def conv_role(a, G=G1_WGS):
    a(f"s_sub_u32 s3, s2, {G}")
    a("s_load_dwordx2 s[32:33], s[0:1], 48")
    ws_srd(a, 8, KR_OFF, KR_SZ)
    ws_srd(a, 12, XNT_OFF, XN_SZ)
    ws_srd(a, 16, ST_OFF, XN_SZ)
    a("s_waitcnt lgkmcnt(0)")
    srd(a, 20, 32, 33, 448*2)
    a("""
    v_lshrrev_b32 v1, 7, v0            ; chsel (0/1)
    v_and_b32 v2, 127, v0              ; tau
    s_lshl_b32 s24, s3, 1
    v_add_u32 v3, s24, v1              ; channel d
    """)
    a(f"v_mul_u32_u24 v4, {KRP}, v3")
    a("v_lshl_add_u32 v4, v2, 4, v4")
    a("v_lshlrev_b32 v5, 12, v3")
    a("v_lshl_add_u32 v5, v2, 4, v5")
    a("v_lshlrev_b32 v6, 1, v3")
    a("buffer_load_dwordx4 v[16:19], v4, s[8:11], 0 offen")
    a("buffer_load_dwordx4 v[20:23], v4, s[8:11], 0 offen offset:16")
    a("buffer_load_dwordx4 v[24:27], v4, s[8:11], 0 offen offset:2048")
    a("buffer_load_dwordx4 v[28:31], v4, s[8:11], 0 offen offset:2064")
    a("buffer_load_dwordx4 v[32:35], v5, s[12:15], 0 offen")
    a("buffer_load_dwordx4 v[36:39], v5, s[12:15], 0 offen offset:2048")
    a("buffer_load_ushort v7, v6, s[20:23], 0 offen")
    a(f"v_mul_u32_u24 v8, {CH_SZ}, v1")
    a("v_lshl_add_u32 v9, v2, 4, v8")
    a("v_mov_b32 v40, 0\nv_mov_b32 v41, 0\nv_mov_b32 v42, 0\nv_mov_b32 v43, 0")
    a(f"ds_write_b128 v9, v[40:43] offset:{KC_SZ}")
    a("v_cmp_gt_u32 vcc, 27, v2")
    a("s_and_saveexec_b64 s[26:27], vcc")
    a(f"ds_write_b128 v9, v[40:43] offset:{KC_SZ+2048}")
    a("s_mov_b64 exec, s[26:27]")
    a("v_lshrrev_b32 v10, 2, v2")
    a(f"v_mul_u32_u24 v10, {CS}, v10")
    a("v_and_b32 v11, 3, v2")
    a("v_lshl_add_u32 v10, v11, 4, v10")
    a("v_add_u32 v10, v10, v8")
    a("v_cmp_gt_u32 vcc, 32, v2")
    a("s_and_saveexec_b64 s[26:27], vcc")
    a("ds_write_b128 v10, v[40:43] offset:4096")
    a("s_mov_b64 exec, s[26:27]")
    a("v_lshrrev_b32 v10, 2, v2")
    a("v_mul_u32_u24 v10, 80, v10")
    a("v_lshl_add_u32 v10, v11, 4, v10")
    a("v_add_u32 v10, v10, v8")
    a("s_waitcnt vmcnt(0)")
    a(f"ds_write_b128 v10, v[32:35] offset:{KC_SZ+31*80}")
    a(f"ds_write_b128 v10, v[36:39] offset:{KC_SZ+31*80+32*80}")
    for half in range(2):
        D=16+8*half
        E=44; D1=52; E1=60
        for k in range(7): a(f"v_alignbit_b32 v{E+k}, v{D+k+1}, v{D+k}, 16")
        for k in range(6): a(f"v_mov_b32 v{D1+k}, v{D+k+1}")
        for k in range(6): a(f"v_alignbit_b32 v{E1+k}, v{D+k+2}, v{D+k+1}, 16")
        src={0:D,4:D+2,2:D1,6:D1+2,1:E,5:E+2,3:E1,7:E1+2}
        for c in range(8):
            a(f"ds_write_b128 v9, v[{src[c]}:{src[c]+3}] offset:{c*CS+half*2048}")
    a("v_lshlrev_b32 v7, 16, v7")
    a("s_waitcnt lgkmcnt(0)")
    a("s_barrier")
    a("""
    v_and_b32 v10, 63, v0
    v_and_b32 v11, 31, v10             ; j / col
    v_lshrrev_b32 v12, 5, v10          ; g
    v_sub_u32 v13, 7, v11
    v_and_b32 v13, 7, v13              ; c=(7-j)&7
    """)
    a(f"v_mul_u32_u24 v13, {CS}, v13")
    a("v_lshl_add_u32 v13, v12, 4, v13")
    a("v_lshrrev_b32 v14, 3, v11")
    a("v_lshlrev_b32 v14, 4, v14")
    a("v_sub_u32 v13, v13, v14")
    a("v_add_u32 v13, 48, v13")
    a("v_add_u32 v13, v13, v8")
    a("v_mul_u32_u24 v14, 80, v11")
    a("v_lshl_add_u32 v14, v12, 4, v14")
    a(f"v_add_u32 v14, {KC_SZ}, v14")
    a("v_add_u32 v14, v14, v8")
    ACC0=64; ACC1=80
    for i in range(32): a(f"v_mov_b32 v{64+i}, 0")
    a("v_lshrrev_b32 v15, 6, v0")
    a("v_and_b32 v15, 1, v15")
    a("s_nop 0")
    a("v_readfirstlane_b32 s25, v15")
    lB=a.newlabel("cv_B"); lJ=a.newlabel("cv_J")
    a("s_nop 3")
    a("s_cmp_eq_u32 s25, 1")
    a(f"s_cbranch_scc1 {lB}")
    def mainloop(units):
        NS=3
        def issue(u):
            delta,hs=units[u]; base=96+24*(u%NS); n=0
            for q in range(2):
                a(f"ds_read_b128 v[{base+4*q}:{base+4*q+3}], v13 offset:{64*(63-delta)+32*q}"); n+=1
            for hi,h in enumerate(hs):
                for q in range(2):
                    r=base+8+8*hi+4*q
                    a(f"ds_read_b128 v[{r}:{r+3}], v14 offset:{80*(31+32*h-delta)+32*q}"); n+=1
            return n
        cnt=[]
        for u in range(min(NS-1,len(units))): cnt.append(issue(u))
        for u in range(len(units)):
            if u+NS-1<len(units): cnt.append(issue(u+NS-1))
            rem=sum(cnt[u+1:])
            a(f"s_waitcnt lgkmcnt({min(rem,15)})")
            delta,hs=units[u]; base=96+24*(u%NS)
            for q in range(2):
                for hi,h in enumerate(hs):
                    acc=ACC0 if h==0 else ACC1
                    r=base+8+8*hi+4*q
                    a(f"v_mfma_f32_32x32x16_bf16 v[{acc}:{acc+15}], v[{base+4*q}:{base+4*q+3}], v[{r}:{r+3}], v[{acc}:{acc+15}]")
    mainloop([(d,[0,1]) for d in range(16)]+[(d,[0]) for d in range(16,32)])
    a(f"s_branch {lJ}")
    a.label(lB)
    mainloop([(d,[1]) for d in range(16,64)])
    a.label(lJ)
    a("s_nop 15")
    a("s_barrier")
    a("v_lshl_add_u32 v15, v10, 4, v8")
    lB2=a.newlabel("cv_B2"); lJ2=a.newlabel("cv_J2")
    a("s_cmp_eq_u32 s25, 1")
    a(f"s_cbranch_scc1 {lB2}")
    for i in range(4): a(f"ds_write_b128 v15, v[{ACC1+4*i}:{ACC1+4*i+3}] offset:{i*1024}")
    a("s_waitcnt lgkmcnt(0)")
    a.label(lB2)
    a("s_barrier")
    a("s_cmp_eq_u32 s25, 0")
    a(f"s_cbranch_scc1 {lJ2}")
    for i in range(4): a(f"ds_read_b128 v[{96+4*i}:{96+4*i+3}], v15 offset:{i*1024}")
    a("s_waitcnt lgkmcnt(0)")
    for i in range(16): a(f"v_add_f32 v{ACC0+i}, v{ACC1+i}, v{96+i}")
    a.label(lJ2)
    a("v_lshlrev_b32 v16, 3, v12")
    a("v_sub_u32 v16, v14, v16")
    a("s_mul_i32 s26, s25, 2560")
    a("v_add_u32 v16, s26, v16")
    for rq in range(4): a(f"ds_read_b64 v[{96+2*rq}:{97+2*rq}], v16 offset:{80*31+16*rq}")
    a("v_lshlrev_b32 v17, 12, v3")
    a("v_lshl_add_u32 v17, v11, 6, v17")
    a("v_lshl_add_u32 v17, v12, 3, v17")
    a("s_lshl_b32 s26, s25, 11")
    a("v_add_u32 v17, s26, v17")
    a("s_waitcnt lgkmcnt(0)")
    for rq in range(4):
        for p in range(2):
            x=96+2*rq+p
            y0=ACC0+4*rq+2*p
            a(f"v_lshlrev_b32 v20, 16, v{x}")
            a(f"v_and_b32 v21, 0xffff0000, v{x}")
            a("v_mul_f32 v20, v20, v7")
            a("v_mul_f32 v21, v21, v7")
            a("v_cvt_pk_bf16_f32 v22, v20, v21")
            a(f"v_cvt_pk_bf16_f32 v23, v{y0}, v{y0+1}")
            a("v_lshlrev_b32 v20, 16, v22")
            a("v_and_b32 v21, 0xffff0000, v22")
            a("v_lshlrev_b32 v24, 16, v23")
            a("v_and_b32 v25, 0xffff0000, v23")
            a("v_add_f32 v20, v20, v24")
            a("v_add_f32 v21, v21, v25")
            a(f"v_cvt_pk_bf16_f32 v{26+2*(rq&1)+p}, v20, v21")
        a(f"buffer_store_dwordx2 v[{26+2*(rq&1)}:{27+2*(rq&1)}], v17, s[16:19], 0 offen offset:{16*rq}")
    a("s_endpgm")

def gemm1_role(a):
    NB=4; NST=14
    a("s_load_dwordx2 s[32:33], s[0:1], 64")
    a("s_mul_hi_u32 s20, s2, 0x12492493")
    a("s_mul_i32 s21, s20, 14")
    a("s_sub_u32 s21, s2, s21")
    ws_srd(a, 8, XN_OFF, XN_SZ)
    ws_srd(a, 16, H_OFF, H_SZ)
    a("s_waitcnt lgkmcnt(0)")
    srd(a, 12, 32, 33, 448*3584)
    a("""
    v_and_b32 v1, 63, v0               ; lane
    v_lshrrev_b32 v2, 6, v0            ; wave
    s_nop 0
    v_readfirstlane_b32 s22, v2
    """)
    a("""
    v_lshrrev_b32 v3, 2, v1
    v_lshl_add_u32 v3, v2, 5, v3
    s_lshl_b32 s23, s20, 7
    v_add_u32 v3, s23, v3
    v_mul_u32_u24 v3, 896, v3
    v_and_b32 v4, 3, v1
    v_bfe_u32 v5, v1, 4, 2
    v_xor_b32 v4, v4, v5
    v_lshl_add_u32 v3, v4, 4, v3       ; v3 = voffA
    """)
    a("""
    v_lshrrev_b32 v4, 4, v1
    v_lshl_add_u32 v4, v2, 3, v4
    v_mul_u32_u24 v4, 3584, v4
    v_bfe_u32 v6, v1, 2, 2
    v_xor_b32 v6, v6, v5
    v_and_b32 v7, 3, v1
    v_lshl_add_u32 v6, v6, 2, v7
    v_lshl_add_u32 v4, v6, 4, v4
    s_lshl_b32 s23, s21, 8
    v_add_u32 v4, s23, v4              ; v4 = voffB
    s_lshl_b32 s24, s22, 11            ; wave*2048
    """)
    def issue(s):
        b=s%NB
        for i in range(2):
            a(f"s_add_u32 m0, s24, {b*16384+i*1024}")
            a(f"s_mov_b32 s25, {s*64+i*16*896}")
            a(f"buffer_load_dwordx4 v3, s[8:11], s25 offen lds")
            a.vm_issue(s)
        for i in range(2):
            a(f"s_add_u32 m0, s24, {b*16384+8192+i*1024}")
            a(f"s_mov_b32 s25, {s*32*3584+i*4*3584}")
            a(f"buffer_load_dwordx4 v4, s[12:15], s25 offen lds")
            a.vm_issue(s)
    for s in range(NB-1): issue(s)
    a("""
    v_and_b32 v8, 31, v1               ; m
    v_lshrrev_b32 v9, 5, v1            ; g
    v_lshrrev_b32 v10, 1, v2           ; wr
    v_and_b32 v11, 1, v2               ; wc
    v_lshl_add_u32 v12, v10, 6, v8     ; row
    v_lshlrev_b32 v12, 6, v12
    v_bfe_u32 v13, v8, 2, 2
    v_xor_b32 v13, v13, v9
    v_lshl_add_u32 v12, v13, 4, v12    ; vA0
    v_xor_b32 v13, 32, v12             ; vA1
    """)
    a("""
    v_bfe_u32 v14, v1, 2, 2            ; r
    v_lshl_add_u32 v15, v9, 3, v14     ; 8g+r
    v_lshlrev_b32 v15, 8, v15
    v_lshlrev_b32 v16, 1, v11
    v_xor_b32 v16, v16, v14
    v_lshl_add_u32 v15, v16, 6, v15
    v_bfe_u32 v16, v1, 4, 1
    v_lshl_add_u32 v15, v16, 5, v15
    v_and_b32 v16, 3, v1
    v_lshl_add_u32 v15, v16, 3, v15
    v_add_u32 v15, 8192, v15           ; vB0
    v_xor_b32 v16, 64, v15             ; vB1
    """)
    ACC=64
    for i in range(64): a(f"v_mov_b32 v{ACC+i}, 0")
    FA=32; FB=48
    for s in range(NST):
        b=s%NB
        a.vm_wait(s)
        a("s_barrier")
        if s+NB-1<NST: issue(s+NB-1)
        for ks in range(2):
            va=12 if ks==0 else 13
            for mt in range(2):
                r=FA+8*ks+4*mt
                a(f"ds_read_b128 v[{r}:{r+3}], v{va} offset:{b*16384+mt*2048}")
            for nt in range(2):
                vb=15 if nt==0 else 16
                for i in range(2):
                    r=FB+8*ks+4*nt+2*i
                    a(f"ds_read_b64_tr_b16 v[{r}:{r+1}], v{vb} offset:{b*16384+(16*ks+4*i)*256}")
        for ks in range(2):
            a(f"s_waitcnt lgkmcnt({6 if ks==0 else 0})")
            for mt in range(2):
                for nt in range(2):
                    acc=ACC+16*(2*mt+nt)
                    ra=FA+8*ks+4*mt; rb=FB+8*ks+4*nt
                    a(f"v_mfma_f32_32x32x16_bf16 v[{acc}:{acc+15}], v[{rb}:{rb+3}], v[{ra}:{ra+3}], v[{acc}:{acc+15}]")
    a("s_nop 15")
    a("""
    v_lshl_add_u32 v20, v10, 6, v8
    s_lshl_b32 s23, s20, 7
    v_add_u32 v20, s23, v20
    v_mul_u32_u24 v20, 3584, v20
    v_lshl_add_u32 v20, v11, 7, v20
    v_lshl_add_u32 v20, v9, 3, v20
    s_lshl_b32 s23, s21, 8
    v_add_u32 v20, s23, v20
    """)
    k=0
    for mt in range(2):
        a(f"s_mov_b32 s25, {mt*32*3584}")
        for nt in range(2):
            acc=ACC+16*(2*mt+nt)
            for q in range(4):
                t=24+2*(k%4); k+=1
                for e in range(4): a(f"v_max_f32 v{acc+4*q+e}, 0, v{acc+4*q+e}")
                a(f"v_cvt_pk_bf16_f32 v{t}, v{acc+4*q}, v{acc+4*q+1}")
                a(f"v_cvt_pk_bf16_f32 v{t+1}, v{acc+4*q+2}, v{acc+4*q+3}")
                a(f"buffer_store_dwordx2 v[{t}:{t+1}], v20, s[16:19], s25 offen offset:{64*nt+16*q}")
    a("s_endpgm")

def k1(name):
    a=Asm()
    a.label(name)
    a("""
    s_load_dwordx2 s[6:7], s[0:1], 96
    s_waitcnt lgkmcnt(0)
    """)
    a(f"s_cmp_ge_u32 s2, {G1_WGS+CONV_WGS}")
    a(f"s_cbranch_scc1 {name}_exit")
    a(f"s_cmp_ge_u32 s2, {G1_WGS}")
    a(f"s_cbranch_scc1 {name}_conv")
    gemm1_role(a)
    a.label(f"{name}_conv")
    conv_role(a)
    a.label(f"{name}_exit")
    a("s_endpgm")
    return a.text()
```

```python
from asm import *
from k0 import *

G2_WGS=224
K2_LDS=81920
RP=272

def gemm2_role(a):
    NB=4; NST=28
    a("s_load_dwordx2 s[32:33], s[0:1], 72")
    a("s_load_dwordx2 s[34:35], s[0:1], 0")
    a("s_load_dwordx2 s[36:37], s[0:1], 80")
    a("s_mul_hi_u32 s20, s2, 0x24924925")
    a("s_mul_i32 s21, s20, 7")
    a("s_sub_u32 s21, s2, s21")
    ws_srd(a, 8, H_OFF, H_SZ)
    ws_srd(a, 16, ST_OFF, XN_SZ)
    a("s_waitcnt lgkmcnt(0)")
    srd(a, 12, 32, 33, 1792*896)
    srd(a, 40, 34, 35, XN_SZ)
    srd(a, 44, 36, 37, XN_SZ)
    a("""
    v_and_b32 v1, 63, v0
    v_lshrrev_b32 v2, 6, v0
    s_nop 0
    v_readfirstlane_b32 s22, v2
    """)
    a("""
    v_lshrrev_b32 v3, 3, v1
    v_lshl_add_u32 v3, v2, 4, v3
    s_lshl_b32 s23, s20, 6
    v_add_u32 v3, s23, v3
    v_mul_u32_u24 v3, 3584, v3
    v_and_b32 v4, 7, v1
    v_lshrrev_b32 v5, 4, v1
    v_xor_b32 v4, v4, v5
    v_lshl_add_u32 v3, v4, 4, v3       ; voffA i=0
    v_xor_b32 v4, 64, v3
    """)
    a("""
    v_lshrrev_b32 v5, 3, v1
    v_lshl_add_u32 v5, v2, 4, v5
    v_mul_u32_u24 v5, 896, v5
    v_bfe_u32 v6, v1, 2, 1
    v_bfe_u32 v7, v1, 4, 1
    v_xor_b32 v6, v6, v7
    v_and_b32 v7, 3, v1
    v_lshl_add_u32 v6, v6, 2, v7
    v_lshl_add_u32 v5, v6, 4, v5
    s_lshl_b32 s23, s21, 7
    v_add_u32 v5, s23, v5              ; voffB
    s_lshl_b32 s24, s22, 11
    """)
    def issue(s):
        b=s%NB
        for i in range(2):
            a(f"s_add_u32 m0, s24, {b*16384+i*1024}")
            a(f"s_mov_b32 s25, {s*128+i*8*3584}")
            a(f"buffer_load_dwordx4 v{3+i}, s[8:11], s25 offen lds")
            a.vm_issue(s)
        for i in range(2):
            a(f"s_add_u32 m0, s24, {b*16384+8192+i*1024}")
            a(f"s_mov_b32 s25, {s*64*896+i*8*896}")
            a(f"buffer_load_dwordx4 v5, s[12:15], s25 offen lds")
            a.vm_issue(s)
    for s in range(NB-1): issue(s)
    a("""
    v_and_b32 v8, 31, v1
    v_lshrrev_b32 v9, 5, v1
    v_lshlrev_b32 v12, 7, v8
    v_lshl_add_u32 v13, v2, 1, v9
    v_bfe_u32 v14, v8, 1, 3
    v_xor_b32 v13, v13, v14
    v_lshl_add_u32 v12, v13, 4, v12    ; vA
    """)
    a("""
    v_bfe_u32 v14, v1, 2, 2            ; r
    v_lshl_add_u32 v15, v9, 3, v14
    v_lshl_add_u32 v15, v2, 4, v15
    v_lshlrev_b32 v15, 7, v15
    v_lshrrev_b32 v16, 1, v14
    v_lshl_add_u32 v15, v16, 6, v15
    v_bfe_u32 v16, v1, 4, 1
    v_lshl_add_u32 v15, v16, 5, v15
    v_and_b32 v16, 3, v1
    v_lshl_add_u32 v15, v16, 3, v15
    v_add_u32 v15, 8192, v15           ; vB0
    v_xor_b32 v16, 64, v15             ; vB1
    """)
    ACC=64
    for i in range(64): a(f"v_mov_b32 v{ACC+i}, 0")
    FA=32; FB=48
    for s in range(NST):
        b=s%NB
        a.vm_wait(s)
        a("s_barrier")
        if s+NB-1<NST: issue(s+NB-1)
        p=8*(s&1)
        for mt in range(2):
            r=FA+p+4*mt
            a(f"ds_read_b128 v[{r}:{r+3}], v12 offset:{b*16384+mt*4096}")
        for nt in range(2):
            vb=15 if nt==0 else 16
            for i in range(2):
                r=FB+p+4*nt+2*i
                a(f"ds_read_b64_tr_b16 v[{r}:{r+1}], v{vb} offset:{b*16384+4*i*128}")
        a("s_waitcnt lgkmcnt(0)")
        for mt in range(2):
            for nt in range(2):
                acc=ACC+16*(2*mt+nt)
                ra=FA+p+4*mt; rb=FB+p+4*nt
                a(f"v_mfma_f32_32x32x16_bf16 v[{acc}:{acc+15}], v[{rb}:{rb+3}], v[{ra}:{ra+3}], v[{acc}:{acc+15}]")
    a("s_nop 15")
    a("s_barrier")
    a(f"v_mul_u32_u24 v20, {64*RP}, v2")
    a(f"v_mul_u32_u24 v21, {RP}, v8")
    a("v_add_u32 v20, v20, v21")
    a("v_lshl_add_u32 v20, v9, 4, v20")
    for mt in range(2):
        for nt in range(2):
            acc=ACC+16*(2*mt+nt)
            for q in range(4):
                a(f"ds_write_b128 v20, v[{acc+4*q}:{acc+4*q+3}] offset:{mt*32*RP+nt*128+q*32}")
    ST_L=4*64*RP
    SP=144
    a("""
    v_lshrrev_b32 v21, 2, v0           ; d local
    v_and_b32 v22, 3, v0
    s_lshl_b32 s23, s21, 6
    v_add_u32 v23, s23, v21
    v_lshlrev_b32 v23, 12, v23
    v_lshl_add_u32 v23, v22, 5, v23
    s_lshl_b32 s23, s20, 7
    v_add_u32 v23, s23, v23
    buffer_load_dwordx4 v[24:27], v23, s[16:19], 0 offen
    buffer_load_dwordx4 v[28:31], v23, s[16:19], 0 offen offset:16
    """)
    a(f"v_mul_u32_u24 v21, {SP}, v21")
    a("v_lshl_add_u32 v21, v22, 5, v21")
    a(f"v_add_u32 v21, {ST_L}, v21")
    a("""
    s_lshl_b32 s23, s20, 6
    v_add_u32 v22, s23, v1
    v_mul_u32_u24 v22, 896, v22
    v_lshl_add_u32 v22, v2, 5, v22
    s_lshl_b32 s23, s21, 7
    v_add_u32 v22, s23, v22
    buffer_load_dwordx4 v[32:35], v22, s[40:43], 0 offen
    buffer_load_dwordx4 v[36:39], v22, s[40:43], 0 offen offset:16
    s_waitcnt vmcnt(2)
    """)
    a(f"ds_write_b128 v21, v[24:27]")
    a(f"ds_write_b128 v21, v[28:31] offset:16")
    a("s_waitcnt lgkmcnt(0)")
    a("s_barrier")
    a(f"v_mul_u32_u24 v20, {RP}, v1")
    a("v_lshl_add_u32 v20, v2, 6, v20")
    for wv in range(4):
        for j in range(4):
            r=64+16*wv+4*j
            a(f"ds_read_b128 v[{r}:{r+3}], v20 offset:{wv*64*RP+j*16}")
    a("""
    v_lshl_add_u32 v21, v2, 4, v14     ; 16w + r
    """)
    a(f"v_mul_u32_u24 v21, {SP}, v21")
    a("v_lshrrev_b32 v23, 4, v1")
    a("v_lshl_add_u32 v21, v23, 5, v21")
    a("v_and_b32 v23, 3, v1")
    a("v_lshl_add_u32 v21, v23, 3, v21")
    a(f"v_add_u32 v21, {ST_L}, v21")
    for j in range(4):
        a(f"ds_read_b64_tr_b16 v[{40+2*j}:{41+2*j}], v21 offset:{4*j*SP}")
    a("s_waitcnt lgkmcnt(0) vmcnt(0)")
    for i in range(16):
        a(f"v_add_f32 v{64+i}, v{64+i}, v{80+i}")
        a(f"v_add_f32 v{96+i}, v{96+i}, v{112+i}")
        a(f"v_add_f32 v{64+i}, v{64+i}, v{96+i}")
    NL2E=hex(f2u(-1.4426950408889634))
    for p in range(8):
        m0,m1=64+2*p,65+2*p
        a(f"v_cvt_pk_bf16_f32 v24, v{m0}, v{m1}")
        a("v_lshlrev_b32 v25, 16, v24")
        a("v_and_b32 v26, 0xffff0000, v24")
        a(f"v_mul_f32 v27, {NL2E}, v25")
        a(f"v_mul_f32 v28, {NL2E}, v26")
        a("v_exp_f32 v27, v27")
        a("v_exp_f32 v28, v28")
        a("s_nop 0")
        a("v_add_f32 v27, 1.0, v27")
        a("v_add_f32 v28, 1.0, v28")
        a("v_rcp_f32 v27, v27")
        a("v_rcp_f32 v28, v28")
        a("s_nop 0")
        a("v_mul_f32 v25, v25, v27")
        a("v_mul_f32 v26, v26, v28")
        a("v_cvt_pk_bf16_f32 v24, v25, v26")
        a("v_lshlrev_b32 v25, 16, v24")
        a("v_and_b32 v26, 0xffff0000, v24")
        a(f"v_lshlrev_b32 v27, 16, v{40+p}")
        a(f"v_and_b32 v28, 0xffff0000, v{40+p}")
        a("v_mul_f32 v25, v25, v27")
        a("v_mul_f32 v26, v26, v28")
        a("v_cvt_pk_bf16_f32 v24, v25, v26")
        a("v_lshlrev_b32 v25, 16, v24")
        a("v_and_b32 v26, 0xffff0000, v24")
        a(f"v_lshlrev_b32 v27, 16, v{32+p}")
        a(f"v_and_b32 v28, 0xffff0000, v{32+p}")
        a("v_add_f32 v25, v25, v27")
        a("v_add_f32 v26, v26, v28")
        a(f"v_cvt_pk_bf16_f32 v{48+p}, v25, v26")
    a("buffer_store_dwordx4 v[48:51], v22, s[44:47], 0 offen")
    a("buffer_store_dwordx4 v[52:55], v22, s[44:47], 0 offen offset:16")
    a("s_endpgm")

def k2(name):
    a=Asm()
    a.label(name)
    a("""
    s_load_dwordx2 s[6:7], s[0:1], 96
    s_waitcnt lgkmcnt(0)
    """)
    a(f"s_cmp_ge_u32 s2, {G2_WGS}")
    a(f"s_cbranch_scc1 {name}_exit")
    gemm2_role(a)
    a.label(f"{name}_exit")
    a("s_endpgm")
    return a.text()
```

```python
import sys
from asm import *
import k0 as K0, k1 as K1, k2 as K2
NAME="recurrent_scan__ssm_conv_s4d__dense_activation_relu__prompt"
hdr=open(f"cdna_kernels/{NAME}.s.ref").read().split("; Override launch geometry")[0]
s=hdr
s+=f"; @launch kernel=ka_kernel grid=({K0.LN_WGS+448},1,1) block=(256,1,1) lds={K0.K0_LDS}\n"
s+=f"; @launch kernel=kb_kernel grid=({K1.G1_WGS+K1.CONV_WGS},1,1) block=(256,1,1) lds={K1.K1_LDS}\n"
s+=f"; @launch kernel=kc_kernel grid=({K2.G2_WGS},1,1) block=(256,1,1) lds={K2.K2_LDS}\n"
s+='.amdgcn_target "amdgcn-amd-amdhsa--gfx950"\n.text\n'
for n,f in (("ka_kernel",K0.k0),("kb_kernel",K1.k1),("kc_kernel",K2.k2)):
    s+=f".globl {n}\n.p2align 8\n.type {n},@function\n"+f(n)
s+='.section .rodata,"a"\n.p2align 6\n'
s+=kdesc("ka_kernel",256)+kdesc("kb_kernel",168)+kdesc("kc_kernel",128)
out=sys.argv[1] if len(sys.argv)>1 else f"cdna_kernels/{NAME}.s"
open(out,"w").write(s)
print("wrote",out,len(s))
```

```python
_UID=[0]
class Asm:
    def __init__(self):
        self.lines = []
        self.vm = []
    def __call__(self, s):
        for l in s.strip('\n').split('\n'):
            self.lines.append('    ' + l.strip())
    def label(self, name):
        self.lines.append(name + ':')
    def comment(self, s):
        self.lines.append('    ; ' + s)
    def newlabel(self, base):
        _UID[0] += 1
        return f"L_{base}_{_UID[0]}"
    def vm_issue(self, tag):
        self.vm.append(tag)
    def vm_wait(self, tag):
        idx = max(i for i, t in enumerate(self.vm) if t == tag)
        n = len(self.vm) - 1 - idx
        self.vm = self.vm[idx + 1:]
        assert n <= 63
        self(f"s_waitcnt vmcnt({n})")
    def vm_has(self, tag):
        return tag in self.vm
    def vm_clear(self):
        self.vm = []
    def text(self):
        return '\n'.join(self.lines) + '\n'

def srd(a, d, lo, hi, nbytes):
    a(f"s_mov_b32 s{d}, s{lo}")
    a(f"s_mov_b32 s{d+1}, s{hi}")
    a(f"s_mov_b32 s{d+2}, {nbytes}")
    a(f"s_mov_b32 s{d+3}, 0x00020000")

def kdesc(name, vgpr, sgpr=102, accum=None):
    if accum is None:
        accum = (vgpr + 3) // 4 * 4
    return f""".amdhsa_kernel {name}
  .amdhsa_next_free_vgpr {vgpr}
  .amdhsa_next_free_sgpr {sgpr}
  .amdhsa_accum_offset {accum}
  .amdhsa_group_segment_fixed_size 0
  .amdhsa_kernarg_size 104
  .amdhsa_user_sgpr_count 2
  .amdhsa_user_sgpr_kernarg_segment_ptr 1
  .amdhsa_system_sgpr_workgroup_id_x 1
  .amdhsa_float_denorm_mode_32 3
  .amdhsa_float_denorm_mode_16_64 3
.end_amdhsa_kernel
"""

def capture(a, fn):
    save=a.lines; a.lines=[]
    fn()
    out=a.lines; a.lines=save
    return out

def interleave(a, primary, filler):
    n=len(primary)
    per=(len(filler)+n-1)//n if n else 0
    k=0
    for i,p in enumerate(primary):
        a.lines.append(p)
        a.lines.extend(filler[k:k+per]); k+=per
    a.lines.extend(filler[k:])
```

```python
from asm import *
import os, struct
import numpy as np
DIS=os.environ.get('DIS','').split(',')
XN_OFF=0; XNT_OFF=0x200000; KR_OFF=0x400000; H_OFF=0x600000; ST_OFF=0xE00000
XN_SZ=2048*448*2; KRP=4224; KR_SZ=448*KRP; H_SZ=2048*1792*2
def f2u(f): return struct.unpack('<I', struct.pack('<f', f))[0]

STATS_OFF=0x1200000
G1_WGS=224; KG_WGS=224; LN_WGS=32
KA_LDS=81920

RT=os.environ.get('RT','')
def rt_end(a, kid):
    if RT:
        a("s_waitcnt vmcnt(0) lgkmcnt(0)")
        a("s_memrealtime s[92:93]")
        a("s_mov_b64 exec, -1")
        a("s_waitcnt lgkmcnt(0)")
        a(f"s_add_u32 s96, s6, {0x1100000+kid*0x10000}")
        a("s_addc_u32 s97, s7, 0")
        a("s_mov_b32 s98, 0x10000")
        a("s_mov_b32 s99, 0x00020000")
        a("s_lshl_b32 s94, s2, 5")
        a("v_mov_b32 v4, s90\nv_mov_b32 v5, s91\nv_mov_b32 v6, s92\nv_mov_b32 v7, s93\nv_mov_b32 v8, s94")
        a("buffer_store_dwordx4 v[4:7], v8, s[96:99], 0 offen")
        a("s_nop 2")
        a("v_mov_b32 v4, s86\nv_mov_b32 v5, s87\nv_mov_b32 v6, s88\nv_mov_b32 v7, s89")
        a("buffer_store_dwordx4 v[4:7], v8, s[96:99], 0 offen offset:16")
    a("s_endpgm")

def ws_srd(a, d, off, nbytes, wlo=6, whi=7):
    a(f"s_add_u32 s{d}, s{wlo}, {off}")
    a(f"s_addc_u32 s{d+1}, s{whi}, 0")
    a(f"s_mov_b32 s{d+2}, {nbytes}")
    a(f"s_mov_b32 s{d+3}, 0x00020000")

def bf16r(a, dst, src):
    a(f"v_cvt_pk_bf16_f32 v{dst}, v{src}, v{src}")
    a(f"v_lshlrev_b32 v{dst}, 16, v{dst}")

def dpp_reduce8(a, v):
    a("s_nop 1")
    a(f"v_add_f32_dpp v{v}, v{v}, v{v} quad_perm:[1,0,3,2] row_mask:0xf bank_mask:0xf")
    a("s_nop 1")
    a(f"v_add_f32_dpp v{v}, v{v}, v{v} quad_perm:[2,3,0,1] row_mask:0xf bank_mask:0xf")
    a("s_nop 1")
    a(f"v_add_f32_dpp v{v}, v{v}, v{v} row_half_mirror row_mask:0xf bank_mask:0xf")

TSA=os.environ.get('TSA','')!=''
def tsa(a, idx):
    if not TSA: return
    a(f"s_memtime s[{60+2*idx}:{61+2*idx}]")
def tsa_flush(a, n):
    if not TSA: return
    a("s_waitcnt lgkmcnt(0)")
    ws_srd(a, 56, 0x1000000, 0x100000)
    a("s_lshl_b32 s80, s2, 8")
    a("v_lshrrev_b32 v100, 6, v0")
    a("v_and_b32 v100, 3, v100")
    a("v_lshlrev_b32 v100, 6, v100")
    a("v_add_u32 v100, s80, v100")
    for i in range(n):
        a(f"v_mov_b32 v102, s{60+2*i}")
        a(f"v_mov_b32 v103, s{61+2*i}")
        a(f"buffer_store_dwordx2 v[102:103], v100, s[56:59], 0 offen offset:{8*i}")
        a("s_nop 2")
def gemm1_role(a):
    NB=5; NST=14
    a(f"s_setprio {os.environ.get('G1P','0')}")
    tsa(a,0)
    if os.environ.get('MAP47'):
        a("s_lshr_b32 s26, s2, 3")
        a("s_and_b32 s27, s2, 7")
        a("s_mul_hi_u32 s20, s26, 0x24924925")
        a("s_mul_i32 s21, s20, 7")
        a("s_sub_u32 s21, s26, s21")
        a("s_lshr_b32 s26, s27, 1")
        a("s_lshl_b32 s26, s26, 2")
        a("s_add_u32 s20, s20, s26")
        a("s_and_b32 s27, s27, 1")
        a("s_mul_i32 s27, s27, 7")
        a("s_add_u32 s21, s21, s27")
    else:
        a("s_lshr_b32 s26, s2, 3")
        a("s_and_b32 s27, s2, 7")
        a("s_cmp_ge_u32 s26, 14")
        a("s_cselect_b32 s20, 1, 0")
        a("s_mul_i32 s21, s20, 14")
        a("s_sub_u32 s21, s26, s21")
        a("s_lshl_b32 s27, s27, 1")
        a("s_add_u32 s20, s20, s27")
    srd(a, 8, 4, 5, XN_SZ)
    ws_srd(a, 16, H_OFF, H_SZ)
    srd(a, 12, 80, 81, 448*3584)
    a("""
    v_and_b32 v1, 63, v0               ; lane
    v_lshrrev_b32 v2, 6, v0            ; wave 0..7
    s_nop 0
    v_readfirstlane_b32 s22, v2
    """)
    a("""
    v_lshrrev_b32 v3, 3, v1
    v_lshl_add_u32 v3, v2, 3, v3
    v_lshrrev_b32 v4, 1, v3
    v_and_b32 v4, 7, v4
    v_and_b32 v5, 7, v1
    v_xor_b32 v4, v4, v5
    s_lshl_b32 s23, s20, 7
    v_add_u32 v3, s23, v3
    v_mul_u32_u24 v3, 896, v3
    v_lshl_add_u32 v3, v4, 4, v3       ; voffA
    v_bfe_u32 v5, v1, 4, 2
    v_lshrrev_b32 v4, 4, v1
    v_lshl_add_u32 v4, v2, 2, v4
    v_mul_u32_u24 v4, 3584, v4
    v_bfe_u32 v6, v1, 2, 2
    v_xor_b32 v6, v6, v5
    v_and_b32 v7, 3, v1
    v_lshl_add_u32 v6, v6, 2, v7
    v_lshl_add_u32 v4, v6, 4, v4
    s_lshl_b32 s23, s21, 8
    v_add_u32 v4, s23, v4              ; voffB
    s_lshl_b32 s24, s22, 10            ; wave*1024
    """)
    NSL=10; NP=28
    a("s_lshr_b32 s31, s2, 3")
    a("s_mul_hi_u32 s30, s31, 0x24924925")
    a("s_mul_i32 s30, s30, 7")
    a("s_sub_u32 s31, s31, s30")
    def issue(p):
        c=p//4; k=p%4; sl=p%NSL
        a(f"s_add_u32 m0, s24, {sl*8192}")
        if k in (1,2):
            a("s_lshl_b32 s25, s31, 7")
            if k==2: a(f"s_add_u32 s25, s25, {64*896}")
            a(f"buffer_load_dwordx4 v3, s[8:11], s25 offen lds")
        else:
            a(f"s_mul_i32 s25, s31, {64*3584}")
            if k==3: a(f"s_add_u32 s25, s25, {32*3584}")
            a(f"buffer_load_dwordx4 v4, s[12:15], s25 offen lds")
        a.vm_issue(p)
        if k==3:
            a("s_add_u32 s31, s31, 1")
            a("s_cmp_eq_u32 s31, 7")
            a("s_cselect_b32 s31, 0, s31")
    for p in range(NSL): issue(p)
    a("""
    v_and_b32 v8, 31, v1               ; m / n
    v_lshrrev_b32 v9, 5, v1            ; g
    v_lshrrev_b32 v10, 2, v2           ; wr
    v_and_b32 v11, 3, v2               ; wc
    s_lshr_b32 s28, s22, 2             ; wr
    s_and_b32 s29, s22, 3              ; wc
    v_lshlrev_b32 v12, 7, v8           ; m*128
    v_bfe_u32 v13, v8, 1, 3
    v_xor_b32 v13, v13, v9
    v_lshl_add_u32 v12, v13, 4, v12
    v_bfe_u32 v14, v1, 2, 2            ; r
    v_lshl_add_u32 v15, v9, 3, v14
    v_lshlrev_b32 v15, 8, v15
    v_xor_b32 v16, v11, v14
    v_lshl_add_u32 v15, v16, 6, v15
    v_bfe_u32 v16, v1, 4, 1
    v_lshl_add_u32 v15, v16, 5, v15
    v_and_b32 v16, 3, v1
    v_lshl_add_u32 v15, v16, 3, v15
    """)
    ACC=64
    for i in range(32): a(f"v_mov_b32 v{ACC+i}, 0")
    FAs=[32,96]; FBs=[48,56]
    a("v_mov_b32 v28, 0")
    a("v_mov_b32 v24, 0x3f803f80")
    def reads(s):
        c=s//2; h=s%2
        FA=FAs[s&1]; FB=FBs[s&1]
        pB=4*c+(3 if h else 0)
        sl0=((4*c+1)%NSL)*8192; sl1=((4*c+2)%NSL)*8192
        a(f"s_mov_b32 s26, {sl0}")
        a(f"s_mov_b32 s27, {sl1}")
        a("s_cmp_eq_u32 s28, 0")
        a("s_cselect_b32 s26, s26, s27")
        a(f"v_xor_b32 v17, {64*h}, v12")
        a("v_add_u32 v17, s26, v17")
        a("v_xor_b32 v18, 32, v17")
        a(f"v_add_u32 v19, {(pB%NSL)*8192}, v15")
        for ks in range(2):
            for mt in range(2):
                r=FA+8*ks+4*mt
                a(f"ds_read_b128 v[{r}:{r+3}], v{17+ks} offset:{mt*4096}")
            for i in range(2):
                r=FB+4*ks+2*i
                a(f"ds_read_b64_tr_b16 v[{r}:{r+1}], v19 offset:{(16*ks+4*i)*256}")
    def need(s):
        c=s//2
        return 4*c+3 if s%2 else 4*c+2
    a.vm_wait(need(0))
    a("s_barrier")
    reads(0)
    st={'nxt':NSL}
    for s in range(NST):
        FA=FAs[s&1]; FB=FBs[s&1]
        if s+1<NST and a.vm_has(need(s+1)): a.vm_wait(need(s+1))
        a("s_waitcnt lgkmcnt(0)")
        a("s_barrier")
        if s==0: tsa(a,1)
        if s==2: tsa(a,2)
        if s==8: tsa(a,3)
        nfree = 1 if s%2==0 else 3
        def fill():
            global_nxt=None
            for _ in range(nfree):
                if st['nxt']<NP: issue(st['nxt']); st['nxt']+=1
            if s+1<NST: reads(s+1)
            for e in range(8): a(f"v_dot2_f32_bf16 v28, v{FB+e}, v24, v28")
        def prim():
            for ks in range(2):
                for mt in range(2):
                    acc=ACC+16*mt
                    ra=FA+8*ks+4*mt; rb=FB+4*ks
                    a(f"v_mfma_f32_32x32x16_bf16 v[{acc}:{acc+15}], v[{rb}:{rb+3}], v[{ra}:{ra+3}], v[{acc}:{acc+15}]")
        interleave(a, capture(a,prim), capture(a,fill))
    tsa(a,4)
    if os.environ.get('PF'):
        srd(a, 48, 84, 85, 1792*896)
        a("s_lshr_b32 s23, s2, 3")
        a("s_mul_i32 s23, s23, 57344")
        a("v_lshlrev_b32 v29, 4, v0")
        for i in range(7):
            a(f"buffer_load_dwordx4 v[{96+4*i}:{99+4*i}], v29, s[48:51], s23 offen")
            if i<6: a("s_add_u32 s23, s23, 8192")
    ws_srd(a, 40, STATS_OFF, 2048*8)
    srd(a, 44, 82, 83, 256)
    a("v_mov_b32 v29, 0")
    lp=a.newlabel("g1_poll"); ld=a.newlabel("g1_pd")
    a("s_cmp_lg_u32 s22, 0")
    a(f"s_cbranch_scc1 {ld}")
    a.label(lp)
    a("buffer_load_dword v30, v29, s[44:47], 0 offen sc1")
    a("s_waitcnt vmcnt(0)")
    a("v_readfirstlane_b32 s23, v30")
    a("s_nop 3")
    a(f"s_cmp_ge_u32 s23, {0 if 'ln' in DIS else LN_WGS}")
    a(f"s_cbranch_scc1 {ld}")
    a("s_sleep 16")
    a(f"s_branch {lp}")
    a.label(ld)
    a("s_barrier")
    a("v_lshl_add_u32 v24, v10, 6, v8")
    a("s_lshl_b32 s23, s20, 7")
    a("v_add_u32 v24, s23, v24")
    a("v_lshlrev_b32 v24, 3, v24")
    a("buffer_load_dwordx2 v[26:27], v24, s[40:43], 0 offen sc1")
    a("buffer_load_dwordx2 v[30:31], v24, s[40:43], 0 offen offset:256 sc1")
    a("v_mov_b32 v29, v28")
    a("s_nop 1")
    a("v_permlane32_swap_b32 v29, v28")
    a("s_nop 1")
    a("v_add_f32 v28, v28, v29")
    a("v_lshl_add_u32 v24, v2, 5, v8")
    a("v_lshlrev_b32 v24, 2, v24")
    a("ds_write_b32 v24, v28")
    a("v_lshlrev_b32 v25, 7, v2")
    a("v_lshl_add_u32 v25, v9, 4, v25")
    a("s_waitcnt lgkmcnt(0)")
    for q in range(4):
        a(f"ds_read_b128 v[{32+4*q}:{35+4*q}], v25 offset:{32*q}")
    a("s_waitcnt vmcnt(0) lgkmcnt(0)")
    a("v_mov_b32 v28, v30")
    a("v_mov_b32 v29, v31")
    tsa(a,5)
    HP=272
    a(f"v_lshl_add_u32 v20, v10, 6, v8")
    a(f"v_mul_u32_u24 v20, {HP}, v20")
    a("v_lshl_add_u32 v20, v11, 6, v20")
    a("v_lshl_add_u32 v20, v9, 3, v20")
    k=0
    for mt in range(2):
        acc=ACC+16*mt; s0=26+2*mt
        for q in range(4):
            t=48+2*(k%4); k+=1
            for e in range(4):
                r=acc+4*q+e
                a(f"v_fma_f32 v{r}, -v{s0}, v{32+4*q+e}, v{r}")
                a(f"v_mul_f32 v{r}, v{r}, v{s0+1}")
                a(f"v_max_f32 v{r}, 0, v{r}")
            a(f"v_cvt_pk_bf16_f32 v{t}, v{acc+4*q}, v{acc+4*q+1}")
            a(f"v_cvt_pk_bf16_f32 v{t+1}, v{acc+4*q+2}, v{acc+4*q+3}")
            a(f"ds_write_b64 v20, v[{t}:{t+1}] offset:{2048+mt*32*HP+16*q}")
    a("s_waitcnt lgkmcnt(0)")
    a("s_barrier")
    a("v_lshrrev_b32 v21, 4, v0")
    a("v_and_b32 v22, 15, v0")
    a(f"v_mul_u32_u24 v23, {HP}, v21")
    a("v_lshl_add_u32 v23, v22, 4, v23")
    for j in range(4):
        a(f"ds_read_b128 v[{32+4*j}:{35+4*j}], v23 offset:{2048+j*32*HP}")
    a("s_lshl_b32 s23, s20, 7")
    a("v_add_u32 v21, s23, v21")
    a("v_mul_u32_u24 v21, 3584, v21")
    a("v_lshl_add_u32 v21, v22, 4, v21")
    a("s_lshl_b32 s23, s21, 8")
    a("v_add_u32 v21, s23, v21")
    for j in range(4):
        a(f"s_mov_b32 s25, {j*32*3584}")
        a(f"s_waitcnt lgkmcnt({3-j})")
        a(f"buffer_store_dwordx4 v[{32+4*j}:{35+4*j}], v21, s[16:19], s25 offen")
    a("s_waitcnt vmcnt(0)")
    tsa(a,6)
    tsa_flush(a,7)
    rt_end(a,0)

def ln_role(a):
    PITCH=928
    a("s_setprio 3")
    a(f"s_sub_u32 s3, s2, {G1_WGS+KG_WGS}")
    srd(a, 8, 4, 5, XN_SZ)
    ws_srd(a, 16, XNT_OFF, XN_SZ)
    a("""
    v_lshrrev_b32 v2, 3, v0
    v_and_b32 v3, 7, v0
    s_lshl_b32 s20, s3, 6
    v_add_u32 v4, s20, v2
    v_mul_u32_u24 v1, 896, v4
    v_lshl_add_u32 v1, v3, 4, v1
    """)
    for i in range(7):
        a(f"buffer_load_dwordx4 v[{16+4*i}:{19+4*i}], v1, s[8:11], 0 offen offset:{i*128}")
    a("v_mov_b32 v5, 0x3f803f80")
    a("v_mov_b32 v6, 0")
    a("v_mov_b32 v7, 0")
    a("s_waitcnt vmcnt(0)")
    for i in range(28):
        a(f"v_dot2_f32_bf16 v{6+(i&1)}, v{16+i}, v5, v{6+(i&1)}")
    a("s_nop 3")
    a("v_add_f32 v6, v6, v7")
    dpp_reduce8(a, 6)
    a(f"v_mul_f32 v6, {hex(f2u(1.0/448))}, v6")
    a("v_mov_b32 v7, v6")
    for i in range(28):
        a(f"v_lshlrev_b32 v{44+2*i}, 16, v{16+i}")
        a(f"v_and_b32 v{45+2*i}, 0xffff0000, v{16+i}")
    a("v_mov_b32 v8, 0")
    a("v_mov_b32 v9, 0")
    for i in range(28):
        a(f"v_pk_add_f32 v[10:11], v[{44+2*i}:{45+2*i}], v[6:7] neg_lo:[0,1] neg_hi:[0,1]")
        a("v_pk_fma_f32 v[8:9], v[10:11], v[10:11], v[8:9]")
    a("v_add_f32 v8, v8, v9")
    dpp_reduce8(a, 8)
    a(f"v_mul_f32 v8, {hex(f2u(1.0/448))}, v8")
    bf16r(a, 8, 8)
    a(f"v_add_f32 v8, {hex(f2u(1e-5))}, v8")
    bf16r(a, 8, 8)
    a("v_sqrt_f32 v8, v8")
    a("s_nop 0")
    bf16r(a, 8, 8)
    a("v_rcp_f32 v12, v8")
    a("v_mov_b32 v9, v8")
    bf16r(a, 6, 6)
    a("v_mov_b32 v7, v6")
    a("v_mov_b32 v13, v12")
    ws_srd(a, 40, STATS_OFF, 2048*8)
    srd(a, 44, 82, 83, 256)
    a("v_mov_b32 v10, v6")
    a("v_mov_b32 v11, v12")
    a("v_lshlrev_b32 v14, 3, v4")
    a("v_cmp_eq_u32 vcc, 0, v3")
    a("s_and_saveexec_b64 s[26:27], vcc")
    a("buffer_store_dwordx2 v[10:11], v14, s[40:43], 0 offen sc1")
    a("s_mov_b64 exec, s[26:27]")
    a("s_waitcnt vmcnt(0)")
    a("s_barrier")
    a("v_mov_b32 v10, 0")
    a("v_mov_b32 v11, 1")
    a("v_cmp_eq_u32 vcc, 0, v0")
    a("s_and_saveexec_b64 s[26:27], vcc")
    a("buffer_atomic_add v11, v10, s[44:47], 0 offen")
    a("s_mov_b64 exec, s[26:27]")
    for i in range(28):
        lo, hi = 44+2*i, 45+2*i
        a(f"v_pk_add_f32 v[{lo}:{hi}], v[{lo}:{hi}], v[6:7] neg_lo:[0,1] neg_hi:[0,1]")
        a(f"v_cvt_pk_bf16_f32 v10, v{lo}, v{hi}")
        a(f"v_lshlrev_b32 v{lo}, 16, v10")
        a(f"v_and_b32 v{hi}, 0xffff0000, v10")
        a(f"v_pk_mul_f32 v[10:11], v[{lo}:{hi}], v[12:13]")
        a(f"v_pk_fma_f32 v[{lo}:{hi}], v[10:11], v[8:9], v[{lo}:{hi}] neg_lo:[1,0,0] neg_hi:[1,0,0]")
        a(f"v_pk_fma_f32 v[10:11], v[{lo}:{hi}], v[12:13], v[10:11]")
        a(f"v_cvt_pk_bf16_f32 v{16+i}, v10, v11")
    a(f"v_mul_u32_u24 v9, {PITCH}, v2")
    a("v_lshl_add_u32 v9, v3, 4, v9")
    for i in range(7):
        a(f"ds_write_b128 v9, v[{16+4*i}:{19+4*i}] offset:{i*128}")
    a("s_waitcnt lgkmcnt(0)")
    a("s_barrier")
    a("""
    v_and_b32 v10, 63, v0
    v_lshrrev_b32 v11, 6, v0          ; wave
    v_lshrrev_b32 v15, 2, v11         ; th
    v_and_b32 v11, 3, v11             ; dq
    v_lshrrev_b32 v12, 4, v10         ; gam
    v_bfe_u32 v13, v10, 2, 2          ; r
    v_and_b32 v14, 3, v10             ; c
    v_lshl_add_u32 v13, v12, 3, v13   ; 8gam + r
    v_lshl_add_u32 v13, v15, 5, v13   ; + 32 th
    """)
    a(f"v_mul_u32_u24 v13, {PITCH}, v13")
    a("v_lshl_add_u32 v13, v14, 3, v13")
    a("v_lshl_add_u32 v13, v11, 5, v13")
    a("""
    v_and_b32 v14, 15, v10
    v_lshl_add_u32 v14, v11, 4, v14
    v_lshlrev_b32 v14, 12, v14
    v_lshl_add_u32 v14, v12, 4, v14
    v_lshl_add_u32 v14, v15, 6, v14
    s_lshl_b32 s21, s3, 7
    v_add_u32 v14, s21, v14
    """)
    for it in range(7):
        a(f"ds_read_b64_tr_b16 v[{16+4*it}:{17+4*it}], v13 offset:{it*128}")
        a(f"ds_read_b64_tr_b16 v[{18+4*it}:{19+4*it}], v13 offset:{it*128+4*PITCH}")
    a("s_waitcnt lgkmcnt(0)")
    for it in range(7):
        a(f"s_mov_b32 s22, {it*64*4096}")
        a(f"buffer_store_dwordx4 v[{16+4*it}:{19+4*it}], v14, s[16:19], s22 offen")
    rt_end(a,0)

def pk_cmul(a, d, x, y, t, negim=False):
    a(f"v_pk_mul_f32 v[{t}:{t+1}], v[{x}:{x+1}], v[{y}:{y+1}] op_sel:[1,1] op_sel_hi:[1,0]")
    if not negim:
        a(f"v_pk_fma_f32 v[{d}:{d+1}], v[{x}:{x+1}], v[{y}:{y+1}], v[{t}:{t+1}] op_sel:[0,0,0] op_sel_hi:[0,1,1] neg_lo:[0,0,1] neg_hi:[0,0,0]")
    else:
        a(f"v_pk_fma_f32 v[{d}:{d+1}], v[{x}:{x+1}], v[{y}:{y+1}], v[{t}:{t+1}] op_sel:[0,0,0] op_sel_hi:[0,1,1] neg_lo:[0,0,1] neg_hi:[1,0,1]")

def acc_exp(a, dst, x, t0, t1):
    L2E=1.4426950408889634
    hi=np.float32(L2E); lo=np.float32(L2E-float(hi))
    a(f"s_mov_b32 s30, {hex(f2u(float(hi)))}")
    a(f"s_mov_b32 s31, {hex(f2u(float(lo)))}")
    a(f"v_mul_f32 v{t0}, s30, v{x}")
    a(f"v_fma_f32 v{t1}, v{x}, s30, -v{t0}")
    a(f"v_fma_f32 v{t1}, v{x}, s31, v{t1}")
    a(f"v_exp_f32 v{dst}, v{t0}")
    a(f"v_mul_f32 v{t1}, {hex(f2u(0.6931471805599453))}, v{t1}")
    a(f"v_fma_f32 v{dst}, v{dst}, v{t1}, v{dst}")

def kgen_role(a):
    UP=528; WREG=16*UP; CHREG=4*WREG
    KD_OFF=12288
    a(f"s_sub_u32 s3, s2, {G1_WGS}")
    a(f"s_setprio {os.environ.get('KGP','2')}")
    srd(a, 8, 66, 67, 448*512)
    srd(a, 12, 68, 69, 448*512)
    srd(a, 16, 70, 71, 448*512)
    srd(a, 20, 72, 73, 448*512)
    srd(a, 24, 74, 75, 448*2)
    ws_srd(a, 44, KR_OFF, KR_SZ)
    a("""
    s_lshl_b32 s28, s3, 10
    v_lshlrev_b32 v1, 1, v0
    v_add_u32 v1, s28, v1
    v_lshrrev_b32 v3, 8, v0            ; chsel
    s_lshl_b32 s29, s3, 1
    v_add_u32 v2, s29, v3              ; channel d
    v_lshlrev_b32 v10, 1, v2
    buffer_load_ushort v4, v1, s[8:11], 0 offen
    buffer_load_ushort v5, v1, s[12:15], 0 offen
    buffer_load_ushort v6, v1, s[16:19], 0 offen
    buffer_load_ushort v7, v1, s[20:23], 0 offen
    buffer_load_ushort v8, v10, s[24:27], 0 offen
    """)
    a("v_and_b32 v1, 63, v0")
    a("v_lshrrev_b32 v0, 6, v0")
    a(f"v_mul_u32_u24 v14, {WREG}, v0")
    a("v_lshrrev_b32 v10, 4, v1")
    a("v_and_b32 v15, 15, v1")
    a(f"v_mul_u32_u24 v15, {UP}, v15")
    a("v_lshl_add_u32 v15, v10, 4, v15")
    a("v_add_u32 v15, v15, v14")
    a("v_lshl_add_u32 v14, v1, 2, v14")
    a("""
    s_waitcnt vmcnt(0)
    v_lshlrev_b32 v4, 16, v4
    v_lshlrev_b32 v5, 16, v5
    v_lshlrev_b32 v6, 16, v6
    v_lshlrev_b32 v7, 16, v7
    v_lshlrev_b32 v8, 16, v8
    """)
    if RT: a("s_memrealtime s[86:87]")
    acc_exp(a, 9, 8, 10, 11)
    bf16r(a, 9, 9)
    acc_exp(a, 12, 4, 10, 11)
    bf16r(a, 12, 12)
    a("v_mul_f32 v12, v12, v9")
    a("v_mul_f32 v13, v5, v9")
    a("v_mul_f32 v6, v6, v9")
    a("v_mul_f32 v7, v7, v9")
    a("v_add_f32 v6, v6, v6")
    a("v_add_f32 v7, v7, v7")
    a(f"v_mul_f32 v12, {hex(f2u(-1.4426950408889634))}, v12")
    a(f"v_mul_f32 v13, {hex(f2u(0.15915494309189535))}, v13")
    T=16
    def direct(d,p):
        a(f"v_mul_f32 v{T}, {hex(f2u(float(p)))}, v12")
        a(f"v_mul_f32 v{T+1}, {hex(f2u(float(p)))}, v13")
        a(f"v_exp_f32 v{T}, v{T}")
        a(f"v_fract_f32 v{T+1}, v{T+1}")
        a(f"v_cos_f32 v{d}, v{T+1}")
        a(f"v_sin_f32 v{d+1}, v{T+1}")
        a("s_nop 0")
        a(f"v_mul_f32 v{d}, v{d}, v{T}")
        a(f"v_mul_f32 v{d+1}, v{d+1}, v{T}")
    def split_write(src,row):
        a(f"v_cvt_pk_bf16_f32 v4, v{src}, v{src+1}")
        a("v_lshlrev_b32 v8, 16, v4")
        a("v_and_b32 v9, 0xffff0000, v4")
        a(f"v_pk_add_f32 v[8:9], v[{src}:{src+1}], v[8:9] neg_lo:[0,1] neg_hi:[0,1]")
        a("v_cvt_pk_bf16_f32 v5, v8, v9")
        a(f"v_add_u32 v10, {row*UP}, v14")
        a("ds_write2_b32 v10, v4, v5 offset0:0 offset1:64")
    BH=64; BL=80; AF=96; ACC=112
    V={1:20,2:22,4:24,8:26,3:28,5:30,6:32,7:34}
    direct(V[1],8); pk_cmul(a,V[2],V[1],V[1],T); pk_cmul(a,V[4],V[2],V[2],T); pk_cmul(a,V[8],V[4],V[4],T)
    pk_cmul(a,V[3],V[1],V[2],T); pk_cmul(a,V[5],V[4],V[1],T); pk_cmul(a,V[6],V[4],V[2],T); pk_cmul(a,V[7],V[4],V[3],T)
    a("v_mov_b32 v36, 1.0"); a("v_mov_b32 v37, 0")
    split_write(36,0)
    for j in range(1,9): split_write(V[j],j)
    for j in range(9,16):
        pk_cmul(a,36,V[8],V[j-8],T); split_write(36,j)
    a("s_waitcnt lgkmcnt(0)")
    for s in range(4):
        a(f"ds_read_b128 v[{BH+4*s}:{BH+4*s+3}], v15 offset:{64*s}")
        a(f"ds_read_b128 v[{BL+4*s}:{BL+4*s+3}], v15 offset:{256+64*s}")
    S={1:20,2:22,3:24,4:26,5:28,6:30,7:32}
    direct(S[1],1); pk_cmul(a,S[2],S[1],S[1],T); pk_cmul(a,S[4],S[2],S[2],T)
    pk_cmul(a,S[3],S[1],S[2],T); pk_cmul(a,S[5],S[1],S[4],T); pk_cmul(a,S[6],S[2],S[4],T); pk_cmul(a,S[7],S[3],S[4],T)
    G={1:48,2:50,4:52,8:54,16:56}
    direct(G[1],128)
    for m in (2,4,8,16): pk_cmul(a,G[m],G[m//2],G[m//2],T)
    W={0:6}
    for m in range(1,8): W[m]=32+2*m
    pk_cmul(a,W[1],6,G[1],T); pk_cmul(a,W[2],6,G[2],T); pk_cmul(a,W[3],W[1],G[2],T); pk_cmul(a,W[4],6,G[4],T)
    pk_cmul(a,W[5],W[1],G[4],T); pk_cmul(a,W[6],W[2],G[4],T); pk_cmul(a,W[7],W[3],G[4],T)
    for i in range(12): a(f"v_mov_b32 v{ACC+i}, 0")
    R=58
    rows={}
    rows[0]=[('ws',i//8,i%8) for i in range(16)]
    rows[1]=[('ws',2+i//4,2*(i%4)) for i in range(8)]+[('ws',4+i//2,4*(i%2)) for i in range(8)]
    rows[2]=[('wg',i,8) for i in range(8)]+[('wg',0,16)]+[None]*7
    for t in (2,1,0):
        a("s_waitcnt lgkmcnt(0)")
        for i,rw in enumerate(rows[t]):
            if rw is None:
                a(f"v_mov_b32 v{R}, 0"); a(f"v_mov_b32 v{R+1}, 0")
            elif rw[0]=='wg':
                pk_cmul(a,R,W[rw[1]],G[rw[2]],T,negim=True)
            elif rw[2]==0:
                a(f"v_mov_b32 v{R}, v{W[rw[1]]}")
                a(f"v_sub_f32 v{R+1}, 0, v{W[rw[1]]+1}")
            else:
                pk_cmul(a,R,W[rw[1]],S[rw[2]],T,negim=True)
            split_write(R,i)
        a("s_waitcnt lgkmcnt(0)")
        acc=ACC+4*t
        for s in range(4): a(f"ds_read_b128 v[{AF+4*s}:{AF+4*s+3}], v15 offset:{64*s}")
        for s in range(4):
            a(f"s_waitcnt lgkmcnt({3-s})")
            a(f"v_mfma_f32_16x16x32_bf16 v[{acc}:{acc+3}], v[{AF+4*s}:{AF+4*s+3}], v[{BH+4*s}:{BH+4*s+3}], v[{acc}:{acc+3}]")
            a(f"v_mfma_f32_16x16x32_bf16 v[{acc}:{acc+3}], v[{AF+4*s}:{AF+4*s+3}], v[{BL+4*s}:{BL+4*s+3}], v[{acc}:{acc+3}]")
        for s in range(4): a(f"ds_read_b128 v[{AF+4*s}:{AF+4*s+3}], v15 offset:{256+64*s}")
        for s in range(4):
            a(f"s_waitcnt lgkmcnt({3-s})")
            a(f"v_mfma_f32_16x16x32_bf16 v[{acc}:{acc+3}], v[{AF+4*s}:{AF+4*s+3}], v[{BH+4*s}:{BH+4*s+3}], v[{acc}:{acc+3}]")
    if RT: a("s_memrealtime s[88:89]")
    a("s_nop 15")
    a("s_barrier")
    a(f"v_mul_u32_u24 v16, {CHREG}, v3")
    a("v_and_b32 v17, 3, v0")
    a("v_mul_u32_u24 v18, 3072, v17")
    a("v_add_u32 v18, v18, v16")
    a("v_lshl_add_u32 v18, v1, 4, v18")
    for t in range(3):
        a(f"ds_write_b128 v18, v[{ACC+4*t}:{ACC+4*t+3}] offset:{t*1024}")
    a("s_waitcnt lgkmcnt(0)")
    a("s_barrier")
    skip=a.newlabel("kg_skip")
    a("v_readfirstlane_b32 s28, v17")
    a("s_nop 3")
    a("s_cmp_ge_u32 s28, 3")
    a(f"s_cbranch_scc1 {skip}")
    a("v_lshlrev_b32 v18, 10, v17")
    a("v_add_u32 v18, v18, v16")
    a("v_lshl_add_u32 v18, v1, 4, v18")
    for w in range(4):
        a(f"ds_read_b128 v[{20+4*w}:{23+4*w}], v18 offset:{w*3072}")
    a("s_waitcnt lgkmcnt(0)")
    for r in range(4):
        a(f"v_add_f32 v{20+r}, v{20+r}, v{24+r}")
        a(f"v_add_f32 v{28+r}, v{28+r}, v{32+r}")
        a(f"v_add_f32 v{20+r}, v{20+r}, v{28+r}")
    a("v_lshrrev_b32 v4, 4, v1")
    a("v_and_b32 v5, 15, v1")
    a("v_lshlrev_b32 v5, 5, v5")
    a("v_add_u32 v5, v5, v16")
    t1=a.newlabel("kg_t1"); t2=a.newlabel("kg_t2"); done=a.newlabel("kg_td")
    a("s_cmp_eq_u32 s28, 1"); a(f"s_cbranch_scc1 {t1}")
    a("s_cmp_eq_u32 s28, 2"); a(f"s_cbranch_scc1 {t2}")
    a("v_lshrrev_b32 v6, 1, v4"); a("v_lshlrev_b32 v6, 7, v6"); a("v_and_b32 v7, 1, v4"); a("v_lshl_add_u32 v6, v7, 2, v6")
    a("v_lshl_add_u32 v6, v6, 2, v5")
    for r in range(4): a(f"ds_write_b32 v6, v{20+r} offset:{KD_OFF+4*r}")
    a(f"s_branch {done}")
    a.label(t1)
    a("v_lshlrev_b32 v6, 7, v4"); a("v_add_u32 v6, 256, v6")
    a("v_lshlrev_b32 v7, 8, v4")
    a("v_cmp_gt_u32 vcc, 2, v4")
    a("s_nop 1")
    for r in range(4):
        a(f"v_add_u32 v8, {2*r}, v6")
        a(f"v_add_u32 v9, {128*(r//2)+4*(r%2)}, v7")
        a("v_cndmask_b32 v8, v9, v8, vcc")
        a("v_lshl_add_u32 v8, v8, 2, v5")
        a(f"ds_write_b32 v8, v{20+r} offset:{KD_OFF}")
    a(f"s_branch {done}")
    a.label(t2)
    a("v_lshlrev_b32 v6, 9, v4"); a("v_add_u32 v6, 1024, v6")
    for r in range(4):
        a(f"v_add_u32 v8, {128*r}, v6")
        a("v_min_u32 v8, 2176, v8")
        a("v_lshl_add_u32 v8, v8, 2, v5")
        a(f"ds_write_b32 v8, v{20+r} offset:{KD_OFF}")
    a.label(done)
    a.label(skip)
    a("s_waitcnt lgkmcnt(0)")
    a("s_barrier")
    a("v_lshl_add_u32 v18, v17, 6, v1")
    a("v_lshlrev_b32 v19, 3, v18")
    a("v_sub_u32 v19, 2047, v19")
    for e in range(8):
        a(f"v_subrev_u32 v4, {e}, v19")
        a("v_cvt_f32_u32 v4, v4")
        a("v_cvt_pk_bf16_f32 v4, v4, v4")
        a("v_lshlrev_b32 v4, 16, v4")
        a("v_cvt_u32_f32 v4, v4")
        a("v_lshl_add_u32 v4, v4, 2, v16")
        a(f"ds_read_b32 v{20+e}, v4 offset:{KD_OFF}")
    a(f"v_mul_u32_u24 v5, {KRP}, v2")
    a("v_lshl_add_u32 v5, v18, 4, v5")
    a("s_waitcnt lgkmcnt(0)")
    for e in range(4):
        a(f"v_cvt_pk_bf16_f32 v{28+e}, v{20+2*e}, v{21+2*e}")
    a("buffer_store_dwordx4 v[28:31], v5, s[44:47], 0 offen")
    a("v_mov_b32 v32, 0"); a("v_mov_b32 v33, 0"); a("v_mov_b32 v34, 0"); a("v_mov_b32 v35, 0")
    a("v_cmp_gt_u32 vcc, 8, v18")
    a("s_and_saveexec_b64 s[48:49], vcc")
    skipz=a.newlabel("kg_z")
    a(f"s_cbranch_execz {skipz}")
    a("s_mov_b32 s28, 4096")
    a("buffer_store_dwordx4 v[32:35], v5, s[44:47], s28 offen")
    a.label(skipz)
    rt_end(a,0)

def ka(name):
    a=Asm()
    a.label(name)
    if RT: a("s_memrealtime s[90:91]")
    a("""
    s_load_dwordx16 s[64:79], s[0:1], 0
    s_load_dwordx2 s[80:81], s[0:1], 64
    s_load_dwordx2 s[82:83], s[0:1], 88
    s_load_dwordx2 s[84:85], s[0:1], 72
    s_load_dwordx2 s[6:7], s[0:1], 96
    s_waitcnt lgkmcnt(0)
    s_mov_b32 s4, s64
    s_mov_b32 s5, s65
    """)
    a(f"s_cmp_ge_u32 s2, {G1_WGS+KG_WGS+LN_WGS}")
    a(f"s_cbranch_scc1 {name}_exit")
    a(f"s_cmp_ge_u32 s2, {G1_WGS+KG_WGS}")
    a(f"s_cbranch_scc1 {name}_ln")
    a(f"s_cmp_ge_u32 s2, {G1_WGS}")
    a(f"s_cbranch_scc1 {name}_kgen")
    if 'g1' in DIS: a("s_endpgm")
    gemm1_role(a)
    a.label(f"{name}_kgen")
    if 'kgen' in DIS: a("s_endpgm")
    kgen_role(a)
    a.label(f"{name}_ln")
    if 'ln' in DIS: a("s_endpgm")
    ln_role(a)
    a.label(f"{name}_exit")
    a("s_endpgm")
    return a.text()
```

```python
from asm import *
from ka import *

G2_WGS=224
CONV_WGS=224
KB_LDS=81920
RP=272
CS=4160; KC_SZ=8*CS; XB_SZ=95*80; CH_SZ=KC_SZ+XB_SZ

RT=os.environ.get('RT','')
def rt_end(a, kid):
    if RT:
        a("s_waitcnt vmcnt(0) lgkmcnt(0)")
        a("s_memrealtime s[92:93]")
        a("s_mov_b64 exec, -1")
        a("s_waitcnt lgkmcnt(0)")
        a(f"s_add_u32 s96, s6, {0x1100000+kid*0x10000}")
        a("s_addc_u32 s97, s7, 0")
        a("s_mov_b32 s98, 0x10000")
        a("s_mov_b32 s99, 0x00020000")
        a("s_lshl_b32 s94, s2, 5")
        a("v_mov_b32 v4, s90\nv_mov_b32 v5, s91\nv_mov_b32 v6, s92\nv_mov_b32 v7, s93\nv_mov_b32 v8, s94")
        a("buffer_store_dwordx4 v[4:7], v8, s[96:99], 0 offen")
        a("s_nop 2")
        a("v_mov_b32 v4, s84\nv_mov_b32 v5, s85\nv_mov_b32 v6, s86\nv_mov_b32 v7, s87")
        a("buffer_store_dwordx4 v[4:7], v8, s[96:99], 0 offen offset:16")
    a("s_endpgm")

TS=os.environ.get('TS','')!=''
def ts(a, idx):
    if not TS: return
    a(f"s_memtime s[{60+2*idx}:{61+2*idx}]")
def ts_flush(a, n):
    if not TS: return
    a("s_waitcnt lgkmcnt(0)")
    ws_srd(a, 56, 0x1000000, 0x100000)
    a("s_lshl_b32 s80, s3, 8")
    a("v_lshrrev_b32 v160, 6, v0")
    a("v_lshlrev_b32 v160, 6, v160")
    a("v_add_u32 v160, s80, v160")
    for i in range(n):
        a(f"v_mov_b32 v162, s{60+2*i}")
        a(f"v_mov_b32 v163, s{61+2*i}")
        a(f"buffer_store_dwordx2 v[162:163], v160, s[56:59], 0 offen offset:{8*i}")
        a("s_nop 2")

def gemm2_role(a):
    ts(a,0)
    a("s_lshr_b32 s26, s3, 3")
    a("s_and_b32 s27, s3, 7")
    a("s_mul_hi_u32 s20, s26, 0x24924925")
    a("s_mul_i32 s21, s20, 7")
    a("s_sub_u32 s21, s26, s21")
    a("s_lshl_b32 s27, s27, 2")
    a("s_add_u32 s20, s20, s27")
    ws_srd(a, 8, H_OFF, H_SZ)
    ws_srd(a, 16, ST_OFF, XN_SZ)
    srd(a, 12, 68, 69, 1792*896)
    srd(a, 40, 64, 65, XN_SZ)
    srd(a, 44, 70, 71, XN_SZ)
    srd(a, 48, 72, 73, 256)
    a("""
    v_and_b32 v1, 63, v0
    v_lshrrev_b32 v2, 6, v0
    s_nop 0
    v_readfirstlane_b32 s22, v2
    """)
    a("""
    v_lshrrev_b32 v3, 3, v1
    v_lshl_add_u32 v3, v2, 4, v3
    s_lshl_b32 s23, s20, 6
    v_add_u32 v3, s23, v3
    v_mul_u32_u24 v3, 3584, v3
    v_and_b32 v4, 7, v1
    v_lshrrev_b32 v5, 4, v1
    v_xor_b32 v4, v4, v5
    v_lshl_add_u32 v3, v4, 4, v3       ; voffA i=0
    v_xor_b32 v4, 64, v3               ; voffA i=1
    v_lshrrev_b32 v5, 3, v1
    v_lshl_add_u32 v5, v2, 4, v5
    v_mul_u32_u24 v5, 896, v5
    v_bfe_u32 v6, v1, 2, 1
    v_bfe_u32 v7, v1, 4, 1
    v_xor_b32 v6, v6, v7
    v_and_b32 v7, 3, v1
    v_lshl_add_u32 v6, v6, 2, v7
    v_lshl_add_u32 v5, v6, 4, v5
    s_lshl_b32 s23, s21, 7
    v_add_u32 v5, s23, v5              ; voffB
    s_lshl_b32 s24, s22, 11            ; wave*2048
    """)
    NST=28; NBS=5; PS=17
    a("s_lshr_b32 s31, s3, 3")
    def issue(s):
        sl=(s%NBS)*16384
        a("s_lshl_b32 s26, s31, 7")
        a(f"s_mul_i32 s27, s31, {64*896}")
        for i in range(2):
            a(f"s_add_u32 m0, s24, {sl+i*1024}")
            a(f"s_add_u32 s25, s26, {i*8*3584}")
            a(f"buffer_load_dwordx4 v{3+i}, s[8:11], s25 offen lds")
            a.vm_issue(s)
        for i in range(2):
            a(f"s_add_u32 m0, s24, {sl+8192+i*1024}")
            a(f"s_add_u32 s25, s27, {i*8*896}")
            a(f"buffer_load_dwordx4 v5, s[12:15], s25 offen lds")
            a.vm_issue(s)
        a("s_add_u32 s31, s31, 1")
        a("s_cmp_eq_u32 s31, 28")
        a("s_cselect_b32 s31, 0, s31")
    for s in range(NBS): issue(s)
    a("""
    s_lshl_b32 s23, s20, 6
    v_add_u32 v22, s23, v1
    v_mul_u32_u24 v22, 896, v22
    v_lshl_add_u32 v22, v2, 5, v22
    s_lshl_b32 s23, s21, 7
    v_add_u32 v22, s23, v22
    buffer_load_dwordx4 v[24:27], v22, s[40:43], 0 offen
    buffer_load_dwordx4 v[28:31], v22, s[40:43], 0 offen offset:16
    """)
    a.vm_issue('x'); a.vm_issue('x')
    a("""
    v_and_b32 v8, 31, v1
    v_lshrrev_b32 v9, 5, v1
    v_lshlrev_b32 v12, 7, v8
    v_lshl_add_u32 v13, v2, 1, v9
    v_bfe_u32 v14, v8, 1, 3
    v_xor_b32 v13, v13, v14
    v_lshl_add_u32 v12, v13, 4, v12    ; vA
    v_add_u32 v13, 0x10000, v12
    v_bfe_u32 v14, v1, 2, 2            ; r
    v_lshl_add_u32 v15, v9, 3, v14
    v_lshl_add_u32 v15, v2, 4, v15
    v_lshlrev_b32 v15, 7, v15
    v_lshrrev_b32 v16, 1, v14
    v_lshl_add_u32 v15, v16, 6, v15
    v_bfe_u32 v16, v1, 4, 1
    v_lshl_add_u32 v15, v16, 5, v15
    v_and_b32 v16, 3, v1
    v_lshl_add_u32 v15, v16, 3, v15
    v_add_u32 v15, 8192, v15           ; vB0
    v_xor_b32 v16, 64, v15             ; vB1
    v_add_u32 v10, 0x10000, v15
    v_add_u32 v11, 0x10000, v16
    """)
    ACC=64
    for i in range(64): a(f"v_mov_b32 v{ACC+i}, 0")
    FAs=[32,128]; FBs=[40,136]
    a("""
    s_lshl_b32 s23, s21, 6
    v_lshlrev_b32 v17, 4, v2
    v_add_u32 v17, s23, v17
    v_lshlrev_b32 v17, 12, v17
    v_lshl_add_u32 v17, v1, 1, v17
    s_lshl_b32 s23, s20, 7
    v_add_u32 v17, s23, v17
    s_lshl_b32 s23, s21, 2
    v_mov_b32 v19, s23
    """)
    def reads(s):
        b=s%NBS; hi=(b==4); off=b*16384-(0x10000 if hi else 0)
        FA=FAs[s&1]; FB=FBs[s&1]
        for mt in range(2):
            r=FA+4*mt
            a(f"ds_read_b128 v[{r}:{r+3}], v{13 if hi else 12} offset:{off+mt*4096}")
        for nt in range(2):
            for i in range(2):
                r=FB+4*nt+2*i
                a(f"ds_read_b64_tr_b16 v[{r}:{r+1}], v{(10+nt) if hi else (15+nt)} offset:{off+4*i*128}")
    a.vm_wait(0)
    a("s_barrier")
    ts(a,1)
    if RT: a("s_memrealtime s[84:85]")
    reads(0)
    for s in range(NST):
        FA=FAs[s&1]; FB=FBs[s&1]
        if s+1<NST and a.vm_has(s+1): a.vm_wait(s+1)
        a("s_waitcnt lgkmcnt(0)")
        a("s_barrier")
        if s==4: ts(a,2)
        if s==16: ts(a,3)
        def fill():
            if s+NBS<NST: issue(s+NBS)
            if s+1<NST: reads(s+1)
        def prim():
            for mt in range(2):
                for nt in range(2):
                    acc=ACC+16*(2*mt+nt)
                    ra=FA+4*mt; rb=FB+4*nt
                    a(f"v_mfma_f32_32x32x16_bf16 v[{acc}:{acc+15}], v[{rb}:{rb+3}], v[{ra}:{ra+3}], v[{acc}:{acc+15}]")
        interleave(a, capture(a,prim), capture(a,fill))
        if s==NST-1:
            lp=a.newlabel("g2_poll"); ld=a.newlabel("g2_pd")
            if RT: a("s_memrealtime s[86:87]")
            lgo=a.newlabel("g2_go"); lw=a.newlabel("g2_w")
            a("s_cmp_lg_u32 s22, 0")
            a(f"s_cbranch_scc1 {lw}")
            a.label(lp)
            a("buffer_load_dword v18, v19, s[48:51], 0 offen sc1")
            a("s_waitcnt vmcnt(0)")
            a("v_readfirstlane_b32 s23, v18")
            a("s_nop 3")
            a(f"s_cmp_ge_u32 s23, {0 if 'conv' in DIS else 32}")
            a(f"s_cbranch_scc1 {lw}")
            a("s_sleep 16")
            a(f"s_branch {lp}")
            a.label(lw)
            a("s_barrier")
            for j in range(16):
                a(f"s_mov_b32 s25, {j*4096}")
                a(f"buffer_load_ushort v{144+j}, v17, s[16:19], s25 offen sc1")
            a.label(ld)
            a.vm_clear()
    ts(a,4)
    a("s_nop 15")
    a("s_barrier")
    ts(a,5)
    a(f"v_mul_u32_u24 v20, {64*RP}, v2")
    a(f"v_mul_u32_u24 v21, {RP}, v8")
    a("v_add_u32 v20, v20, v21")
    a("v_lshl_add_u32 v20, v9, 4, v20")
    for mt in range(2):
        for nt in range(2):
            acc=ACC+16*(2*mt+nt)
            for q in range(4):
                a(f"ds_write_b128 v20, v[{acc+4*q}:{acc+4*q+3}] offset:{mt*32*RP+nt*128+q*32}")
    a("s_waitcnt lgkmcnt(0)")
    a("s_barrier")
    a(f"v_mul_u32_u24 v20, {RP}, v1")
    a("v_lshl_add_u32 v20, v2, 6, v20")
    for wv in range(4):
        for j in range(4):
            r=64+16*wv+4*j
            a(f"ds_read_b128 v[{r}:{r+3}], v20 offset:{wv*64*RP+j*16}")
    a("s_waitcnt lgkmcnt(0)")
    for i in range(16):
        a(f"v_add_f32 v{64+i}, v{64+i}, v{80+i}")
        a(f"v_add_f32 v{96+i}, v{96+i}, v{112+i}")
        a(f"v_add_f32 v{64+i}, v{64+i}, v{96+i}")
    NL2E=hex(f2u(-1.4426950408889634))
    for p in range(8):
        m0,m1=64+2*p,65+2*p
        a(f"v_cvt_pk_bf16_f32 v4, v{m0}, v{m1}")
        a("v_lshlrev_b32 v5, 16, v4")
        a("v_and_b32 v6, 0xffff0000, v4")
        a(f"v_mul_f32 v7, {NL2E}, v5")
        a(f"v_mul_f32 v10, {NL2E}, v6")
        a("v_exp_f32 v7, v7")
        a("v_exp_f32 v10, v10")
        a("s_nop 0")
        a("v_add_f32 v7, 1.0, v7")
        a("v_add_f32 v10, 1.0, v10")
        a("v_rcp_f32 v7, v7")
        a("v_rcp_f32 v10, v10")
        a("s_nop 0")
        a("v_mul_f32 v5, v5, v7")
        a("v_mul_f32 v6, v6, v10")
        a("v_cvt_pk_bf16_f32 v4, v5, v6")
        a("v_lshlrev_b32 v5, 16, v4")
        a("v_and_b32 v6, 0xffff0000, v4")
        if p==0: a("s_waitcnt vmcnt(0)")
        a(f"v_lshlrev_b32 v7, 16, v{144+2*p}")
        a(f"v_lshlrev_b32 v10, 16, v{145+2*p}")
        a("v_mul_f32 v5, v5, v7")
        a("v_mul_f32 v6, v6, v10")
        a("v_cvt_pk_bf16_f32 v4, v5, v6")
        a("v_lshlrev_b32 v5, 16, v4")
        a("v_and_b32 v6, 0xffff0000, v4")
        a(f"v_lshlrev_b32 v7, 16, v{24+p}")
        a(f"v_and_b32 v10, 0xffff0000, v{24+p}")
        a("v_add_f32 v5, v5, v7")
        a("v_add_f32 v6, v6, v10")
        a(f"v_cvt_pk_bf16_f32 v{48+p}, v5, v6")
    a("buffer_store_dwordx4 v[48:51], v22, s[44:47], 0 offen")
    a("buffer_store_dwordx4 v[52:55], v22, s[44:47], 0 offen offset:16")
    a("s_waitcnt vmcnt(0)")
    ts(a,6)
    ts_flush(a,7)
    rt_end(a,1)

def conv_role(a):
    a("s_setprio 2")
    ws_srd(a, 8, KR_OFF, KR_SZ)
    ws_srd(a, 12, XNT_OFF, XN_SZ)
    ws_srd(a, 16, ST_OFF, XN_SZ)
    srd(a, 20, 66, 67, 448*2)
    srd(a, 48, 72, 73, 256)
    a("""
    v_lshrrev_b32 v1, 7, v0            ; chsel
    v_and_b32 v2, 127, v0              ; tau
    s_lshl_b32 s24, s3, 1
    v_add_u32 v3, s24, v1              ; channel d
    """)
    a(f"v_mul_u32_u24 v4, {KRP}, v3")
    a("v_lshl_add_u32 v4, v2, 4, v4")
    a("v_lshlrev_b32 v5, 12, v3")
    a("v_lshl_add_u32 v5, v2, 4, v5")
    a("v_lshlrev_b32 v6, 1, v3")
    a("buffer_load_dwordx4 v[16:19], v4, s[8:11], 0 offen")
    a("buffer_load_dwordx4 v[20:23], v4, s[8:11], 0 offen offset:16")
    a("buffer_load_dwordx4 v[24:27], v4, s[8:11], 0 offen offset:2048")
    a("buffer_load_dwordx4 v[28:31], v4, s[8:11], 0 offen offset:2064")
    a("buffer_load_dwordx4 v[32:35], v5, s[12:15], 0 offen")
    a("buffer_load_dwordx4 v[36:39], v5, s[12:15], 0 offen offset:2048")
    a("buffer_load_ushort v7, v6, s[20:23], 0 offen")
    a(f"v_mul_u32_u24 v8, {CH_SZ}, v1")
    a("v_lshl_add_u32 v9, v2, 4, v8")
    a("v_mov_b32 v40, 0\nv_mov_b32 v41, 0\nv_mov_b32 v42, 0\nv_mov_b32 v43, 0")
    a(f"ds_write_b128 v9, v[40:43] offset:{KC_SZ}")
    a("v_cmp_gt_u32 vcc, 27, v2")
    a("s_and_saveexec_b64 s[26:27], vcc")
    a(f"ds_write_b128 v9, v[40:43] offset:{KC_SZ+2048}")
    a("s_mov_b64 exec, s[26:27]")
    a("v_lshrrev_b32 v10, 2, v2")
    a(f"v_mul_u32_u24 v10, {CS}, v10")
    a("v_and_b32 v11, 3, v2")
    a("v_lshl_add_u32 v10, v11, 4, v10")
    a("v_add_u32 v10, v10, v8")
    a("v_cmp_gt_u32 vcc, 32, v2")
    a("s_and_saveexec_b64 s[26:27], vcc")
    a("ds_write_b128 v10, v[40:43] offset:4096")
    a("s_mov_b64 exec, s[26:27]")
    a("v_lshrrev_b32 v10, 2, v2")
    a("v_mul_u32_u24 v10, 80, v10")
    a("v_lshl_add_u32 v10, v11, 4, v10")
    a("v_add_u32 v10, v10, v8")
    a("s_waitcnt vmcnt(0)")
    a(f"ds_write_b128 v10, v[32:35] offset:{KC_SZ+31*80}")
    a(f"ds_write_b128 v10, v[36:39] offset:{KC_SZ+31*80+32*80}")
    for half in range(2):
        D=16+8*half
        E=44; D1=52; E1=60
        for k in range(7): a(f"v_alignbit_b32 v{E+k}, v{D+k+1}, v{D+k}, 16")
        for k in range(6): a(f"v_mov_b32 v{D1+k}, v{D+k+1}")
        for k in range(6): a(f"v_alignbit_b32 v{E1+k}, v{D+k+2}, v{D+k+1}, 16")
        src={0:D,4:D+2,2:D1,6:D1+2,1:E,5:E+2,3:E1,7:E1+2}
        for c in range(8):
            a(f"ds_write_b128 v9, v[{src[c]}:{src[c]+3}] offset:{c*CS+half*2048}")
    a("v_lshlrev_b32 v7, 16, v7")
    a("s_waitcnt lgkmcnt(0)")
    a("s_barrier")
    a("""
    v_and_b32 v10, 63, v0
    v_and_b32 v11, 31, v10
    v_lshrrev_b32 v12, 5, v10
    v_sub_u32 v13, 7, v11
    v_and_b32 v13, 7, v13
    """)
    a(f"v_mul_u32_u24 v13, {CS}, v13")
    a("v_lshl_add_u32 v13, v12, 4, v13")
    a("v_lshrrev_b32 v14, 3, v11")
    a("v_lshlrev_b32 v14, 4, v14")
    a("v_sub_u32 v13, v13, v14")
    a("v_add_u32 v13, 48, v13")
    a("v_add_u32 v13, v13, v8")
    a("v_mul_u32_u24 v14, 80, v11")
    a("v_lshl_add_u32 v14, v12, 4, v14")
    a(f"v_add_u32 v14, {KC_SZ}, v14")
    a("v_add_u32 v14, v14, v8")
    ACC0=64; ACC1=80
    for i in range(32): a(f"v_mov_b32 v{64+i}, 0")
    a("v_lshrrev_b32 v15, 6, v0")
    a("v_and_b32 v15, 1, v15")
    a("s_nop 0")
    a("v_readfirstlane_b32 s25, v15")
    lB=a.newlabel("cv_B"); lJ=a.newlabel("cv_J")
    a("s_nop 3")
    a("s_cmp_eq_u32 s25, 1")
    a(f"s_cbranch_scc1 {lB}")
    def mainloop(units):
        NS=3
        def issue(u):
            delta,hs=units[u]; base=96+24*(u%NS); n=0
            for q in range(2):
                a(f"ds_read_b128 v[{base+4*q}:{base+4*q+3}], v13 offset:{64*(63-delta)+32*q}"); n+=1
            for hi,h in enumerate(hs):
                for q in range(2):
                    r=base+8+8*hi+4*q
                    a(f"ds_read_b128 v[{r}:{r+3}], v14 offset:{80*(31+32*h-delta)+32*q}"); n+=1
            return n
        cnt=[]
        for u in range(min(NS-1,len(units))): cnt.append(issue(u))
        for u in range(len(units)):
            if u+NS-1<len(units): cnt.append(issue(u+NS-1))
            rem=sum(cnt[u+1:])
            a(f"s_waitcnt lgkmcnt({min(rem,15)})")
            delta,hs=units[u]; base=96+24*(u%NS)
            for q in range(2):
                for hi,h in enumerate(hs):
                    acc=ACC0 if h==0 else ACC1
                    r=base+8+8*hi+4*q
                    a(f"v_mfma_f32_32x32x16_bf16 v[{acc}:{acc+15}], v[{base+4*q}:{base+4*q+3}], v[{r}:{r+3}], v[{acc}:{acc+15}]")
    mainloop([(d,[0,1]) for d in range(16)]+[(d,[0]) for d in range(16,32)])
    a(f"s_branch {lJ}")
    a.label(lB)
    mainloop([(d,[1]) for d in range(16,64)])
    a.label(lJ)
    a("s_nop 15")
    a("s_barrier")
    a("v_lshl_add_u32 v15, v10, 4, v8")
    lB2=a.newlabel("cv_B2"); lJ2=a.newlabel("cv_J2")
    a("s_cmp_eq_u32 s25, 1")
    a(f"s_cbranch_scc1 {lB2}")
    for i in range(4): a(f"ds_write_b128 v15, v[{ACC1+4*i}:{ACC1+4*i+3}] offset:{i*1024}")
    a("s_waitcnt lgkmcnt(0)")
    a.label(lB2)
    a("s_barrier")
    a("s_cmp_eq_u32 s25, 0")
    a(f"s_cbranch_scc1 {lJ2}")
    for i in range(4): a(f"ds_read_b128 v[{96+4*i}:{96+4*i+3}], v15 offset:{i*1024}")
    a("s_waitcnt lgkmcnt(0)")
    for i in range(16): a(f"v_add_f32 v{ACC0+i}, v{ACC1+i}, v{96+i}")
    a.label(lJ2)
    a("v_lshlrev_b32 v16, 3, v12")
    a("v_sub_u32 v16, v14, v16")
    a("s_mul_i32 s26, s25, 2560")
    a("v_add_u32 v16, s26, v16")
    for rq in range(4): a(f"ds_read_b64 v[{96+2*rq}:{97+2*rq}], v16 offset:{80*31+16*rq}")
    a("v_lshlrev_b32 v17, 12, v3")
    a("v_lshl_add_u32 v17, v11, 6, v17")
    a("v_lshl_add_u32 v17, v12, 3, v17")
    a("s_lshl_b32 s26, s25, 11")
    a("v_add_u32 v17, s26, v17")
    a("s_waitcnt lgkmcnt(0)")
    for rq in range(4):
        for p in range(2):
            x=96+2*rq+p
            y0=ACC0+4*rq+2*p
            a(f"v_lshlrev_b32 v20, 16, v{x}")
            a(f"v_and_b32 v21, 0xffff0000, v{x}")
            a("v_mul_f32 v20, v20, v7")
            a("v_mul_f32 v21, v21, v7")
            a("v_cvt_pk_bf16_f32 v22, v20, v21")
            a(f"v_cvt_pk_bf16_f32 v23, v{y0}, v{y0+1}")
            a("v_lshlrev_b32 v20, 16, v22")
            a("v_and_b32 v21, 0xffff0000, v22")
            a("v_lshlrev_b32 v24, 16, v23")
            a("v_and_b32 v25, 0xffff0000, v23")
            a("v_add_f32 v20, v20, v24")
            a("v_add_f32 v21, v21, v25")
            a(f"v_cvt_pk_bf16_f32 v{26+2*(rq&1)+p}, v20, v21")
        a(f"buffer_store_dwordx2 v[{26+2*(rq&1)}:{27+2*(rq&1)}], v17, s[16:19], 0 offen offset:{16*rq} sc1")
    a("s_waitcnt vmcnt(0)")
    a("s_barrier")
    le=a.newlabel("cv_e")
    a("v_cmp_eq_u32 vcc, 0, v0")
    a("s_and_saveexec_b64 s[26:27], vcc")
    a(f"s_cbranch_execz {le}")
    a("s_lshr_b32 s26, s3, 5")
    a("s_lshl_b32 s26, s26, 2")
    a("v_mov_b32 v20, s26")
    a("v_mov_b32 v21, 1")
    a("buffer_atomic_add v21, v20, s[48:51], 0 offen")
    a.label(le)
    rt_end(a,1)

def kb(name):
    a=Asm()
    a.label(name)
    if RT: a("s_memrealtime s[90:91]")
    a("""
    s_load_dwordx2 s[64:65], s[0:1], 0
    s_load_dwordx2 s[66:67], s[0:1], 48
    s_load_dwordx8 s[68:75], s[0:1], 72
    s_waitcnt lgkmcnt(0)
    s_mov_b32 s6, s74
    s_mov_b32 s7, s75
    """)
    a(f"s_cmp_ge_u32 s2, {G2_WGS+CONV_WGS}")
    a(f"s_cbranch_scc1 {name}_exit")
    a("s_mov_b32 s3, s2")
    a(f"s_cmp_lt_u32 s2, {G2_WGS}")
    a(f"s_cbranch_scc1 {name}_g2")
    a(f"s_sub_u32 s3, s2, {G2_WGS}")
    a(f"s_branch {name}_conv")
    a.label(f"{name}_g2")
    if 'g2' in DIS: a("s_endpgm")
    gemm2_role(a)
    a.label(f"{name}_conv")
    if 'conv' in DIS: a("s_endpgm")
    conv_role(a)
    a.label(f"{name}_exit")
    a("s_endpgm")
    return a.text()
```

```python
import sys
from asm import *
import ka as KA, kb as KB
NAME="recurrent_scan__ssm_conv_s4d__dense_activation_relu__prompt"
hdr=open(f"cdna_kernels/{NAME}.s.ref").read().split("; Override launch geometry")[0]
s=hdr
s+=f"; @launch kernel=ka_kernel grid=({KA.G1_WGS+KA.KG_WGS+KA.LN_WGS},1,1) block=(512,1,1) lds={KA.KA_LDS}\n"
s+=f"; @launch kernel=kb_kernel grid=({KB.G2_WGS+KB.CONV_WGS},1,1) block=(256,1,1) lds={KB.KB_LDS}\n"
s+='.amdgcn_target "amdgcn-amd-amdhsa--gfx950"\n.text\n'
for n,f in (("ka_kernel",KA.ka),("kb_kernel",KB.kb)):
    s+=f".globl {n}\n.p2align 8\n.type {n},@function\n"+f(n)
s+='.section .rodata,"a"\n.p2align 6\n'
s+=kdesc("ka_kernel",128)+kdesc("kb_kernel",168)
out=sys.argv[1] if len(sys.argv)>1 else f"cdna_kernels/{NAME}.s"
open(out,"w").write(s)
print("wrote",out,len(s))
```

```python
from asm import *
from ka import *

G2_WGS=224
CONV_WGS=224
KB_LDS=81920
RP=272
CS=4160; KC_SZ=8*CS; XB_SZ=95*80; CH_SZ=KC_SZ+XB_SZ

RT=os.environ.get('RT','')
def rt_end(a, kid):
    if RT:
        a("s_waitcnt vmcnt(0) lgkmcnt(0)")
        a("s_memrealtime s[92:93]")
        a("s_mov_b64 exec, -1")
        a("s_waitcnt lgkmcnt(0)")
        a(f"s_add_u32 s96, s6, {0x1100000+kid*0x10000}")
        a("s_addc_u32 s97, s7, 0")
        a("s_mov_b32 s98, 0x10000")
        a("s_mov_b32 s99, 0x00020000")
        a("s_lshl_b32 s94, s2, 5")
        a("v_mov_b32 v4, s90\nv_mov_b32 v5, s91\nv_mov_b32 v6, s92\nv_mov_b32 v7, s93\nv_mov_b32 v8, s94")
        a("buffer_store_dwordx4 v[4:7], v8, s[96:99], 0 offen")
        a("s_nop 2")
        a("v_mov_b32 v4, s84\nv_mov_b32 v5, s85\nv_mov_b32 v6, s86\nv_mov_b32 v7, s87")
        a("buffer_store_dwordx4 v[4:7], v8, s[96:99], 0 offen offset:16")
    a("s_endpgm")

TS=os.environ.get('TS','')!=''
def ts(a, idx):
    if not TS: return
    a(f"s_memtime s[{60+2*idx}:{61+2*idx}]")
def ts_flush(a, n):
    if not TS: return
    a("s_waitcnt lgkmcnt(0)")
    ws_srd(a, 56, 0x1000000, 0x100000)
    a("s_lshl_b32 s80, s3, 8")
    a("v_lshrrev_b32 v160, 6, v0")
    a("v_lshlrev_b32 v160, 6, v160")
    a("v_add_u32 v160, s80, v160")
    for i in range(n):
        a(f"v_mov_b32 v162, s{60+2*i}")
        a(f"v_mov_b32 v163, s{61+2*i}")
        a(f"buffer_store_dwordx2 v[162:163], v160, s[56:59], 0 offen offset:{8*i}")
        a("s_nop 2")

def gemm2_role(a):
    ts(a,0)
    a("s_lshr_b32 s26, s3, 3")
    a("s_and_b32 s27, s3, 7")
    a("s_mul_hi_u32 s20, s26, 0x24924925")
    a("s_mul_i32 s21, s20, 7")
    a("s_sub_u32 s21, s26, s21")
    a("s_lshl_b32 s27, s27, 2")
    a("s_add_u32 s20, s20, s27")
    ws_srd(a, 8, H_OFF, H_SZ)
    ws_srd(a, 16, ST_OFF, XN_SZ)
    srd(a, 12, 68, 69, 1792*896)
    srd(a, 40, 64, 65, XN_SZ)
    srd(a, 44, 70, 71, XN_SZ)
    srd(a, 48, 72, 73, 256)
    a("""
    v_and_b32 v1, 63, v0
    v_lshrrev_b32 v2, 6, v0
    s_nop 0
    v_readfirstlane_b32 s22, v2
    """)
    a("""
    v_lshrrev_b32 v3, 3, v1
    v_lshl_add_u32 v3, v2, 4, v3
    s_lshl_b32 s23, s20, 6
    v_add_u32 v3, s23, v3
    v_mul_u32_u24 v3, 3584, v3
    v_and_b32 v4, 7, v1
    v_lshrrev_b32 v5, 4, v1
    v_xor_b32 v4, v4, v5
    v_lshl_add_u32 v3, v4, 4, v3       ; voffA i=0
    v_xor_b32 v4, 64, v3               ; voffA i=1
    v_lshrrev_b32 v5, 3, v1
    v_lshl_add_u32 v5, v2, 4, v5
    v_mul_u32_u24 v5, 896, v5
    v_bfe_u32 v6, v1, 2, 1
    v_bfe_u32 v7, v1, 4, 1
    v_xor_b32 v6, v6, v7
    v_and_b32 v7, 3, v1
    v_lshl_add_u32 v6, v6, 2, v7
    v_lshl_add_u32 v5, v6, 4, v5
    s_lshl_b32 s23, s21, 7
    v_add_u32 v5, s23, v5              ; voffB
    s_lshl_b32 s24, s22, 11            ; wave*2048
    """)
    NST=28; NBS=5; PS=17
    a("s_lshr_b32 s31, s3, 3")
    def issue(s):
        sl=(s%NBS)*16384
        a("s_lshl_b32 s26, s31, 7")
        a(f"s_mul_i32 s27, s31, {64*896}")
        for i in range(2):
            a(f"s_add_u32 m0, s24, {sl+i*1024}")
            a(f"s_add_u32 s25, s26, {i*8*3584}")
            a(f"buffer_load_dwordx4 v{3+i}, s[8:11], s25 offen lds")
            a.vm_issue(s)
        for i in range(2):
            a(f"s_add_u32 m0, s24, {sl+8192+i*1024}")
            a(f"s_add_u32 s25, s27, {i*8*896}")
            a(f"buffer_load_dwordx4 v5, s[12:15], s25 offen lds")
            a.vm_issue(s)
        a("s_add_u32 s31, s31, 1")
        a("s_cmp_eq_u32 s31, 28")
        a("s_cselect_b32 s31, 0, s31")
    for s in range(NBS): issue(s)
    a("""
    s_lshl_b32 s23, s20, 6
    v_add_u32 v22, s23, v1
    v_mul_u32_u24 v22, 896, v22
    v_lshl_add_u32 v22, v2, 5, v22
    s_lshl_b32 s23, s21, 7
    v_add_u32 v22, s23, v22
    buffer_load_dwordx4 v[24:27], v22, s[40:43], 0 offen
    buffer_load_dwordx4 v[28:31], v22, s[40:43], 0 offen offset:16
    """)
    a.vm_issue('x'); a.vm_issue('x')
    a("""
    v_and_b32 v8, 31, v1
    v_lshrrev_b32 v9, 5, v1
    v_lshlrev_b32 v12, 7, v8
    v_lshl_add_u32 v13, v2, 1, v9
    v_bfe_u32 v14, v8, 1, 3
    v_xor_b32 v13, v13, v14
    v_lshl_add_u32 v12, v13, 4, v12    ; vA
    v_add_u32 v13, 0x10000, v12
    v_bfe_u32 v14, v1, 2, 2            ; r
    v_lshl_add_u32 v15, v9, 3, v14
    v_lshl_add_u32 v15, v2, 4, v15
    v_lshlrev_b32 v15, 7, v15
    v_lshrrev_b32 v16, 1, v14
    v_lshl_add_u32 v15, v16, 6, v15
    v_bfe_u32 v16, v1, 4, 1
    v_lshl_add_u32 v15, v16, 5, v15
    v_and_b32 v16, 3, v1
    v_lshl_add_u32 v15, v16, 3, v15
    v_add_u32 v15, 8192, v15           ; vB0
    v_xor_b32 v16, 64, v15             ; vB1
    v_add_u32 v10, 0x10000, v15
    v_add_u32 v11, 0x10000, v16
    """)
    ACC=64
    for i in range(64): a(f"v_mov_b32 v{ACC+i}, 0")
    FAs=[32,128]; FBs=[40,136]
    a("""
    s_lshl_b32 s23, s21, 6
    v_lshlrev_b32 v17, 4, v2
    v_add_u32 v17, s23, v17
    v_lshlrev_b32 v17, 12, v17
    v_lshl_add_u32 v17, v1, 1, v17
    s_lshl_b32 s23, s20, 7
    v_add_u32 v17, s23, v17
    s_lshl_b32 s23, s21, 2
    v_mov_b32 v19, s23
    """)
    def reads(s):
        b=s%NBS; hi=(b==4); off=b*16384-(0x10000 if hi else 0)
        FA=FAs[s&1]; FB=FBs[s&1]
        for mt in range(2):
            r=FA+4*mt
            a(f"ds_read_b128 v[{r}:{r+3}], v{13 if hi else 12} offset:{off+mt*4096}")
        for nt in range(2):
            for i in range(2):
                r=FB+4*nt+2*i
                a(f"ds_read_b64_tr_b16 v[{r}:{r+1}], v{(10+nt) if hi else (15+nt)} offset:{off+4*i*128}")
    a.vm_wait(0)
    a("s_barrier")
    ts(a,1)
    if RT: a("s_memrealtime s[84:85]")
    reads(0)
    for s in range(NST):
        FA=FAs[s&1]; FB=FBs[s&1]
        if s+1<NST and a.vm_has(s+1): a.vm_wait(s+1)
        a("s_waitcnt lgkmcnt(0)")
        a("s_barrier")
        if s==4: ts(a,2)
        if s==16: ts(a,3)
        def fill():
            if s+NBS<NST: issue(s+NBS)
            if s+1<NST: reads(s+1)
        def prim():
            for mt in range(2):
                for nt in range(2):
                    acc=ACC+16*(2*mt+nt)
                    ra=FA+4*mt; rb=FB+4*nt
                    a(f"v_mfma_f32_32x32x16_bf16 v[{acc}:{acc+15}], v[{rb}:{rb+3}], v[{ra}:{ra+3}], v[{acc}:{acc+15}]")
        interleave(a, capture(a,prim), capture(a,fill))
        if s==NST-1:
            lp=a.newlabel("g2_poll"); ld=a.newlabel("g2_pd")
            if RT: a("s_memrealtime s[86:87]")
            lgo=a.newlabel("g2_go"); lw=a.newlabel("g2_w")
            a("s_cmp_lg_u32 s22, 0")
            a(f"s_cbranch_scc1 {lw}")
            a.label(lp)
            a("buffer_load_dword v18, v19, s[48:51], 0 offen sc1")
            a("s_waitcnt vmcnt(0)")
            a("v_readfirstlane_b32 s23, v18")
            a("s_nop 3")
            a(f"s_cmp_ge_u32 s23, {0 if 'conv' in DIS else 32}")
            a(f"s_cbranch_scc1 {lw}")
            a("s_sleep 16")
            a(f"s_branch {lp}")
            a.label(lw)
            a("s_barrier")
            for j in range(16):
                a(f"s_mov_b32 s25, {j*4096}")
                a(f"buffer_load_ushort v{144+j}, v17, s[16:19], s25 offen sc1")
            a.label(ld)
            a.vm_clear()
    ts(a,4)
    a("s_nop 15")
    a("s_barrier")
    ts(a,5)
    a(f"v_mul_u32_u24 v20, {64*RP}, v2")
    a(f"v_mul_u32_u24 v21, {RP}, v8")
    a("v_add_u32 v20, v20, v21")
    a("v_lshl_add_u32 v20, v9, 4, v20")
    for mt in range(2):
        for nt in range(2):
            acc=ACC+16*(2*mt+nt)
            for q in range(4):
                a(f"ds_write_b128 v20, v[{acc+4*q}:{acc+4*q+3}] offset:{mt*32*RP+nt*128+q*32}")
    a("s_waitcnt lgkmcnt(0)")
    a("s_barrier")
    a(f"v_mul_u32_u24 v20, {RP}, v1")
    a("v_lshl_add_u32 v20, v2, 6, v20")
    for wv in range(4):
        for j in range(4):
            r=64+16*wv+4*j
            a(f"ds_read_b128 v[{r}:{r+3}], v20 offset:{wv*64*RP+j*16}")
    a("s_waitcnt lgkmcnt(0)")
    for i in range(16):
        a(f"v_add_f32 v{64+i}, v{64+i}, v{80+i}")
        a(f"v_add_f32 v{96+i}, v{96+i}, v{112+i}")
        a(f"v_add_f32 v{64+i}, v{64+i}, v{96+i}")
    NL2E=hex(f2u(-1.4426950408889634))
    for p in range(8):
        m0,m1=64+2*p,65+2*p
        a(f"v_cvt_pk_bf16_f32 v4, v{m0}, v{m1}")
        a("v_lshlrev_b32 v5, 16, v4")
        a("v_and_b32 v6, 0xffff0000, v4")
        a(f"v_mul_f32 v7, {NL2E}, v5")
        a(f"v_mul_f32 v10, {NL2E}, v6")
        a("v_exp_f32 v7, v7")
        a("v_exp_f32 v10, v10")
        a("s_nop 0")
        a("v_add_f32 v7, 1.0, v7")
        a("v_add_f32 v10, 1.0, v10")
        a("v_rcp_f32 v7, v7")
        a("v_rcp_f32 v10, v10")
        a("s_nop 0")
        a("v_mul_f32 v5, v5, v7")
        a("v_mul_f32 v6, v6, v10")
        a("v_cvt_pk_bf16_f32 v4, v5, v6")
        a("v_lshlrev_b32 v5, 16, v4")
        a("v_and_b32 v6, 0xffff0000, v4")
        if p==0: a("s_waitcnt vmcnt(0)")
        a(f"v_lshlrev_b32 v7, 16, v{144+2*p}")
        a(f"v_lshlrev_b32 v10, 16, v{145+2*p}")
        a("v_mul_f32 v5, v5, v7")
        a("v_mul_f32 v6, v6, v10")
        a("v_cvt_pk_bf16_f32 v4, v5, v6")
        a("v_lshlrev_b32 v5, 16, v4")
        a("v_and_b32 v6, 0xffff0000, v4")
        a(f"v_lshlrev_b32 v7, 16, v{24+p}")
        a(f"v_and_b32 v10, 0xffff0000, v{24+p}")
        a("v_add_f32 v5, v5, v7")
        a("v_add_f32 v6, v6, v10")
        a(f"v_cvt_pk_bf16_f32 v{48+p}, v5, v6")
    a("buffer_store_dwordx4 v[48:51], v22, s[44:47], 0 offen")
    a("buffer_store_dwordx4 v[52:55], v22, s[44:47], 0 offen offset:16")
    a("s_waitcnt vmcnt(0)")
    ts(a,6)
    ts_flush(a,7)
    rt_end(a,1)

def conv_role(a):
    a("s_setprio 2")
    ws_srd(a, 8, KR_OFF, KR_SZ)
    ws_srd(a, 12, XNT_OFF, XN_SZ)
    ws_srd(a, 16, ST_OFF, XN_SZ)
    srd(a, 20, 66, 67, 448*2)
    srd(a, 48, 72, 73, 256)
    a("""
    v_lshrrev_b32 v1, 7, v0            ; chsel
    v_and_b32 v2, 127, v0              ; tau
    s_lshl_b32 s24, s3, 1
    v_add_u32 v3, s24, v1              ; channel d
    """)
    a(f"v_mul_u32_u24 v4, {KRP}, v3")
    a("v_lshl_add_u32 v4, v2, 4, v4")
    a("v_lshlrev_b32 v5, 12, v3")
    a("v_lshl_add_u32 v5, v2, 4, v5")
    a("v_lshlrev_b32 v6, 1, v3")
    a("buffer_load_dwordx4 v[16:19], v4, s[8:11], 0 offen")
    a("buffer_load_dwordx4 v[20:23], v4, s[8:11], 0 offen offset:16")
    a("buffer_load_dwordx4 v[24:27], v4, s[8:11], 0 offen offset:2048")
    a("buffer_load_dwordx4 v[28:31], v4, s[8:11], 0 offen offset:2064")
    a("buffer_load_dwordx4 v[32:35], v5, s[12:15], 0 offen")
    a("buffer_load_dwordx4 v[36:39], v5, s[12:15], 0 offen offset:2048")
    a("buffer_load_ushort v7, v6, s[20:23], 0 offen")
    a(f"v_mul_u32_u24 v8, {CH_SZ}, v1")
    a("v_lshl_add_u32 v9, v2, 4, v8")
    a("v_mov_b32 v40, 0\nv_mov_b32 v41, 0\nv_mov_b32 v42, 0\nv_mov_b32 v43, 0")
    a(f"ds_write_b128 v9, v[40:43] offset:{KC_SZ}")
    a("v_cmp_gt_u32 vcc, 27, v2")
    a("s_and_saveexec_b64 s[26:27], vcc")
    a(f"ds_write_b128 v9, v[40:43] offset:{KC_SZ+2048}")
    a("s_mov_b64 exec, s[26:27]")
    a("v_lshrrev_b32 v10, 2, v2")
    a(f"v_mul_u32_u24 v10, {CS}, v10")
    a("v_and_b32 v11, 3, v2")
    a("v_lshl_add_u32 v10, v11, 4, v10")
    a("v_add_u32 v10, v10, v8")
    a("v_cmp_gt_u32 vcc, 32, v2")
    a("s_and_saveexec_b64 s[26:27], vcc")
    a("ds_write_b128 v10, v[40:43] offset:4096")
    a("s_mov_b64 exec, s[26:27]")
    a("v_lshrrev_b32 v10, 2, v2")
    a("v_mul_u32_u24 v10, 80, v10")
    a("v_lshl_add_u32 v10, v11, 4, v10")
    a("v_add_u32 v10, v10, v8")
    a("s_waitcnt vmcnt(0)")
    a(f"ds_write_b128 v10, v[32:35] offset:{KC_SZ+31*80}")
    a(f"ds_write_b128 v10, v[36:39] offset:{KC_SZ+31*80+32*80}")
    for half in range(2):
        D=16+8*half
        E=44; D1=52; E1=60
        for k in range(7): a(f"v_alignbit_b32 v{E+k}, v{D+k+1}, v{D+k}, 16")
        for k in range(6): a(f"v_mov_b32 v{D1+k}, v{D+k+1}")
        for k in range(6): a(f"v_alignbit_b32 v{E1+k}, v{D+k+2}, v{D+k+1}, 16")
        src={0:D,4:D+2,2:D1,6:D1+2,1:E,5:E+2,3:E1,7:E1+2}
        for c in range(8):
            a(f"ds_write_b128 v9, v[{src[c]}:{src[c]+3}] offset:{c*CS+half*2048}")
    a("v_lshlrev_b32 v7, 16, v7")
    a("s_waitcnt lgkmcnt(0)")
    a("s_barrier")
    a("""
    v_and_b32 v10, 63, v0
    v_and_b32 v11, 31, v10
    v_lshrrev_b32 v12, 5, v10
    v_sub_u32 v13, 7, v11
    v_and_b32 v13, 7, v13
    """)
    a(f"v_mul_u32_u24 v13, {CS}, v13")
    a("v_lshl_add_u32 v13, v12, 4, v13")
    a("v_lshrrev_b32 v14, 3, v11")
    a("v_lshlrev_b32 v14, 4, v14")
    a("v_sub_u32 v13, v13, v14")
    a("v_add_u32 v13, 48, v13")
    a("v_add_u32 v13, v13, v8")
    a("v_mul_u32_u24 v14, 80, v11")
    a("v_lshl_add_u32 v14, v12, 4, v14")
    a(f"v_add_u32 v14, {KC_SZ}, v14")
    a("v_add_u32 v14, v14, v8")
    ACC0=64; ACC1=80
    for i in range(32): a(f"v_mov_b32 v{64+i}, 0")
    a("v_lshrrev_b32 v15, 6, v0")
    a("v_and_b32 v15, 1, v15")
    a("s_nop 0")
    a("v_readfirstlane_b32 s25, v15")
    lB=a.newlabel("cv_B"); lJ=a.newlabel("cv_J")
    a("s_nop 3")
    a("s_cmp_eq_u32 s25, 1")
    a(f"s_cbranch_scc1 {lB}")
    def mainloop(units):
        NS=3
        def issue(u):
            delta,hs=units[u]; base=96+24*(u%NS); n=0
            for q in range(2):
                a(f"ds_read_b128 v[{base+4*q}:{base+4*q+3}], v13 offset:{64*(63-delta)+32*q}"); n+=1
            for hi,h in enumerate(hs):
                for q in range(2):
                    r=base+8+8*hi+4*q
                    a(f"ds_read_b128 v[{r}:{r+3}], v14 offset:{80*(31+32*h-delta)+32*q}"); n+=1
            return n
        cnt=[]
        for u in range(min(NS-1,len(units))): cnt.append(issue(u))
        for u in range(len(units)):
            if u+NS-1<len(units): cnt.append(issue(u+NS-1))
            rem=sum(cnt[u+1:])
            a(f"s_waitcnt lgkmcnt({min(rem,15)})")
            delta,hs=units[u]; base=96+24*(u%NS)
            for q in range(2):
                for hi,h in enumerate(hs):
                    acc=ACC0 if h==0 else ACC1
                    r=base+8+8*hi+4*q
                    a(f"v_mfma_f32_32x32x16_bf16 v[{acc}:{acc+15}], v[{base+4*q}:{base+4*q+3}], v[{r}:{r+3}], v[{acc}:{acc+15}]")
    mainloop([(d,[0,1]) for d in range(16)]+[(d,[0]) for d in range(16,32)])
    a(f"s_branch {lJ}")
    a.label(lB)
    mainloop([(d,[1]) for d in range(16,64)])
    a.label(lJ)
    a("s_nop 15")
    a("s_barrier")
    a("v_lshl_add_u32 v15, v10, 4, v8")
    lB2=a.newlabel("cv_B2"); lJ2=a.newlabel("cv_J2")
    a("s_cmp_eq_u32 s25, 1")
    a(f"s_cbranch_scc1 {lB2}")
    for i in range(4): a(f"ds_write_b128 v15, v[{ACC1+4*i}:{ACC1+4*i+3}] offset:{i*1024}")
    a("s_waitcnt lgkmcnt(0)")
    a.label(lB2)
    a("s_barrier")
    a("s_cmp_eq_u32 s25, 0")
    a(f"s_cbranch_scc1 {lJ2}")
    for i in range(4): a(f"ds_read_b128 v[{96+4*i}:{96+4*i+3}], v15 offset:{i*1024}")
    a("s_waitcnt lgkmcnt(0)")
    for i in range(16): a(f"v_add_f32 v{ACC0+i}, v{ACC1+i}, v{96+i}")
    a.label(lJ2)
    a("v_lshlrev_b32 v16, 3, v12")
    a("v_sub_u32 v16, v14, v16")
    a("s_mul_i32 s26, s25, 2560")
    a("v_add_u32 v16, s26, v16")
    for rq in range(4): a(f"ds_read_b64 v[{96+2*rq}:{97+2*rq}], v16 offset:{80*31+16*rq}")
    a("v_lshlrev_b32 v17, 12, v3")
    a("v_lshl_add_u32 v17, v11, 6, v17")
    a("v_lshl_add_u32 v17, v12, 3, v17")
    a("s_lshl_b32 s26, s25, 11")
    a("v_add_u32 v17, s26, v17")
    a("s_waitcnt lgkmcnt(0)")
    for rq in range(4):
        for p in range(2):
            x=96+2*rq+p
            y0=ACC0+4*rq+2*p
            a(f"v_lshlrev_b32 v20, 16, v{x}")
            a(f"v_and_b32 v21, 0xffff0000, v{x}")
            a("v_mul_f32 v20, v20, v7")
            a("v_mul_f32 v21, v21, v7")
            a("v_cvt_pk_bf16_f32 v22, v20, v21")
            a(f"v_cvt_pk_bf16_f32 v23, v{y0}, v{y0+1}")
            a("v_lshlrev_b32 v20, 16, v22")
            a("v_and_b32 v21, 0xffff0000, v22")
            a("v_lshlrev_b32 v24, 16, v23")
            a("v_and_b32 v25, 0xffff0000, v23")
            a("v_add_f32 v20, v20, v24")
            a("v_add_f32 v21, v21, v25")
            a(f"v_cvt_pk_bf16_f32 v{26+2*(rq&1)+p}, v20, v21")
        a(f"buffer_store_dwordx2 v[{26+2*(rq&1)}:{27+2*(rq&1)}], v17, s[16:19], 0 offen offset:{16*rq} sc1")
    a("s_waitcnt vmcnt(0)")
    a("s_barrier")
    le=a.newlabel("cv_e")
    a("v_cmp_eq_u32 vcc, 0, v0")
    a("s_and_saveexec_b64 s[26:27], vcc")
    a(f"s_cbranch_execz {le}")
    a("s_lshr_b32 s26, s3, 5")
    a("s_lshl_b32 s26, s26, 2")
    a("v_mov_b32 v20, s26")
    a("v_mov_b32 v21, 1")
    a("buffer_atomic_add v21, v20, s[48:51], 0 offen")
    a.label(le)
    rt_end(a,1)

def kb(name):
    a=Asm()
    a.label(name)
    if RT: a("s_memrealtime s[90:91]")
    a("""
    s_load_dwordx2 s[64:65], s[0:1], 0
    s_load_dwordx2 s[66:67], s[0:1], 48
    s_load_dwordx8 s[68:75], s[0:1], 72
    s_waitcnt lgkmcnt(0)
    s_mov_b32 s6, s74
    s_mov_b32 s7, s75
    """)
    a(f"s_cmp_ge_u32 s2, {G2_WGS+CONV_WGS}")
    a(f"s_cbranch_scc1 {name}_exit")
    a("s_mov_b32 s3, s2")
    a(f"s_cmp_lt_u32 s2, {G2_WGS}")
    a(f"s_cbranch_scc1 {name}_g2")
    a(f"s_sub_u32 s3, s2, {G2_WGS}")
    a(f"s_branch {name}_conv")
    a.label(f"{name}_g2")
    if 'g2' in DIS: a("s_endpgm")
    gemm2_role(a)
    a.label(f"{name}_conv")
    if 'conv' in DIS: a("s_endpgm")
    conv_role(a)
    a.label(f"{name}_exit")
    a("s_endpgm")
    return a.text()


def kconv(name):
    a=Asm()
    a.label(name)
    a("""
    s_load_dwordx2 s[64:65], s[0:1], 0
    s_load_dwordx2 s[66:67], s[0:1], 48
    s_load_dwordx8 s[68:75], s[0:1], 72
    s_waitcnt lgkmcnt(0)
    s_mov_b32 s6, s74
    s_mov_b32 s7, s75
    """)
    a(f"s_cmp_ge_u32 s2, {CONV_WGS}")
    a(f"s_cbranch_scc1 {name}_exit")
    a("s_mov_b32 s3, s2")
    conv_role(a)
    a.label(f"{name}_exit")
    a("s_endpgm")
    return a.text()

def kg2(name):
    a=Asm()
    a.label(name)
    a("""
    s_load_dwordx2 s[64:65], s[0:1], 0
    s_load_dwordx2 s[66:67], s[0:1], 48
    s_load_dwordx8 s[68:75], s[0:1], 72
    s_waitcnt lgkmcnt(0)
    s_mov_b32 s6, s74
    s_mov_b32 s7, s75
    """)
    a(f"s_cmp_ge_u32 s2, {G2_WGS}")
    a(f"s_cbranch_scc1 {name}_exit")
    a("s_mov_b32 s3, s2")
    DIS.append('conv')
    gemm2_role(a)
    DIS.remove('conv')
    a.label(f"{name}_exit")
    a("s_endpgm")
    return a.text()
```

```python
import sys
from asm import *
import ka as KA, kb as KB
NAME="recurrent_scan__ssm_conv_s4d__dense_activation_relu__prompt"
hdr=open(f"cdna_kernels/{NAME}.s.ref").read().split("; Override launch geometry")[0]
s=hdr
s+=f"; @launch kernel=ka_kernel grid=({KA.G1_WGS+KA.KG_WGS+KA.LN_WGS},1,1) block=(512,1,1) lds={KA.KA_LDS}\n"
s+=f"; @launch kernel=kb_kernel grid=({KB.CONV_WGS},1,1) block=(256,1,1) lds={KB.KB_LDS}\n"
s+=f"; @launch kernel=kc_kernel grid=({KB.G2_WGS},1,1) block=(256,1,1) lds={KB.KB_LDS}\n"
s+='.amdgcn_target "amdgcn-amd-amdhsa--gfx950"\n.text\n'
for n,f in (("ka_kernel",KA.ka),("kb_kernel",KB.kconv),("kc_kernel",KB.kg2)):
    s+=f".globl {n}\n.p2align 8\n.type {n},@function\n"+f(n)
s+='.section .rodata,"a"\n.p2align 6\n'
s+=kdesc("ka_kernel",128)+kdesc("kb_kernel",168)+kdesc("kc_kernel",168)
out=sys.argv[1]
open(out,"w").write(s)
print("wrote",out,len(s))
```

```python
from asm import *
import ka as KA, kb as KB
from ka import *
from kb import CS,KC_SZ,XB_SZ,CH_SZ,RP

HEAD_A="""
    s_load_dwordx16 s[64:79], s[0:1], 0
    s_load_dwordx8 s[80:87], s[0:1], 64
    s_load_dwordx2 s[6:7], s[0:1], 96
    s_waitcnt lgkmcnt(0)
    s_mov_b32 s4, s64
    s_mov_b32 s5, s65
"""

def gemm1_256(a, exit_label):
    NST=14; NSL=10; NP=28
    ws_srd(a, 8, XN_OFF, XN_SZ)
    ws_srd(a, 16, H_OFF, H_SZ)
    srd(a, 12, 80, 81, 448*3584)
    srd(a, 44, 86, 87, 256)
    a("""
    v_and_b32 v1, 63, v0
    v_lshrrev_b32 v2, 6, v0
    s_nop 0
    v_readfirstlane_b32 s22, v2
    s_nop 3
    """)
    claim_tile(a, 44, 8, exit_label, 22)
    a("s_cmp_ge_u32 s26, 14")
    a("s_cselect_b32 s20, 1, 0")
    a("s_mul_i32 s21, s20, 14")
    a("s_sub_u32 s21, s26, s21")
    a("s_lshl_b32 s27, s27, 1")
    a("s_add_u32 s20, s20, s27")
    a("s_mov_b32 s29, s26")
    a("""
    v_lshrrev_b32 v3, 3, v1
    v_lshl_add_u32 v3, v2, 4, v3
    s_lshl_b32 s23, s20, 7
    v_add_u32 v3, s23, v3
    v_mul_u32_u24 v3, 896, v3
    v_and_b32 v4, 7, v1
    v_lshrrev_b32 v5, 4, v1
    v_xor_b32 v4, v4, v5
    v_lshl_add_u32 v3, v4, 4, v3       ; voffA i=0
    v_xor_b32 v4, 64, v3               ; voffA i=1  (896 = 7*128)
    v_bfe_u32 v6, v1, 4, 2
    v_lshrrev_b32 v5, 4, v1
    v_lshl_add_u32 v5, v2, 3, v5       ; krow = 8w + l/16 (+4i)
    v_mul_u32_u24 v5, 3584, v5
    v_bfe_u32 v7, v1, 2, 2
    v_xor_b32 v6, v6, v7
    v_and_b32 v7, 3, v1
    v_lshl_add_u32 v6, v6, 2, v7
    v_lshl_add_u32 v5, v6, 4, v5
    s_lshl_b32 s23, s21, 8
    v_add_u32 v5, s23, v5              ; voffB
    s_lshl_b32 s24, s22, 11
    """)
    a("s_mul_hi_u32 s30, s29, 0x24924925")
    a("s_mul_i32 s30, s30, 7")
    a("s_sub_u32 s31, s29, s30")
    for k in range(7):
        a(f"s_lshl_b32 s{32+k}, s31, 7")
        a("s_add_u32 s31, s31, 1")
        a("s_cmp_eq_u32 s31, 7")
        a("s_cselect_b32 s31, 0, s31")
    def issue(p):
        c=p//4; k=p%4; sl=p%NSL
        if k not in (1,2): a(f"s_mul_i32 s30, s{32+c}, 1792")
        for i in range(2):
            a(f"s_add_u32 m0, s24, {sl*8192+i*1024}")
            if k in (1,2):
                a(f"s_add_u32 s25, s{32+c}, {(k-1)*64*896+i*8*896}")
                a(f"buffer_load_dwordx4 v{3+i}, s[8:11], s25 offen lds")
            else:
                a(f"s_add_u32 s25, s30, {(32*3584 if k==3 else 0)+i*4*3584}")
                a(f"buffer_load_dwordx4 v5, s[12:15], s25 offen lds")
            a.vm_issue(p)
    for p in range(NSL): issue(p)
    a("""
    v_and_b32 v8, 31, v1               ; m / n
    v_lshrrev_b32 v9, 5, v1            ; g
    v_lshrrev_b32 v10, 1, v2           ; wr
    v_and_b32 v11, 1, v2               ; wc
    s_lshr_b32 s28, s22, 1
    v_lshlrev_b32 v12, 7, v8
    v_bfe_u32 v13, v8, 1, 3
    v_xor_b32 v13, v13, v9
    v_lshl_add_u32 v12, v13, 4, v12
    v_bfe_u32 v14, v1, 2, 2            ; r
    v_lshl_add_u32 v15, v9, 3, v14
    v_lshlrev_b32 v15, 8, v15
    v_lshlrev_b32 v16, 1, v11
    v_xor_b32 v16, v16, v14
    v_lshl_add_u32 v15, v16, 6, v15
    v_bfe_u32 v16, v1, 4, 1
    v_lshl_add_u32 v15, v16, 5, v15
    v_and_b32 v16, 3, v1
    v_lshl_add_u32 v15, v16, 3, v15
    """)
    ACC=64
    for i in range(64): a(f"v_mov_b32 v{ACC+i}, 0")
    FAs=[32,128]; FBs=[48,144]
    def reads(s):
        c=s//2; h=s%2
        FA=FAs[s&1]; FB=FBs[s&1]
        pB=4*c+(3 if h else 0)
        sl0=((4*c+1)%NSL)*8192; sl1=((4*c+2)%NSL)*8192
        a(f"s_mov_b32 s26, {sl0}")
        a(f"s_mov_b32 s27, {sl1}")
        a("s_cmp_eq_u32 s28, 0")
        a("s_cselect_b32 s26, s26, s27")
        a(f"v_xor_b32 v17, {64*h}, v12")
        a("v_add_u32 v17, s26, v17")
        a("v_xor_b32 v18, 32, v17")
        a(f"v_add_u32 v19, {(pB%NSL)*8192}, v15")
        a("v_xor_b32 v20, 64, v19")
        for ks in range(2):
            for mt in range(2):
                r=FA+8*ks+4*mt
                a(f"ds_read_b128 v[{r}:{r+3}], v{17+ks} offset:{mt*4096}")
            for nt in range(2):
                for i in range(2):
                    r=FB+8*ks+4*nt+2*i
                    a(f"ds_read_b64_tr_b16 v[{r}:{r+1}], v{19+nt} offset:{(16*ks+4*i)*256}")
    def needs(s):
        c=s//2
        return [4*c+3] if s%2 else [4*c,4*c+1,4*c+2]
    def wait_stage(s):
        idx=[i for i,t in enumerate(a.vm) if t in needs(s)]
        if idx: a.vm_wait(a.vm[max(idx)])
    wait_stage(0)
    a("s_barrier")
    reads(0)
    st={'nxt':NSL}
    for s in range(NST):
        FA=FAs[s&1]; FB=FBs[s&1]
        if s+1<NST: wait_stage(s+1)
        a("s_waitcnt lgkmcnt(0)")
        a("s_barrier")
        nfree = 1 if s%2==0 else 3
        def fill():
            for _ in range(nfree):
                if st['nxt']<NP: issue(st['nxt']); st['nxt']+=1
            if s+1<NST: reads(s+1)
        def prim():
            for ks in range(2):
                for mt in range(2):
                    for nt in range(2):
                        acc=ACC+16*(2*mt+nt)
                        ra=FA+8*ks+4*mt; rb=FB+8*ks+4*nt
                        a(f"v_mfma_f32_32x32x16_bf16 v[{acc}:{acc+15}], v[{rb}:{rb+3}], v[{ra}:{ra+3}], v[{acc}:{acc+15}]")
        interleave(a, capture(a,prim), capture(a,fill))
    a("s_nop 15")
    a("s_barrier")
    HP=272
    a(f"v_lshl_add_u32 v20, v10, 6, v8")
    a(f"v_mul_u32_u24 v20, {HP}, v20")
    a("v_lshl_add_u32 v20, v11, 7, v20")
    a("v_lshl_add_u32 v20, v9, 3, v20")
    k=0
    for mt in range(2):
        for nt in range(2):
            acc=ACC+16*(2*mt+nt)
            for q in range(4):
                t=48+2*(k%4); k+=1
                for e in range(4): a(f"v_max_f32 v{acc+4*q+e}, 0, v{acc+4*q+e}")
                a(f"v_cvt_pk_bf16_f32 v{t}, v{acc+4*q}, v{acc+4*q+1}")
                a(f"v_cvt_pk_bf16_f32 v{t+1}, v{acc+4*q+2}, v{acc+4*q+3}")
                a(f"ds_write_b64 v20, v[{t}:{t+1}] offset:{mt*32*HP+nt*64+16*q}")
    a("s_waitcnt lgkmcnt(0)")
    a("s_barrier")
    a("v_lshrrev_b32 v21, 4, v0")
    a("v_and_b32 v22, 15, v0")
    a(f"v_mul_u32_u24 v23, {HP}, v21")
    a("v_lshl_add_u32 v23, v22, 4, v23")
    for j in range(8):
        a(f"ds_read_b128 v[{64+4*j}:{67+4*j}], v23 offset:{j*16*HP}")
    a("s_lshl_b32 s23, s20, 7")
    a("v_add_u32 v21, s23, v21")
    a("v_mul_u32_u24 v21, 3584, v21")
    a("v_lshl_add_u32 v21, v22, 4, v21")
    a("s_lshl_b32 s23, s21, 8")
    a("v_add_u32 v21, s23, v21")
    for j in range(8):
        a(f"s_mov_b32 s25, {j*16*3584}")
        a(f"s_waitcnt lgkmcnt({7-j})")
        a(f"buffer_store_dwordx4 v[{64+4*j}:{67+4*j}], v21, s[16:19], s25 offen")
    rt_end(a,1)

def conv3(a):
    a("s_setprio 2")
    ws_srd(a, 8, KR_OFF, KR_SZ)
    ws_srd(a, 12, XNT_OFF, XN_SZ)
    ws_srd(a, 16, ST_OFF, XN_SZ)
    srd(a, 20, 76, 77, 448*2)
    a("""
    v_lshrrev_b32 v1, 7, v0            ; chsel
    v_and_b32 v2, 127, v0              ; tau
    s_lshl_b32 s24, s3, 1
    v_add_u32 v3, s24, v1              ; channel d
    """)
    a(f"v_mul_u32_u24 v4, {KRP}, v3")
    a("v_lshl_add_u32 v4, v2, 4, v4")
    a("v_lshlrev_b32 v5, 12, v3")
    a("v_lshl_add_u32 v5, v2, 4, v5")
    a("v_lshlrev_b32 v6, 1, v3")
    a("buffer_load_dwordx4 v[16:19], v4, s[8:11], 0 offen")
    a("buffer_load_dwordx4 v[20:23], v4, s[8:11], 0 offen offset:16")
    a("buffer_load_dwordx4 v[24:27], v4, s[8:11], 0 offen offset:2048")
    a("buffer_load_dwordx4 v[28:31], v4, s[8:11], 0 offen offset:2064")
    a("buffer_load_dwordx4 v[32:35], v5, s[12:15], 0 offen")
    a("buffer_load_dwordx4 v[36:39], v5, s[12:15], 0 offen offset:2048")
    a("buffer_load_ushort v7, v6, s[20:23], 0 offen")
    a(f"v_mul_u32_u24 v8, {CH_SZ}, v1")
    a("v_lshl_add_u32 v9, v2, 4, v8")
    a("v_mov_b32 v40, 0\nv_mov_b32 v41, 0\nv_mov_b32 v42, 0\nv_mov_b32 v43, 0")
    a(f"ds_write_b128 v9, v[40:43] offset:{KC_SZ}")
    a("v_cmp_gt_u32 vcc, 27, v2")
    a("s_and_saveexec_b64 s[26:27], vcc")
    a(f"ds_write_b128 v9, v[40:43] offset:{KC_SZ+2048}")
    a("s_mov_b64 exec, s[26:27]")
    a("v_lshrrev_b32 v10, 2, v2")
    a(f"v_mul_u32_u24 v10, {CS}, v10")
    a("v_and_b32 v11, 3, v2")
    a("v_lshl_add_u32 v10, v11, 4, v10")
    a("v_add_u32 v10, v10, v8")
    a("v_cmp_gt_u32 vcc, 32, v2")
    a("s_and_saveexec_b64 s[26:27], vcc")
    a("ds_write_b128 v10, v[40:43] offset:4096")
    a("s_mov_b64 exec, s[26:27]")
    a("v_lshrrev_b32 v10, 2, v2")
    a("v_mul_u32_u24 v10, 80, v10")
    a("v_lshl_add_u32 v10, v11, 4, v10")
    a("v_add_u32 v10, v10, v8")
    a("s_waitcnt vmcnt(0)")
    a(f"ds_write_b128 v10, v[32:35] offset:{KC_SZ+31*80}")
    a(f"ds_write_b128 v10, v[36:39] offset:{KC_SZ+31*80+32*80}")
    for half in range(2):
        D=16+8*half
        E=44; D1=52; E1=60
        for k in range(7): a(f"v_alignbit_b32 v{E+k}, v{D+k+1}, v{D+k}, 16")
        for k in range(6): a(f"v_mov_b32 v{D1+k}, v{D+k+1}")
        for k in range(6): a(f"v_alignbit_b32 v{E1+k}, v{D+k+2}, v{D+k+1}, 16")
        src={0:D,4:D+2,2:D1,6:D1+2,1:E,5:E+2,3:E1,7:E1+2}
        for c in range(8):
            a(f"ds_write_b128 v9, v[{src[c]}:{src[c]+3}] offset:{c*CS+half*2048}")
    a("v_lshlrev_b32 v7, 16, v7")
    a("s_waitcnt lgkmcnt(0)")
    a("s_barrier")
    a("""
    v_and_b32 v10, 63, v0
    v_and_b32 v11, 31, v10
    v_lshrrev_b32 v12, 5, v10
    v_sub_u32 v13, 7, v11
    v_and_b32 v13, 7, v13
    """)
    a(f"v_mul_u32_u24 v13, {CS}, v13")
    a("v_lshl_add_u32 v13, v12, 4, v13")
    a("v_lshrrev_b32 v14, 3, v11")
    a("v_lshlrev_b32 v14, 4, v14")
    a("v_sub_u32 v13, v13, v14")
    a("v_add_u32 v13, 48, v13")
    a("v_add_u32 v13, v13, v8")
    a("v_mul_u32_u24 v14, 80, v11")
    a("v_lshl_add_u32 v14, v12, 4, v14")
    a(f"v_add_u32 v14, {KC_SZ}, v14")
    a("v_add_u32 v14, v14, v8")
    ACC0=64; ACC1=80
    for i in range(32): a(f"v_mov_b32 v{64+i}, 0")
    a("v_lshrrev_b32 v15, 6, v0")
    a("v_and_b32 v15, 1, v15")
    a("s_nop 0")
    a("v_readfirstlane_b32 s25, v15")
    lB=a.newlabel("cv_B"); lJ=a.newlabel("cv_J")
    a("s_nop 3")
    a("s_cmp_eq_u32 s25, 1")
    a(f"s_cbranch_scc1 {lB}")
    def mainloop(units):
        NS=3
        def issue(u):
            delta,hs=units[u]; base=96+24*(u%NS); n=0
            for q in range(2):
                a(f"ds_read_b128 v[{base+4*q}:{base+4*q+3}], v13 offset:{64*(63-delta)+32*q}"); n+=1
            for hi,h in enumerate(hs):
                for q in range(2):
                    r=base+8+8*hi+4*q
                    a(f"ds_read_b128 v[{r}:{r+3}], v14 offset:{80*(31+32*h-delta)+32*q}"); n+=1
            return n
        cnt=[]
        for u in range(min(NS-1,len(units))): cnt.append(issue(u))
        for u in range(len(units)):
            if u+NS-1<len(units): cnt.append(issue(u+NS-1))
            rem=sum(cnt[u+1:])
            a(f"s_waitcnt lgkmcnt({min(rem,15)})")
            delta,hs=units[u]; base=96+24*(u%NS)
            for q in range(2):
                for hi,h in enumerate(hs):
                    acc=ACC0 if h==0 else ACC1
                    r=base+8+8*hi+4*q
                    a(f"v_mfma_f32_32x32x16_bf16 v[{acc}:{acc+15}], v[{base+4*q}:{base+4*q+3}], v[{r}:{r+3}], v[{acc}:{acc+15}]")
    mainloop([(d,[0,1]) for d in range(16)]+[(d,[0]) for d in range(16,32)])
    a(f"s_branch {lJ}")
    a.label(lB)
    mainloop([(d,[1]) for d in range(16,64)])
    a.label(lJ)
    a("s_nop 15")
    a("s_barrier")
    a("v_lshl_add_u32 v15, v10, 4, v8")
    lB2=a.newlabel("cv_B2"); lJ2=a.newlabel("cv_J2")
    a("s_cmp_eq_u32 s25, 1")
    a(f"s_cbranch_scc1 {lB2}")
    for i in range(4): a(f"ds_write_b128 v15, v[{ACC1+4*i}:{ACC1+4*i+3}] offset:{i*1024}")
    a("s_waitcnt lgkmcnt(0)")
    a.label(lB2)
    a("s_barrier")
    a("s_cmp_eq_u32 s25, 0")
    a(f"s_cbranch_scc1 {lJ2}")
    for i in range(4): a(f"ds_read_b128 v[{96+4*i}:{96+4*i+3}], v15 offset:{i*1024}")
    a("s_waitcnt lgkmcnt(0)")
    for i in range(16): a(f"v_add_f32 v{ACC0+i}, v{ACC1+i}, v{96+i}")
    a.label(lJ2)
    a("v_lshlrev_b32 v16, 3, v12")
    a("v_sub_u32 v16, v14, v16")
    a("s_mul_i32 s26, s25, 2560")
    a("v_add_u32 v16, s26, v16")
    for rq in range(4): a(f"ds_read_b64 v[{96+2*rq}:{97+2*rq}], v16 offset:{80*31+16*rq}")
    a("v_lshlrev_b32 v17, 12, v3")
    a("v_lshl_add_u32 v17, v11, 6, v17")
    a("v_lshl_add_u32 v17, v12, 3, v17")
    a("s_lshl_b32 s26, s25, 11")
    a("v_add_u32 v17, s26, v17")
    a("s_waitcnt lgkmcnt(0)")
    for rq in range(4):
        for p in range(2):
            x=96+2*rq+p
            y0=ACC0+4*rq+2*p
            a(f"v_lshlrev_b32 v20, 16, v{x}")
            a(f"v_and_b32 v21, 0xffff0000, v{x}")
            a("v_mul_f32 v20, v20, v7")
            a("v_mul_f32 v21, v21, v7")
            a("v_cvt_pk_bf16_f32 v22, v20, v21")
            a(f"v_cvt_pk_bf16_f32 v23, v{y0}, v{y0+1}")
            a("v_lshlrev_b32 v20, 16, v22")
            a("v_and_b32 v21, 0xffff0000, v22")
            a("v_lshlrev_b32 v24, 16, v23")
            a("v_and_b32 v25, 0xffff0000, v23")
            a("v_add_f32 v20, v20, v24")
            a("v_add_f32 v21, v21, v25")
            a(f"v_cvt_pk_bf16_f32 v{26+2*(rq&1)+p}, v20, v21")
        a(f"buffer_store_dwordx2 v[{26+2*(rq&1)}:{27+2*(rq&1)}], v17, s[16:19], 0 offen offset:{16*rq}")
    rt_end(a,1)


def gemm2_3(a, exit_label):
    ws_srd(a, 8, H_OFF, H_SZ)
    ws_srd(a, 16, ST_OFF, XN_SZ)
    srd(a, 12, 82, 83, 1792*896)
    srd(a, 40, 64, 65, XN_SZ)
    srd(a, 44, 84, 85, XN_SZ)
    srd(a, 48, 86, 87, 256)
    a("""
    v_and_b32 v1, 63, v0
    v_lshrrev_b32 v2, 6, v0
    s_nop 0
    v_readfirstlane_b32 s22, v2
    s_nop 3
    """)
    claim_tile(a, 48, 8, exit_label, 22)
    a("s_mul_hi_u32 s20, s26, 0x24924925")
    a("s_mul_i32 s21, s20, 7")
    a("s_sub_u32 s21, s26, s21")
    a("s_lshl_b32 s27, s27, 2")
    a("s_add_u32 s20, s20, s27")
    a("s_mov_b32 s31, s26")
    a("""
    v_lshrrev_b32 v3, 3, v1
    v_lshl_add_u32 v3, v2, 4, v3
    s_lshl_b32 s23, s20, 6
    v_add_u32 v3, s23, v3
    v_mul_u32_u24 v3, 3584, v3
    v_and_b32 v4, 7, v1
    v_lshrrev_b32 v5, 4, v1
    v_xor_b32 v4, v4, v5
    v_lshl_add_u32 v3, v4, 4, v3       ; voffA i=0
    v_xor_b32 v4, 64, v3               ; voffA i=1
    v_lshrrev_b32 v5, 3, v1
    v_lshl_add_u32 v5, v2, 4, v5
    v_mul_u32_u24 v5, 896, v5
    v_bfe_u32 v6, v1, 2, 1
    v_bfe_u32 v7, v1, 4, 1
    v_xor_b32 v6, v6, v7
    v_and_b32 v7, 3, v1
    v_lshl_add_u32 v6, v6, 2, v7
    v_lshl_add_u32 v5, v6, 4, v5
    s_lshl_b32 s23, s21, 7
    v_add_u32 v5, s23, v5              ; voffB
    s_lshl_b32 s24, s22, 11            ; wave*2048
    """)
    NST=28; NBS=int(os.environ.get("NBS","9"))
    def issue(s):
        sl=(s%NBS)*16384
        a("s_lshl_b32 s26, s31, 7")
        a(f"s_mul_i32 s27, s31, {64*896}")
        for i in range(2):
            a(f"s_add_u32 m0, s24, {sl+i*1024}")
            a(f"s_add_u32 s25, s26, {i*8*3584}")
            a(f"buffer_load_dwordx4 v{3+i}, s[8:11], s25 offen lds")
            a.vm_issue(s)
        for i in range(2):
            a(f"s_add_u32 m0, s24, {sl+8192+i*1024}")
            a(f"s_add_u32 s25, s27, {i*8*896}")
            a(f"buffer_load_dwordx4 v5, s[12:15], s25 offen lds")
            a.vm_issue(s)
        a("s_add_u32 s31, s31, 1")
        a("s_cmp_eq_u32 s31, 28")
        a("s_cselect_b32 s31, 0, s31")
    for s in range(NBS): issue(s)
    a("""
    s_lshl_b32 s23, s20, 6
    v_add_u32 v22, s23, v1
    v_mul_u32_u24 v22, 896, v22
    v_lshl_add_u32 v22, v2, 5, v22
    s_lshl_b32 s23, s21, 7
    v_add_u32 v22, s23, v22
    buffer_load_dwordx4 v[24:27], v22, s[40:43], 0 offen
    buffer_load_dwordx4 v[28:31], v22, s[40:43], 0 offen offset:16
    """)
    a.vm_issue('x'); a.vm_issue('x')
    a("""
    v_and_b32 v8, 31, v1
    v_lshrrev_b32 v9, 5, v1
    v_lshlrev_b32 v12, 7, v8
    v_lshl_add_u32 v13, v2, 1, v9
    v_bfe_u32 v14, v8, 1, 3
    v_xor_b32 v13, v13, v14
    v_lshl_add_u32 v12, v13, 4, v12    ; vA
    v_add_u32 v13, 0x10000, v12
    v_bfe_u32 v14, v1, 2, 2            ; r
    v_lshl_add_u32 v15, v9, 3, v14
    v_lshl_add_u32 v15, v2, 4, v15
    v_lshlrev_b32 v15, 7, v15
    v_lshrrev_b32 v16, 1, v14
    v_lshl_add_u32 v15, v16, 6, v15
    v_bfe_u32 v16, v1, 4, 1
    v_lshl_add_u32 v15, v16, 5, v15
    v_and_b32 v16, 3, v1
    v_lshl_add_u32 v15, v16, 3, v15
    v_add_u32 v15, 8192, v15           ; vB0
    v_xor_b32 v16, 64, v15             ; vB1
    v_add_u32 v10, 0x10000, v15
    v_add_u32 v11, 0x10000, v16
    """)
    ACC=64
    for i in range(64): a(f"v_mov_b32 v{ACC+i}, 0")
    FAs=[32,128]; FBs=[40,136]
    a("""
    s_lshl_b32 s23, s21, 6
    v_lshlrev_b32 v17, 4, v2
    v_add_u32 v17, s23, v17
    v_lshlrev_b32 v17, 12, v17
    v_lshl_add_u32 v17, v1, 1, v17
    s_lshl_b32 s23, s20, 7
    v_add_u32 v17, s23, v17
    s_lshl_b32 s23, s21, 2
    v_mov_b32 v19, s23
    """)
    for j in range(16):
        a(f"s_mov_b32 s25, {j*4096}")
        a(f"buffer_load_ushort v{144+j}, v17, s[16:19], s25 offen")
        a.vm_issue('x')
    def reads(s):
        b=s%NBS
        FA=FAs[s&1]; FB=FBs[s&1]
        a(f"v_add_u32 v13, {b*16384}, v12")
        a(f"v_add_u32 v10, {b*16384}, v15")
        a(f"v_add_u32 v11, {b*16384}, v16")
        for mt in range(2):
            r=FA+4*mt
            a(f"ds_read_b128 v[{r}:{r+3}], v13 offset:{mt*4096}")
        for nt in range(2):
            for i in range(2):
                r=FB+4*nt+2*i
                a(f"ds_read_b64_tr_b16 v[{r}:{r+1}], v{10+nt} offset:{4*i*128}")
    a.vm_wait(0)
    a("s_barrier")
    if RT: a("s_memrealtime s[88:89]")
    reads(0)
    for s in range(NST):
        FA=FAs[s&1]; FB=FBs[s&1]
        if s+1<NST and a.vm_has(s+1): a.vm_wait(s+1)
        a("s_waitcnt lgkmcnt(0)")
        a("s_barrier")
        def fill():
            if s+NBS<NST: issue(s+NBS)
            if s+1<NST: reads(s+1)
        def prim():
            for mt in range(2):
                for nt in range(2):
                    acc=ACC+16*(2*mt+nt)
                    ra=FA+4*mt; rb=FB+4*nt
                    a(f"v_mfma_f32_32x32x16_bf16 v[{acc}:{acc+15}], v[{rb}:{rb+3}], v[{ra}:{ra+3}], v[{acc}:{acc+15}]")
        interleave(a, capture(a,prim), capture(a,fill))
    if RT: a("s_memrealtime s[62:63]")
    a("s_nop 15")
    a("s_barrier")
    a(f"v_mul_u32_u24 v20, {64*RP}, v2")
    a(f"v_mul_u32_u24 v21, {RP}, v8")
    a("v_add_u32 v20, v20, v21")
    a("v_lshl_add_u32 v20, v9, 4, v20")
    for mt in range(2):
        for nt in range(2):
            acc=ACC+16*(2*mt+nt)
            for q in range(4):
                a(f"ds_write_b128 v20, v[{acc+4*q}:{acc+4*q+3}] offset:{mt*32*RP+nt*128+q*32}")
    a("s_waitcnt lgkmcnt(0)")
    a("s_barrier")
    a(f"v_mul_u32_u24 v20, {RP}, v1")
    a("v_lshl_add_u32 v20, v2, 6, v20")
    for wv in range(4):
        for j in range(4):
            r=64+16*wv+4*j
            a(f"ds_read_b128 v[{r}:{r+3}], v20 offset:{wv*64*RP+j*16}")
    a("s_waitcnt lgkmcnt(0)")
    for i in range(16):
        a(f"v_add_f32 v{64+i}, v{64+i}, v{80+i}")
        a(f"v_add_f32 v{96+i}, v{96+i}, v{112+i}")
        a(f"v_add_f32 v{64+i}, v{64+i}, v{96+i}")
    NL2E=hex(f2u(-1.4426950408889634))
    for p in range(8):
        m0,m1=64+2*p,65+2*p
        a(f"v_cvt_pk_bf16_f32 v4, v{m0}, v{m1}")
        a("v_lshlrev_b32 v5, 16, v4")
        a("v_and_b32 v6, 0xffff0000, v4")
        a(f"v_mul_f32 v7, {NL2E}, v5")
        a(f"v_mul_f32 v10, {NL2E}, v6")
        a("v_exp_f32 v7, v7")
        a("v_exp_f32 v10, v10")
        a("s_nop 0")
        a("v_add_f32 v7, 1.0, v7")
        a("v_add_f32 v10, 1.0, v10")
        a("v_rcp_f32 v7, v7")
        a("v_rcp_f32 v10, v10")
        a("s_nop 0")
        a("v_mul_f32 v5, v5, v7")
        a("v_mul_f32 v6, v6, v10")
        a("v_cvt_pk_bf16_f32 v4, v5, v6")
        a("v_lshlrev_b32 v5, 16, v4")
        a("v_and_b32 v6, 0xffff0000, v4")
        if p==0: a("s_waitcnt vmcnt(0)")
        a(f"v_lshlrev_b32 v7, 16, v{144+2*p}")
        a(f"v_lshlrev_b32 v10, 16, v{145+2*p}")
        a("v_mul_f32 v5, v5, v7")
        a("v_mul_f32 v6, v6, v10")
        a("v_cvt_pk_bf16_f32 v4, v5, v6")
        a("v_lshlrev_b32 v5, 16, v4")
        a("v_and_b32 v6, 0xffff0000, v4")
        a(f"v_lshlrev_b32 v7, 16, v{24+p}")
        a(f"v_and_b32 v10, 0xffff0000, v{24+p}")
        a("v_add_f32 v5, v5, v7")
        a("v_add_f32 v6, v6, v10")
        a(f"v_cvt_pk_bf16_f32 v{48+p}, v5, v6")
    a("buffer_store_dwordx4 v[48:51], v22, s[44:47], 0 offen")
    a("buffer_store_dwordx4 v[52:55], v22, s[44:47], 0 offen offset:16")
    a("s_waitcnt vmcnt(0)")
    rt_end(a,2)


def ln3(a):
    PITCH=928
    a("s_setprio 3")
    srd(a, 8, 4, 5, XN_SZ)
    ws_srd(a, 16, XNT_OFF, XN_SZ)
    a("""
    v_lshrrev_b32 v2, 3, v0
    v_and_b32 v3, 7, v0
    s_lshl_b32 s20, s3, 6
    v_add_u32 v4, s20, v2
    v_mul_u32_u24 v1, 896, v4
    v_lshl_add_u32 v1, v3, 4, v1
    """)
    for i in range(7):
        a(f"buffer_load_dwordx4 v[{16+4*i}:{19+4*i}], v1, s[8:11], 0 offen offset:{i*128}")
    a("v_mov_b32 v5, 0x3f803f80")
    a("v_mov_b32 v6, 0")
    a("v_mov_b32 v7, 0")
    a("s_waitcnt vmcnt(0)")
    for i in range(28):
        a(f"v_dot2_f32_bf16 v{6+(i&1)}, v{16+i}, v5, v{6+(i&1)}")
    a("s_nop 3")
    a("v_add_f32 v6, v6, v7")
    dpp_reduce8(a, 6)
    a(f"v_mul_f32 v6, {hex(f2u(1.0/448))}, v6")
    a("v_mov_b32 v7, v6")
    for i in range(28):
        a(f"v_lshlrev_b32 v{44+2*i}, 16, v{16+i}")
        a(f"v_and_b32 v{45+2*i}, 0xffff0000, v{16+i}")
    a("v_mov_b32 v8, 0")
    a("v_mov_b32 v9, 0")
    for i in range(28):
        a(f"v_pk_add_f32 v[10:11], v[{44+2*i}:{45+2*i}], v[6:7] neg_lo:[0,1] neg_hi:[0,1]")
        a("v_pk_fma_f32 v[8:9], v[10:11], v[10:11], v[8:9]")
    a("v_add_f32 v8, v8, v9")
    dpp_reduce8(a, 8)
    a(f"v_mul_f32 v8, {hex(f2u(1.0/448))}, v8")
    bf16r(a, 8, 8)
    a(f"v_add_f32 v8, {hex(f2u(1e-5))}, v8")
    bf16r(a, 8, 8)
    a("v_sqrt_f32 v8, v8")
    a("s_nop 0")
    bf16r(a, 8, 8)
    a("v_rcp_f32 v12, v8")
    a("v_mov_b32 v9, v8")
    bf16r(a, 6, 6)
    a("v_mov_b32 v7, v6")
    a("v_mov_b32 v13, v12")
    for i in range(28):
        lo, hi = 44+2*i, 45+2*i
        a(f"v_pk_add_f32 v[{lo}:{hi}], v[{lo}:{hi}], v[6:7] neg_lo:[0,1] neg_hi:[0,1]")
        a(f"v_cvt_pk_bf16_f32 v10, v{lo}, v{hi}")
        a(f"v_lshlrev_b32 v{lo}, 16, v10")
        a(f"v_and_b32 v{hi}, 0xffff0000, v10")
        a(f"v_pk_mul_f32 v[10:11], v[{lo}:{hi}], v[12:13]")
        a(f"v_pk_fma_f32 v[{lo}:{hi}], v[10:11], v[8:9], v[{lo}:{hi}] neg_lo:[1,0,0] neg_hi:[1,0,0]")
        a(f"v_pk_fma_f32 v[10:11], v[{lo}:{hi}], v[12:13], v[10:11]")
        a(f"v_cvt_pk_bf16_f32 v{16+i}, v10, v11")
    a(f"v_mul_u32_u24 v9, {PITCH}, v2")
    a("v_lshl_add_u32 v9, v3, 4, v9")
    ws_srd(a, 12, XN_OFF, XN_SZ)
    for i in range(7):
        a(f"buffer_store_dwordx4 v[{16+4*i}:{19+4*i}], v1, s[12:15], 0 offen offset:{i*128}")
        a(f"ds_write_b128 v9, v[{16+4*i}:{19+4*i}] offset:{i*128}")
    a("s_waitcnt lgkmcnt(0)")
    a("s_barrier")
    a("""
    v_and_b32 v10, 63, v0
    v_lshrrev_b32 v11, 6, v0          ; wave
    v_lshrrev_b32 v15, 2, v11         ; th
    v_and_b32 v11, 3, v11             ; dq
    v_lshrrev_b32 v12, 4, v10         ; gam
    v_bfe_u32 v13, v10, 2, 2          ; r
    v_and_b32 v14, 3, v10             ; c
    v_lshl_add_u32 v13, v12, 3, v13   ; 8gam + r
    v_lshl_add_u32 v13, v15, 5, v13   ; + 32 th
    """)
    a(f"v_mul_u32_u24 v13, {PITCH}, v13")
    a("v_lshl_add_u32 v13, v14, 3, v13")
    a("v_lshl_add_u32 v13, v11, 5, v13")
    a("""
    v_and_b32 v14, 15, v10
    v_lshl_add_u32 v14, v11, 4, v14
    v_lshlrev_b32 v14, 12, v14
    v_lshl_add_u32 v14, v12, 4, v14
    v_lshl_add_u32 v14, v15, 6, v14
    s_lshl_b32 s21, s3, 7
    v_add_u32 v14, s21, v14
    """)
    for it in range(7):
        a(f"ds_read_b64_tr_b16 v[{16+4*it}:{17+4*it}], v13 offset:{it*128}")
        a(f"ds_read_b64_tr_b16 v[{18+4*it}:{19+4*it}], v13 offset:{it*128+4*PITCH}")
    a("s_waitcnt lgkmcnt(0)")
    for it in range(7):
        a(f"s_mov_b32 s22, {it*64*4096}")
        a(f"buffer_store_dwordx4 v[{16+4*it}:{19+4*it}], v14, s[16:19], s22 offen")
    rt_end(a,0)


def kgen3(a):
    UP=528; WREG=16*UP; CHREG=4*WREG
    KD_OFF=12288
    a(f"s_setprio {os.environ.get('KGP','2')}")
    srd(a, 8, 66, 67, 448*512)
    srd(a, 12, 68, 69, 448*512)
    srd(a, 16, 70, 71, 448*512)
    srd(a, 20, 72, 73, 448*512)
    srd(a, 24, 74, 75, 448*2)
    ws_srd(a, 44, KR_OFF, KR_SZ)
    a("""
    s_lshl_b32 s28, s3, 10
    v_lshlrev_b32 v1, 1, v0
    v_add_u32 v1, s28, v1
    v_lshrrev_b32 v3, 8, v0            ; chsel
    s_lshl_b32 s29, s3, 1
    v_add_u32 v2, s29, v3              ; channel d
    v_lshlrev_b32 v10, 1, v2
    buffer_load_ushort v4, v1, s[8:11], 0 offen
    buffer_load_ushort v5, v1, s[12:15], 0 offen
    buffer_load_ushort v6, v1, s[16:19], 0 offen
    buffer_load_ushort v7, v1, s[20:23], 0 offen
    buffer_load_ushort v8, v10, s[24:27], 0 offen
    """)
    a("v_and_b32 v1, 63, v0")
    a("v_lshrrev_b32 v0, 6, v0")
    a(f"v_mul_u32_u24 v14, {WREG}, v0")
    a("v_lshrrev_b32 v10, 4, v1")
    a("v_and_b32 v15, 15, v1")
    a(f"v_mul_u32_u24 v15, {UP}, v15")
    a("v_lshl_add_u32 v15, v10, 4, v15")
    a("v_add_u32 v15, v15, v14")
    a("v_lshl_add_u32 v14, v1, 2, v14")
    a("""
    s_waitcnt vmcnt(0)
    v_lshlrev_b32 v4, 16, v4
    v_lshlrev_b32 v5, 16, v5
    v_lshlrev_b32 v6, 16, v6
    v_lshlrev_b32 v7, 16, v7
    v_lshlrev_b32 v8, 16, v8
    """)
    if RT: a("s_memrealtime s[86:87]")
    acc_exp(a, 9, 8, 10, 11)
    bf16r(a, 9, 9)
    acc_exp(a, 12, 4, 10, 11)
    bf16r(a, 12, 12)
    a("v_mul_f32 v12, v12, v9")
    a("v_mul_f32 v13, v5, v9")
    a("v_mul_f32 v6, v6, v9")
    a("v_mul_f32 v7, v7, v9")
    a("v_add_f32 v6, v6, v6")
    a("v_add_f32 v7, v7, v7")
    a(f"v_mul_f32 v12, {hex(f2u(-1.4426950408889634))}, v12")
    a(f"v_mul_f32 v13, {hex(f2u(0.15915494309189535))}, v13")
    T=16
    def direct(d,p):
        a(f"v_mul_f32 v{T}, {hex(f2u(float(p)))}, v12")
        a(f"v_mul_f32 v{T+1}, {hex(f2u(float(p)))}, v13")
        a(f"v_exp_f32 v{T}, v{T}")
        a(f"v_fract_f32 v{T+1}, v{T+1}")
        a(f"v_cos_f32 v{d}, v{T+1}")
        a(f"v_sin_f32 v{d+1}, v{T+1}")
        a("s_nop 0")
        a(f"v_mul_f32 v{d}, v{d}, v{T}")
        a(f"v_mul_f32 v{d+1}, v{d+1}, v{T}")
    def split_write(src,row):
        a(f"v_cvt_pk_bf16_f32 v4, v{src}, v{src+1}")
        a("v_lshlrev_b32 v8, 16, v4")
        a("v_and_b32 v9, 0xffff0000, v4")
        a(f"v_pk_add_f32 v[8:9], v[{src}:{src+1}], v[8:9] neg_lo:[0,1] neg_hi:[0,1]")
        a("v_cvt_pk_bf16_f32 v5, v8, v9")
        a(f"v_add_u32 v10, {row*UP}, v14")
        a("ds_write2_b32 v10, v4, v5 offset0:0 offset1:64")
    BH=64; BL=80; AF=96; ACC=112
    V={1:20,2:22,4:24,8:26,3:28,5:30,6:32,7:34}
    direct(V[1],8); pk_cmul(a,V[2],V[1],V[1],T); pk_cmul(a,V[4],V[2],V[2],T); pk_cmul(a,V[8],V[4],V[4],T)
    pk_cmul(a,V[3],V[1],V[2],T); pk_cmul(a,V[5],V[4],V[1],T); pk_cmul(a,V[6],V[4],V[2],T); pk_cmul(a,V[7],V[4],V[3],T)
    a("v_mov_b32 v36, 1.0"); a("v_mov_b32 v37, 0")
    split_write(36,0)
    for j in range(1,9): split_write(V[j],j)
    for j in range(9,16):
        pk_cmul(a,36,V[8],V[j-8],T); split_write(36,j)
    a("s_waitcnt lgkmcnt(0)")
    for s in range(4):
        a(f"ds_read_b128 v[{BH+4*s}:{BH+4*s+3}], v15 offset:{64*s}")
        a(f"ds_read_b128 v[{BL+4*s}:{BL+4*s+3}], v15 offset:{256+64*s}")
    S={1:20,2:22,3:24,4:26,5:28,6:30,7:32}
    direct(S[1],1); pk_cmul(a,S[2],S[1],S[1],T); pk_cmul(a,S[4],S[2],S[2],T)
    pk_cmul(a,S[3],S[1],S[2],T); pk_cmul(a,S[5],S[1],S[4],T); pk_cmul(a,S[6],S[2],S[4],T); pk_cmul(a,S[7],S[3],S[4],T)
    G={1:48,2:50,4:52,8:54,16:56}
    direct(G[1],128)
    for m in (2,4,8,16): pk_cmul(a,G[m],G[m//2],G[m//2],T)
    W={0:6}
    for m in range(1,8): W[m]=32+2*m
    pk_cmul(a,W[1],6,G[1],T); pk_cmul(a,W[2],6,G[2],T); pk_cmul(a,W[3],W[1],G[2],T); pk_cmul(a,W[4],6,G[4],T)
    pk_cmul(a,W[5],W[1],G[4],T); pk_cmul(a,W[6],W[2],G[4],T); pk_cmul(a,W[7],W[3],G[4],T)
    for i in range(12): a(f"v_mov_b32 v{ACC+i}, 0")
    R=58
    rows={}
    rows[0]=[('ws',i//8,i%8) for i in range(16)]
    rows[1]=[('ws',2+i//4,2*(i%4)) for i in range(8)]+[('ws',4+i//2,4*(i%2)) for i in range(8)]
    rows[2]=[('wg',i,8) for i in range(8)]+[('wg',0,16)]+[None]*7
    for t in (2,1,0):
        a("s_waitcnt lgkmcnt(0)")
        for i,rw in enumerate(rows[t]):
            if rw is None:
                a(f"v_mov_b32 v{R}, 0"); a(f"v_mov_b32 v{R+1}, 0")
            elif rw[0]=='wg':
                pk_cmul(a,R,W[rw[1]],G[rw[2]],T,negim=True)
            elif rw[2]==0:
                a(f"v_mov_b32 v{R}, v{W[rw[1]]}")
                a(f"v_sub_f32 v{R+1}, 0, v{W[rw[1]]+1}")
            else:
                pk_cmul(a,R,W[rw[1]],S[rw[2]],T,negim=True)
            split_write(R,i)
        a("s_waitcnt lgkmcnt(0)")
        acc=ACC+4*t
        for s in range(4): a(f"ds_read_b128 v[{AF+4*s}:{AF+4*s+3}], v15 offset:{64*s}")
        for s in range(4):
            a(f"s_waitcnt lgkmcnt({3-s})")
            a(f"v_mfma_f32_16x16x32_bf16 v[{acc}:{acc+3}], v[{AF+4*s}:{AF+4*s+3}], v[{BH+4*s}:{BH+4*s+3}], v[{acc}:{acc+3}]")
            a(f"v_mfma_f32_16x16x32_bf16 v[{acc}:{acc+3}], v[{AF+4*s}:{AF+4*s+3}], v[{BL+4*s}:{BL+4*s+3}], v[{acc}:{acc+3}]")
        for s in range(4): a(f"ds_read_b128 v[{AF+4*s}:{AF+4*s+3}], v15 offset:{256+64*s}")
        for s in range(4):
            a(f"s_waitcnt lgkmcnt({3-s})")
            a(f"v_mfma_f32_16x16x32_bf16 v[{acc}:{acc+3}], v[{AF+4*s}:{AF+4*s+3}], v[{BH+4*s}:{BH+4*s+3}], v[{acc}:{acc+3}]")
    if RT: a("s_memrealtime s[88:89]")
    a("s_nop 15")
    a("s_barrier")
    a(f"v_mul_u32_u24 v16, {CHREG}, v3")
    a("v_and_b32 v17, 3, v0")
    a("v_mul_u32_u24 v18, 3072, v17")
    a("v_add_u32 v18, v18, v16")
    a("v_lshl_add_u32 v18, v1, 4, v18")
    for t in range(3):
        a(f"ds_write_b128 v18, v[{ACC+4*t}:{ACC+4*t+3}] offset:{t*1024}")
    a("s_waitcnt lgkmcnt(0)")
    a("s_barrier")
    skip=a.newlabel("kg_skip")
    a("v_readfirstlane_b32 s28, v17")
    a("s_nop 3")
    a("s_cmp_ge_u32 s28, 3")
    a(f"s_cbranch_scc1 {skip}")
    a("v_lshlrev_b32 v18, 10, v17")
    a("v_add_u32 v18, v18, v16")
    a("v_lshl_add_u32 v18, v1, 4, v18")
    for w in range(4):
        a(f"ds_read_b128 v[{20+4*w}:{23+4*w}], v18 offset:{w*3072}")
    a("s_waitcnt lgkmcnt(0)")
    for r in range(4):
        a(f"v_add_f32 v{20+r}, v{20+r}, v{24+r}")
        a(f"v_add_f32 v{28+r}, v{28+r}, v{32+r}")
        a(f"v_add_f32 v{20+r}, v{20+r}, v{28+r}")
    a("v_lshrrev_b32 v4, 4, v1")
    a("v_and_b32 v5, 15, v1")
    a("v_lshlrev_b32 v5, 5, v5")
    a("v_add_u32 v5, v5, v16")
    t1=a.newlabel("kg_t1"); t2=a.newlabel("kg_t2"); done=a.newlabel("kg_td")
    a("s_cmp_eq_u32 s28, 1"); a(f"s_cbranch_scc1 {t1}")
    a("s_cmp_eq_u32 s28, 2"); a(f"s_cbranch_scc1 {t2}")
    a("v_lshrrev_b32 v6, 1, v4"); a("v_lshlrev_b32 v6, 7, v6"); a("v_and_b32 v7, 1, v4"); a("v_lshl_add_u32 v6, v7, 2, v6")
    a("v_lshl_add_u32 v6, v6, 2, v5")
    for r in range(4): a(f"ds_write_b32 v6, v{20+r} offset:{KD_OFF+4*r}")
    a(f"s_branch {done}")
    a.label(t1)
    a("v_lshlrev_b32 v6, 7, v4"); a("v_add_u32 v6, 256, v6")
    a("v_lshlrev_b32 v7, 8, v4")
    a("v_cmp_gt_u32 vcc, 2, v4")
    a("s_nop 1")
    for r in range(4):
        a(f"v_add_u32 v8, {2*r}, v6")
        a(f"v_add_u32 v9, {128*(r//2)+4*(r%2)}, v7")
        a("v_cndmask_b32 v8, v9, v8, vcc")
        a("v_lshl_add_u32 v8, v8, 2, v5")
        a(f"ds_write_b32 v8, v{20+r} offset:{KD_OFF}")
    a(f"s_branch {done}")
    a.label(t2)
    a("v_lshlrev_b32 v6, 9, v4"); a("v_add_u32 v6, 1024, v6")
    for r in range(4):
        a(f"v_add_u32 v8, {128*r}, v6")
        a("v_min_u32 v8, 2176, v8")
        a("v_lshl_add_u32 v8, v8, 2, v5")
        a(f"ds_write_b32 v8, v{20+r} offset:{KD_OFF}")
    a.label(done)
    a.label(skip)
    a("s_waitcnt lgkmcnt(0)")
    a("s_barrier")
    a("v_lshl_add_u32 v18, v17, 6, v1")
    a("v_lshlrev_b32 v19, 3, v18")
    a("v_sub_u32 v19, 2047, v19")
    for e in range(8):
        a(f"v_subrev_u32 v4, {e}, v19")
        a("v_cvt_f32_u32 v4, v4")
        a("v_cvt_pk_bf16_f32 v4, v4, v4")
        a("v_lshlrev_b32 v4, 16, v4")
        a("v_cvt_u32_f32 v4, v4")
        a("v_lshl_add_u32 v4, v4, 2, v16")
        a(f"ds_read_b32 v{20+e}, v4 offset:{KD_OFF}")
    a(f"v_mul_u32_u24 v5, {KRP}, v2")
    a("v_lshl_add_u32 v5, v18, 4, v5")
    a("s_waitcnt lgkmcnt(0)")
    for e in range(4):
        a(f"v_cvt_pk_bf16_f32 v{28+e}, v{20+2*e}, v{21+2*e}")
    a("buffer_store_dwordx4 v[28:31], v5, s[44:47], 0 offen")
    a("v_mov_b32 v32, 0"); a("v_mov_b32 v33, 0"); a("v_mov_b32 v34, 0"); a("v_mov_b32 v35, 0")
    a("v_cmp_gt_u32 vcc, 8, v18")
    a("s_and_saveexec_b64 s[48:49], vcc")
    skipz=a.newlabel("kg_z")
    a(f"s_cbranch_execz {skipz}")
    a("s_mov_b32 s28, 4096")
    a("buffer_store_dwordx4 v[32:35], v5, s[44:47], s28 offen")
    a.label(skipz)
    rt_end(a,0)


def k0(name):
    a=Asm(); a.label(name)
    if RT: a("s_memrealtime s[90:91]")
    a(HEAD_A)
    a("s_cmp_ge_u32 s2, 256")
    a(f"s_cbranch_scc1 {name}_exit")
    a("s_cmp_ge_u32 s2, 224")
    a(f"s_cbranch_scc1 {name}_ln")
    a("s_mov_b32 s3, s2")
    kgen3(a)
    a.label(f"{name}_ln")
    a("s_sub_u32 s3, s2, 224")
    ln3(a)
    a.label(f"{name}_exit")
    a("s_endpgm")
    return a.text()
def k1(name):
    a=Asm(); a.label(name)
    if RT: a("s_memrealtime s[90:91]")
    a(HEAD_A)
    a("s_cmp_ge_u32 s2, 480")
    a(f"s_cbranch_scc1 {name}_exit")
    a("s_cmp_ge_u32 s2, 256")
    a(f"s_cbranch_scc1 {name}_conv")
    gemm1_256(a, f"{name}_exit")
    a.label(f"{name}_conv")
    a("s_sub_u32 s3, s2, 256")
    conv3(a)
    a.label(f"{name}_exit")
    a("s_endpgm")
    return a.text()
def k2(name):
    a=Asm(); a.label(name)
    if RT: a("s_memrealtime s[90:91]")
    a(HEAD_A)
    a("s_cmp_ge_u32 s2, 256")
    a(f"s_cbranch_scc1 {name}_exit")
    gemm2_3(a, f"{name}_exit")
    a.label(f"{name}_exit")
    a("s_endpgm")
    return a.text()
```

```python
from asm import *
import os, struct
import numpy as np
DIS=os.environ.get('DIS','').split(',')
XN_OFF=0; XNT_OFF=0x200000; KR_OFF=0x400000; H_OFF=0x600000; ST_OFF=0xE00000
XN_SZ=2048*448*2; KRP=4224; KR_SZ=448*KRP; H_SZ=2048*1792*2
def f2u(f): return struct.unpack('<I', struct.pack('<f', f))[0]

STATS_OFF=0x1200000
G1_WGS=256; KG_WGS=224; LN_WGS=32
EXIT=[None]
KA_LDS=81920

RT=os.environ.get('RT','')
def rt_end(a, kid):
    if RT:
        a("s_waitcnt vmcnt(0) lgkmcnt(0)")
        a("s_memrealtime s[92:93]")
        a("s_mov_b64 exec, -1")
        a("s_waitcnt lgkmcnt(0)")
        a(f"s_add_u32 s96, s6, {0x1100000+kid*0x10000}")
        a("s_addc_u32 s97, s7, 0")
        a("s_mov_b32 s98, 0x10000")
        a("s_mov_b32 s99, 0x00020000")
        a("s_lshl_b32 s94, s2, 5")
        a("v_mov_b32 v4, s90\nv_mov_b32 v5, s91\nv_mov_b32 v6, s92\nv_mov_b32 v7, s93\nv_mov_b32 v8, s94")
        a("buffer_store_dwordx4 v[4:7], v8, s[96:99], 0 offen")
        a("s_nop 2")
        a("v_mov_b32 v4, s86\nv_mov_b32 v5, s87\nv_mov_b32 v6, s88\nv_mov_b32 v7, s89")
        a("buffer_store_dwordx4 v[4:7], v8, s[96:99], 0 offen offset:16")
    a("s_endpgm")

def ws_srd(a, d, off, nbytes, wlo=6, whi=7):
    a(f"s_add_u32 s{d}, s{wlo}, {off}")
    a(f"s_addc_u32 s{d+1}, s{whi}, 0")
    a(f"s_mov_b32 s{d+2}, {nbytes}")
    a(f"s_mov_b32 s{d+3}, 0x00020000")

def bf16r(a, dst, src):
    a(f"v_cvt_pk_bf16_f32 v{dst}, v{src}, v{src}")
    a(f"v_lshlrev_b32 v{dst}, 16, v{dst}")

def dpp_reduce8(a, v):
    a("s_nop 1")
    a(f"v_add_f32_dpp v{v}, v{v}, v{v} quad_perm:[1,0,3,2] row_mask:0xf bank_mask:0xf")
    a("s_nop 1")
    a(f"v_add_f32_dpp v{v}, v{v}, v{v} quad_perm:[2,3,0,1] row_mask:0xf bank_mask:0xf")
    a("s_nop 1")
    a(f"v_add_f32_dpp v{v}, v{v}, v{v} row_half_mirror row_mask:0xf bank_mask:0xf")

TSA=os.environ.get('TSA','')!=''
def tsa(a, idx):
    if not TSA: return
    a(f"s_memtime s[{60+2*idx}:{61+2*idx}]")
def tsa_flush(a, n):
    if not TSA: return
    a("s_waitcnt lgkmcnt(0)")
    ws_srd(a, 56, 0x1000000, 0x100000)
    a("s_lshl_b32 s80, s2, 8")
    a("v_lshrrev_b32 v100, 6, v0")
    a("v_and_b32 v100, 3, v100")
    a("v_lshlrev_b32 v100, 6, v100")
    a("v_add_u32 v100, s80, v100")
    for i in range(n):
        a(f"v_mov_b32 v102, s{60+2*i}")
        a(f"v_mov_b32 v103, s{61+2*i}")
        a(f"buffer_store_dwordx2 v[102:103], v100, s[56:59], 0 offen offset:{8*i}")
        a("s_nop 2")
def claim_tile(a, dsrd, wbase, exit_label, wave_sgpr):
    a("s_getreg_b32 s27, hwreg(HW_REG_XCC_ID)")
    a("s_and_b32 s27, s27, 7")
    lskip=a.newlabel("cl_skip"); lp=a.newlabel("cl_loop"); ld=a.newlabel("cl_done")
    a(f"s_cmp_lg_u32 s{wave_sgpr}, 0")
    a(f"s_cbranch_scc1 {lskip}")
    a("s_mov_b32 s28, 0")
    a("s_mov_b64 s[30:31], exec")
    a("s_mov_b64 exec, 1")
    a.label(lp)
    a(f"s_add_u32 s26, s27, {wbase}")
    a("s_lshl_b32 s26, s26, 2")
    a("v_mov_b32 v4, s26")
    a("v_mov_b32 v5, 1")
    a(f"buffer_atomic_add v5, v4, s[{dsrd}:{dsrd+3}], 0 offen sc0")
    a("s_waitcnt vmcnt(0)")
    a("v_readfirstlane_b32 s26, v5")
    a("s_nop 3")
    a("s_cmp_lt_u32 s26, 28")
    a(f"s_cbranch_scc1 {ld}")
    a("s_add_u32 s27, s27, 1")
    a("s_and_b32 s27, s27, 7")
    a("s_add_u32 s28, s28, 1")
    a("s_cmp_lt_u32 s28, 8")
    a(f"s_cbranch_scc1 {lp}")
    a("s_mov_b32 s26, 0xff")
    a.label(ld)
    a("s_lshl_b32 s28, s27, 8")
    a("s_or_b32 s26, s26, s28")
    a("v_mov_b32 v4, 0")
    a("v_mov_b32 v5, s26")
    a("ds_write_b32 v4, v5")
    a("s_waitcnt lgkmcnt(0)")
    a("s_mov_b64 exec, s[30:31]")
    a.label(lskip)
    a("s_barrier")
    a("v_mov_b32 v4, 0")
    a("ds_read_b32 v5, v4")
    a("s_waitcnt lgkmcnt(0)")
    a("v_readfirstlane_b32 s26, v5")
    a("s_barrier")
    a("s_lshr_b32 s27, s26, 8")
    a("s_and_b32 s26, s26, 0xff")
    a("s_cmp_eq_u32 s26, 0xff")
    a(f"s_cbranch_scc1 {exit_label}")

def gemm1_role(a):
    NB=5; NST=14
    a(f"s_setprio {os.environ.get('G1P','0')}")
    tsa(a,0)
    ws_srd(a, 8, XN_OFF, XN_SZ)
    ws_srd(a, 16, H_OFF, H_SZ)
    srd(a, 12, 80, 81, 448*3584)
    srd(a, 44, 82, 83, 256)
    a("""
    v_and_b32 v1, 63, v0               ; lane
    v_lshrrev_b32 v2, 6, v0            ; wave 0..7
    s_nop 0
    v_readfirstlane_b32 s22, v2
    s_nop 3
    """)
    claim_tile(a, 44, 8, EXIT[0], 22)
    a("s_cmp_ge_u32 s26, 14")
    a("s_cselect_b32 s20, 1, 0")
    a("s_mul_i32 s21, s20, 14")
    a("s_sub_u32 s21, s26, s21")
    a("s_lshl_b32 s27, s27, 1")
    a("s_add_u32 s20, s20, s27")
    a("s_mov_b32 s29, s26")
    a("""
    v_lshrrev_b32 v3, 3, v1
    v_lshl_add_u32 v3, v2, 3, v3
    v_lshrrev_b32 v4, 1, v3
    v_and_b32 v4, 7, v4
    v_and_b32 v5, 7, v1
    v_xor_b32 v4, v4, v5
    s_lshl_b32 s23, s20, 7
    v_add_u32 v3, s23, v3
    v_mul_u32_u24 v3, 896, v3
    v_lshl_add_u32 v3, v4, 4, v3       ; voffA
    v_bfe_u32 v5, v1, 4, 2
    v_lshrrev_b32 v4, 4, v1
    v_lshl_add_u32 v4, v2, 2, v4
    v_mul_u32_u24 v4, 3584, v4
    v_bfe_u32 v6, v1, 2, 2
    v_xor_b32 v6, v6, v5
    v_and_b32 v7, 3, v1
    v_lshl_add_u32 v6, v6, 2, v7
    v_lshl_add_u32 v4, v6, 4, v4
    s_lshl_b32 s23, s21, 8
    v_add_u32 v4, s23, v4              ; voffB
    s_lshl_b32 s24, s22, 10            ; wave*1024
    """)
    NSL=10; NP=28
    a("s_mul_hi_u32 s30, s29, 0x24924925")
    a("s_mul_i32 s30, s30, 7")
    a("s_sub_u32 s31, s29, s30")
    for k in range(7):
        a(f"s_lshl_b32 s{32+k}, s31, 7")
        a("s_add_u32 s31, s31, 1")
        a("s_cmp_eq_u32 s31, 7")
        a("s_cselect_b32 s31, 0, s31")
    def issue(p):
        c=p//4; k=p%4; sl=p%NSL
        a(f"s_add_u32 m0, s24, {sl*8192}")
        if k in (1,2):
            if k==2: a(f"s_add_u32 s25, s{32+c}, {64*896}")
            else: a(f"s_mov_b32 s25, s{32+c}")
            a(f"buffer_load_dwordx4 v3, s[8:11], s25 offen sc1 lds")
        else:
            a(f"s_mul_i32 s25, s{32+c}, 1792")
            if k==3: a(f"s_add_u32 s25, s25, {32*3584}")
            a(f"buffer_load_dwordx4 v4, s[12:15], s25 offen lds")
        a.vm_issue(p)
    for p in range(NSL):
        if p%4 in (0,3): issue(p)
    lp=a.newlabel("g1_poll"); ld=a.newlabel("g1_pd")
    a("s_cmp_lg_u32 s22, 0")
    a(f"s_cbranch_scc1 {ld}")
    a("s_add_u32 s23, s20, 16")
    a("s_lshl_b32 s23, s23, 2")
    a("v_mov_b32 v29, s23")
    a(f"s_sleep {os.environ.get('SL0','64')}")
    a.label(lp)
    a("buffer_load_dword v30, v29, s[44:47], 0 offen sc1")
    a("s_waitcnt vmcnt(0)")
    a("v_readfirstlane_b32 s23, v30")
    a("s_nop 3")
    a(f"s_cmp_ge_u32 s23, {0 if 'ln' in DIS else 2}")
    a(f"s_cbranch_scc1 {ld}")
    a(f"s_sleep {os.environ.get('SL1','32')}")
    a(f"s_branch {lp}")
    a.label(ld)
    a("s_barrier")
    for p in range(NSL):
        if p%4 in (1,2): issue(p)
    a("""
    v_and_b32 v8, 31, v1               ; m / n
    v_lshrrev_b32 v9, 5, v1            ; g
    v_lshrrev_b32 v10, 2, v2           ; wr
    v_and_b32 v11, 3, v2               ; wc
    s_lshr_b32 s28, s22, 2             ; wr
    v_lshlrev_b32 v12, 7, v8           ; m*128
    v_bfe_u32 v13, v8, 1, 3
    v_xor_b32 v13, v13, v9
    v_lshl_add_u32 v12, v13, 4, v12
    v_bfe_u32 v14, v1, 2, 2            ; r
    v_lshl_add_u32 v15, v9, 3, v14
    v_lshlrev_b32 v15, 8, v15
    v_xor_b32 v16, v11, v14
    v_lshl_add_u32 v15, v16, 6, v15
    v_bfe_u32 v16, v1, 4, 1
    v_lshl_add_u32 v15, v16, 5, v15
    v_and_b32 v16, 3, v1
    v_lshl_add_u32 v15, v16, 3, v15
    """)
    ACC=64
    for i in range(32): a(f"v_mov_b32 v{ACC+i}, 0")
    FAs=[32,96]; FBs=[48,56]
    def reads(s):
        c=s//2; h=s%2
        FA=FAs[s&1]; FB=FBs[s&1]
        pB=4*c+(3 if h else 0)
        sl0=((4*c+1)%NSL)*8192; sl1=((4*c+2)%NSL)*8192
        a(f"s_mov_b32 s26, {sl0}")
        a(f"s_mov_b32 s27, {sl1}")
        a("s_cmp_eq_u32 s28, 0")
        a("s_cselect_b32 s26, s26, s27")
        a(f"v_xor_b32 v17, {64*h}, v12")
        a("v_add_u32 v17, s26, v17")
        a("v_xor_b32 v18, 32, v17")
        a(f"v_add_u32 v19, {(pB%NSL)*8192}, v15")
        for ks in range(2):
            for mt in range(2):
                r=FA+8*ks+4*mt
                a(f"ds_read_b128 v[{r}:{r+3}], v{17+ks} offset:{mt*4096}")
            for i in range(2):
                r=FB+4*ks+2*i
                a(f"ds_read_b64_tr_b16 v[{r}:{r+1}], v19 offset:{(16*ks+4*i)*256}")
    def needs(s):
        c=s//2
        return [4*c+3] if s%2 else [4*c,4*c+1,4*c+2]
    def wait_stage(s):
        idx=[i for i,t in enumerate(a.vm) if t in needs(s)]
        if idx: a.vm_wait(a.vm[max(idx)])
    wait_stage(0)
    a("s_barrier")
    reads(0)
    st={'nxt':NSL}
    for s in range(NST):
        FA=FAs[s&1]; FB=FBs[s&1]
        if s+1<NST: wait_stage(s+1)
        a("s_waitcnt lgkmcnt(0)")
        a("s_barrier")
        if s==0: tsa(a,1)
        if s==2: tsa(a,2)
        if s==8: tsa(a,3)
        nfree = 1 if s%2==0 else 3
        def fill():
            global_nxt=None
            for _ in range(nfree):
                if st['nxt']<NP: issue(st['nxt']); st['nxt']+=1
            if s+1<NST: reads(s+1)
        def prim():
            for ks in range(2):
                for mt in range(2):
                    acc=ACC+16*mt
                    ra=FA+8*ks+4*mt; rb=FB+4*ks
                    a(f"v_mfma_f32_32x32x16_bf16 v[{acc}:{acc+15}], v[{rb}:{rb+3}], v[{ra}:{ra+3}], v[{acc}:{acc+15}]")
        interleave(a, capture(a,prim), capture(a,fill))
    tsa(a,4)
    a("s_nop 15")
    a("s_barrier")
    tsa(a,5)
    HP=272
    a(f"v_lshl_add_u32 v20, v10, 6, v8")
    a(f"v_mul_u32_u24 v20, {HP}, v20")
    a("v_lshl_add_u32 v20, v11, 6, v20")
    a("v_lshl_add_u32 v20, v9, 3, v20")
    k=0
    for mt in range(2):
        acc=ACC+16*mt; s0=26+2*mt
        for q in range(4):
            t=48+2*(k%4); k+=1
            for e in range(4):
                r=acc+4*q+e
                a(f"v_max_f32 v{r}, 0, v{r}")
            a(f"v_cvt_pk_bf16_f32 v{t}, v{acc+4*q}, v{acc+4*q+1}")
            a(f"v_cvt_pk_bf16_f32 v{t+1}, v{acc+4*q+2}, v{acc+4*q+3}")
            a(f"ds_write_b64 v20, v[{t}:{t+1}] offset:{2048+mt*32*HP+16*q}")
    a("s_waitcnt lgkmcnt(0)")
    a("s_barrier")
    a("v_lshrrev_b32 v21, 4, v0")
    a("v_and_b32 v22, 15, v0")
    a(f"v_mul_u32_u24 v23, {HP}, v21")
    a("v_lshl_add_u32 v23, v22, 4, v23")
    for j in range(4):
        a(f"ds_read_b128 v[{32+4*j}:{35+4*j}], v23 offset:{2048+j*32*HP}")
    a("s_lshl_b32 s23, s20, 7")
    a("v_add_u32 v21, s23, v21")
    a("v_mul_u32_u24 v21, 3584, v21")
    a("v_lshl_add_u32 v21, v22, 4, v21")
    a("s_lshl_b32 s23, s21, 8")
    a("v_add_u32 v21, s23, v21")
    for j in range(4):
        a(f"s_mov_b32 s25, {j*32*3584}")
        a(f"s_waitcnt lgkmcnt({3-j})")
        a(f"buffer_store_dwordx4 v[{32+4*j}:{35+4*j}], v21, s[16:19], s25 offen")
    a("s_waitcnt vmcnt(0)")
    tsa(a,6)
    tsa_flush(a,7)
    rt_end(a,0)

def ln_role(a):
    PITCH=928
    a("s_setprio 3")
    a(f"s_sub_u32 s3, s2, {G1_WGS+KG_WGS}")
    srd(a, 8, 4, 5, XN_SZ)
    ws_srd(a, 16, XNT_OFF, XN_SZ)
    a("""
    v_lshrrev_b32 v2, 3, v0
    v_and_b32 v3, 7, v0
    s_lshl_b32 s20, s3, 6
    v_add_u32 v4, s20, v2
    v_mul_u32_u24 v1, 896, v4
    v_lshl_add_u32 v1, v3, 4, v1
    """)
    for i in range(7):
        a(f"buffer_load_dwordx4 v[{16+4*i}:{19+4*i}], v1, s[8:11], 0 offen offset:{i*128}")
    a("v_mov_b32 v5, 0x3f803f80")
    a("v_mov_b32 v6, 0")
    a("v_mov_b32 v7, 0")
    a("s_waitcnt vmcnt(0)")
    for i in range(28):
        a(f"v_dot2_f32_bf16 v{6+(i&1)}, v{16+i}, v5, v{6+(i&1)}")
    a("s_nop 3")
    a("v_add_f32 v6, v6, v7")
    dpp_reduce8(a, 6)
    a(f"v_mul_f32 v6, {hex(f2u(1.0/448))}, v6")
    a("v_mov_b32 v7, v6")
    for i in range(28):
        a(f"v_lshlrev_b32 v{44+2*i}, 16, v{16+i}")
        a(f"v_and_b32 v{45+2*i}, 0xffff0000, v{16+i}")
    a("v_mov_b32 v8, 0")
    a("v_mov_b32 v9, 0")
    for i in range(28):
        a(f"v_pk_add_f32 v[10:11], v[{44+2*i}:{45+2*i}], v[6:7] neg_lo:[0,1] neg_hi:[0,1]")
        a("v_pk_fma_f32 v[8:9], v[10:11], v[10:11], v[8:9]")
    a("v_add_f32 v8, v8, v9")
    dpp_reduce8(a, 8)
    a(f"v_mul_f32 v8, {hex(f2u(1.0/448))}, v8")
    bf16r(a, 8, 8)
    a(f"v_add_f32 v8, {hex(f2u(1e-5))}, v8")
    bf16r(a, 8, 8)
    a("v_sqrt_f32 v8, v8")
    a("s_nop 0")
    bf16r(a, 8, 8)
    a("v_rcp_f32 v12, v8")
    a("v_mov_b32 v9, v8")
    bf16r(a, 6, 6)
    a("v_mov_b32 v7, v6")
    a("v_mov_b32 v13, v12")
    for i in range(28):
        lo, hi = 44+2*i, 45+2*i
        a(f"v_pk_add_f32 v[{lo}:{hi}], v[{lo}:{hi}], v[6:7] neg_lo:[0,1] neg_hi:[0,1]")
        a(f"v_cvt_pk_bf16_f32 v10, v{lo}, v{hi}")
        a(f"v_lshlrev_b32 v{lo}, 16, v10")
        a(f"v_and_b32 v{hi}, 0xffff0000, v10")
        a(f"v_pk_mul_f32 v[10:11], v[{lo}:{hi}], v[12:13]")
        a(f"v_pk_fma_f32 v[{lo}:{hi}], v[10:11], v[8:9], v[{lo}:{hi}] neg_lo:[1,0,0] neg_hi:[1,0,0]")
        a(f"v_pk_fma_f32 v[10:11], v[{lo}:{hi}], v[12:13], v[10:11]")
        a(f"v_cvt_pk_bf16_f32 v{16+i}, v10, v11")
    a(f"v_mul_u32_u24 v9, {PITCH}, v2")
    a("v_lshl_add_u32 v9, v3, 4, v9")
    ws_srd(a, 12, XN_OFF, XN_SZ)
    srd(a, 44, 82, 83, 256)
    for i in range(7):
        a(f"buffer_store_dwordx4 v[{16+4*i}:{19+4*i}], v1, s[12:15], 0 offen offset:{i*128} sc1")
        a(f"ds_write_b128 v9, v[{16+4*i}:{19+4*i}] offset:{i*128}")
    a("s_waitcnt vmcnt(0) lgkmcnt(0)")
    a("s_barrier")
    a("s_lshr_b32 s23, s3, 1")
    a("s_add_u32 s23, s23, 16")
    a("s_lshl_b32 s23, s23, 2")
    a("v_mov_b32 v10, s23")
    a("v_mov_b32 v11, 1")
    a("v_cmp_eq_u32 vcc, 0, v0")
    a("s_and_saveexec_b64 s[26:27], vcc")
    a("buffer_atomic_add v11, v10, s[44:47], 0 offen")
    a("s_mov_b64 exec, s[26:27]")
    a("""
    v_and_b32 v10, 63, v0
    v_lshrrev_b32 v11, 6, v0          ; wave
    v_lshrrev_b32 v15, 2, v11         ; th
    v_and_b32 v11, 3, v11             ; dq
    v_lshrrev_b32 v12, 4, v10         ; gam
    v_bfe_u32 v13, v10, 2, 2          ; r
    v_and_b32 v14, 3, v10             ; c
    v_lshl_add_u32 v13, v12, 3, v13   ; 8gam + r
    v_lshl_add_u32 v13, v15, 5, v13   ; + 32 th
    """)
    a(f"v_mul_u32_u24 v13, {PITCH}, v13")
    a("v_lshl_add_u32 v13, v14, 3, v13")
    a("v_lshl_add_u32 v13, v11, 5, v13")
    a("""
    v_and_b32 v14, 15, v10
    v_lshl_add_u32 v14, v11, 4, v14
    v_lshlrev_b32 v14, 12, v14
    v_lshl_add_u32 v14, v12, 4, v14
    v_lshl_add_u32 v14, v15, 6, v14
    s_lshl_b32 s21, s3, 7
    v_add_u32 v14, s21, v14
    """)
    for it in range(7):
        a(f"ds_read_b64_tr_b16 v[{16+4*it}:{17+4*it}], v13 offset:{it*128}")
        a(f"ds_read_b64_tr_b16 v[{18+4*it}:{19+4*it}], v13 offset:{it*128+4*PITCH}")
    a("s_waitcnt lgkmcnt(0)")
    for it in range(7):
        a(f"s_mov_b32 s22, {it*64*4096}")
        a(f"buffer_store_dwordx4 v[{16+4*it}:{19+4*it}], v14, s[16:19], s22 offen")
    rt_end(a,0)

def pk_cmul(a, d, x, y, t, negim=False):
    a(f"v_pk_mul_f32 v[{t}:{t+1}], v[{x}:{x+1}], v[{y}:{y+1}] op_sel:[1,1] op_sel_hi:[1,0]")
    if not negim:
        a(f"v_pk_fma_f32 v[{d}:{d+1}], v[{x}:{x+1}], v[{y}:{y+1}], v[{t}:{t+1}] op_sel:[0,0,0] op_sel_hi:[0,1,1] neg_lo:[0,0,1] neg_hi:[0,0,0]")
    else:
        a(f"v_pk_fma_f32 v[{d}:{d+1}], v[{x}:{x+1}], v[{y}:{y+1}], v[{t}:{t+1}] op_sel:[0,0,0] op_sel_hi:[0,1,1] neg_lo:[0,0,1] neg_hi:[1,0,1]")

def acc_exp(a, dst, x, t0, t1):
    L2E=1.4426950408889634
    hi=np.float32(L2E); lo=np.float32(L2E-float(hi))
    a(f"s_mov_b32 s30, {hex(f2u(float(hi)))}")
    a(f"s_mov_b32 s31, {hex(f2u(float(lo)))}")
    a(f"v_mul_f32 v{t0}, s30, v{x}")
    a(f"v_fma_f32 v{t1}, v{x}, s30, -v{t0}")
    a(f"v_fma_f32 v{t1}, v{x}, s31, v{t1}")
    a(f"v_exp_f32 v{dst}, v{t0}")
    a(f"v_mul_f32 v{t1}, {hex(f2u(0.6931471805599453))}, v{t1}")
    a(f"v_fma_f32 v{dst}, v{dst}, v{t1}, v{dst}")

def kgen_role(a):
    UP=528; WREG=16*UP; CHREG=4*WREG
    KD_OFF=12288
    a(f"s_sub_u32 s3, s2, {G1_WGS}")
    a(f"s_setprio {os.environ.get('KGP','2')}")
    srd(a, 8, 66, 67, 448*512)
    srd(a, 12, 68, 69, 448*512)
    srd(a, 16, 70, 71, 448*512)
    srd(a, 20, 72, 73, 448*512)
    srd(a, 24, 74, 75, 448*2)
    ws_srd(a, 44, KR_OFF, KR_SZ)
    a("""
    s_lshl_b32 s28, s3, 10
    v_lshlrev_b32 v1, 1, v0
    v_add_u32 v1, s28, v1
    v_lshrrev_b32 v3, 8, v0            ; chsel
    s_lshl_b32 s29, s3, 1
    v_add_u32 v2, s29, v3              ; channel d
    v_lshlrev_b32 v10, 1, v2
    buffer_load_ushort v4, v1, s[8:11], 0 offen
    buffer_load_ushort v5, v1, s[12:15], 0 offen
    buffer_load_ushort v6, v1, s[16:19], 0 offen
    buffer_load_ushort v7, v1, s[20:23], 0 offen
    buffer_load_ushort v8, v10, s[24:27], 0 offen
    """)
    a("v_and_b32 v1, 63, v0")
    a("v_lshrrev_b32 v0, 6, v0")
    a(f"v_mul_u32_u24 v14, {WREG}, v0")
    a("v_lshrrev_b32 v10, 4, v1")
    a("v_and_b32 v15, 15, v1")
    a(f"v_mul_u32_u24 v15, {UP}, v15")
    a("v_lshl_add_u32 v15, v10, 4, v15")
    a("v_add_u32 v15, v15, v14")
    a("v_lshl_add_u32 v14, v1, 2, v14")
    a("""
    s_waitcnt vmcnt(0)
    v_lshlrev_b32 v4, 16, v4
    v_lshlrev_b32 v5, 16, v5
    v_lshlrev_b32 v6, 16, v6
    v_lshlrev_b32 v7, 16, v7
    v_lshlrev_b32 v8, 16, v8
    """)
    if RT: a("s_memrealtime s[86:87]")
    acc_exp(a, 9, 8, 10, 11)
    bf16r(a, 9, 9)
    acc_exp(a, 12, 4, 10, 11)
    bf16r(a, 12, 12)
    a("v_mul_f32 v12, v12, v9")
    a("v_mul_f32 v13, v5, v9")
    a("v_mul_f32 v6, v6, v9")
    a("v_mul_f32 v7, v7, v9")
    a("v_add_f32 v6, v6, v6")
    a("v_add_f32 v7, v7, v7")
    a(f"v_mul_f32 v12, {hex(f2u(-1.4426950408889634))}, v12")
    a(f"v_mul_f32 v13, {hex(f2u(0.15915494309189535))}, v13")
    T=16
    def direct(d,p):
        a(f"v_mul_f32 v{T}, {hex(f2u(float(p)))}, v12")
        a(f"v_mul_f32 v{T+1}, {hex(f2u(float(p)))}, v13")
        a(f"v_exp_f32 v{T}, v{T}")
        a(f"v_fract_f32 v{T+1}, v{T+1}")
        a(f"v_cos_f32 v{d}, v{T+1}")
        a(f"v_sin_f32 v{d+1}, v{T+1}")
        a("s_nop 0")
        a(f"v_mul_f32 v{d}, v{d}, v{T}")
        a(f"v_mul_f32 v{d+1}, v{d+1}, v{T}")
    def split_write(src,row):
        a(f"v_cvt_pk_bf16_f32 v4, v{src}, v{src+1}")
        a("v_lshlrev_b32 v8, 16, v4")
        a("v_and_b32 v9, 0xffff0000, v4")
        a(f"v_pk_add_f32 v[8:9], v[{src}:{src+1}], v[8:9] neg_lo:[0,1] neg_hi:[0,1]")
        a("v_cvt_pk_bf16_f32 v5, v8, v9")
        a(f"v_add_u32 v10, {row*UP}, v14")
        a("ds_write2_b32 v10, v4, v5 offset0:0 offset1:64")
    BH=64; BL=80; AF=96; ACC=112
    V={1:20,2:22,4:24,8:26,3:28,5:30,6:32,7:34}
    direct(V[1],8); pk_cmul(a,V[2],V[1],V[1],T); pk_cmul(a,V[4],V[2],V[2],T); pk_cmul(a,V[8],V[4],V[4],T)
    pk_cmul(a,V[3],V[1],V[2],T); pk_cmul(a,V[5],V[4],V[1],T); pk_cmul(a,V[6],V[4],V[2],T); pk_cmul(a,V[7],V[4],V[3],T)
    a("v_mov_b32 v36, 1.0"); a("v_mov_b32 v37, 0")
    split_write(36,0)
    for j in range(1,9): split_write(V[j],j)
    for j in range(9,16):
        pk_cmul(a,36,V[8],V[j-8],T); split_write(36,j)
    a("s_waitcnt lgkmcnt(0)")
    for s in range(4):
        a(f"ds_read_b128 v[{BH+4*s}:{BH+4*s+3}], v15 offset:{64*s}")
        a(f"ds_read_b128 v[{BL+4*s}:{BL+4*s+3}], v15 offset:{256+64*s}")
    S={1:20,2:22,3:24,4:26,5:28,6:30,7:32}
    direct(S[1],1); pk_cmul(a,S[2],S[1],S[1],T); pk_cmul(a,S[4],S[2],S[2],T)
    pk_cmul(a,S[3],S[1],S[2],T); pk_cmul(a,S[5],S[1],S[4],T); pk_cmul(a,S[6],S[2],S[4],T); pk_cmul(a,S[7],S[3],S[4],T)
    G={1:48,2:50,4:52,8:54,16:56}
    direct(G[1],128)
    for m in (2,4,8,16): pk_cmul(a,G[m],G[m//2],G[m//2],T)
    W={0:6}
    for m in range(1,8): W[m]=32+2*m
    pk_cmul(a,W[1],6,G[1],T); pk_cmul(a,W[2],6,G[2],T); pk_cmul(a,W[3],W[1],G[2],T); pk_cmul(a,W[4],6,G[4],T)
    pk_cmul(a,W[5],W[1],G[4],T); pk_cmul(a,W[6],W[2],G[4],T); pk_cmul(a,W[7],W[3],G[4],T)
    for i in range(12): a(f"v_mov_b32 v{ACC+i}, 0")
    R=58
    rows={}
    rows[0]=[('ws',i//8,i%8) for i in range(16)]
    rows[1]=[('ws',2+i//4,2*(i%4)) for i in range(8)]+[('ws',4+i//2,4*(i%2)) for i in range(8)]
    rows[2]=[('wg',i,8) for i in range(8)]+[('wg',0,16)]+[None]*7
    for t in (2,1,0):
        a("s_waitcnt lgkmcnt(0)")
        for i,rw in enumerate(rows[t]):
            if rw is None:
                a(f"v_mov_b32 v{R}, 0"); a(f"v_mov_b32 v{R+1}, 0")
            elif rw[0]=='wg':
                pk_cmul(a,R,W[rw[1]],G[rw[2]],T,negim=True)
            elif rw[2]==0:
                a(f"v_mov_b32 v{R}, v{W[rw[1]]}")
                a(f"v_sub_f32 v{R+1}, 0, v{W[rw[1]]+1}")
            else:
                pk_cmul(a,R,W[rw[1]],S[rw[2]],T,negim=True)
            split_write(R,i)
        a("s_waitcnt lgkmcnt(0)")
        acc=ACC+4*t
        for s in range(4): a(f"ds_read_b128 v[{AF+4*s}:{AF+4*s+3}], v15 offset:{64*s}")
        for s in range(4):
            a(f"s_waitcnt lgkmcnt({3-s})")
            a(f"v_mfma_f32_16x16x32_bf16 v[{acc}:{acc+3}], v[{AF+4*s}:{AF+4*s+3}], v[{BH+4*s}:{BH+4*s+3}], v[{acc}:{acc+3}]")
            a(f"v_mfma_f32_16x16x32_bf16 v[{acc}:{acc+3}], v[{AF+4*s}:{AF+4*s+3}], v[{BL+4*s}:{BL+4*s+3}], v[{acc}:{acc+3}]")
        for s in range(4): a(f"ds_read_b128 v[{AF+4*s}:{AF+4*s+3}], v15 offset:{256+64*s}")
        for s in range(4):
            a(f"s_waitcnt lgkmcnt({3-s})")
            a(f"v_mfma_f32_16x16x32_bf16 v[{acc}:{acc+3}], v[{AF+4*s}:{AF+4*s+3}], v[{BH+4*s}:{BH+4*s+3}], v[{acc}:{acc+3}]")
    if RT: a("s_memrealtime s[88:89]")
    a("s_nop 15")
    a("s_barrier")
    a(f"v_mul_u32_u24 v16, {CHREG}, v3")
    a("v_and_b32 v17, 3, v0")
    a("v_mul_u32_u24 v18, 3072, v17")
    a("v_add_u32 v18, v18, v16")
    a("v_lshl_add_u32 v18, v1, 4, v18")
    for t in range(3):
        a(f"ds_write_b128 v18, v[{ACC+4*t}:{ACC+4*t+3}] offset:{t*1024}")
    a("s_waitcnt lgkmcnt(0)")
    a("s_barrier")
    skip=a.newlabel("kg_skip")
    a("v_readfirstlane_b32 s28, v17")
    a("s_nop 3")
    a("s_cmp_ge_u32 s28, 3")
    a(f"s_cbranch_scc1 {skip}")
    a("v_lshlrev_b32 v18, 10, v17")
    a("v_add_u32 v18, v18, v16")
    a("v_lshl_add_u32 v18, v1, 4, v18")
    for w in range(4):
        a(f"ds_read_b128 v[{20+4*w}:{23+4*w}], v18 offset:{w*3072}")
    a("s_waitcnt lgkmcnt(0)")
    for r in range(4):
        a(f"v_add_f32 v{20+r}, v{20+r}, v{24+r}")
        a(f"v_add_f32 v{28+r}, v{28+r}, v{32+r}")
        a(f"v_add_f32 v{20+r}, v{20+r}, v{28+r}")
    a("v_lshrrev_b32 v4, 4, v1")
    a("v_and_b32 v5, 15, v1")
    a("v_lshlrev_b32 v5, 5, v5")
    a("v_add_u32 v5, v5, v16")
    t1=a.newlabel("kg_t1"); t2=a.newlabel("kg_t2"); done=a.newlabel("kg_td")
    a("s_cmp_eq_u32 s28, 1"); a(f"s_cbranch_scc1 {t1}")
    a("s_cmp_eq_u32 s28, 2"); a(f"s_cbranch_scc1 {t2}")
    a("v_lshrrev_b32 v6, 1, v4"); a("v_lshlrev_b32 v6, 7, v6"); a("v_and_b32 v7, 1, v4"); a("v_lshl_add_u32 v6, v7, 2, v6")
    a("v_lshl_add_u32 v6, v6, 2, v5")
    for r in range(4): a(f"ds_write_b32 v6, v{20+r} offset:{KD_OFF+4*r}")
    a(f"s_branch {done}")
    a.label(t1)
    a("v_lshlrev_b32 v6, 7, v4"); a("v_add_u32 v6, 256, v6")
    a("v_lshlrev_b32 v7, 8, v4")
    a("v_cmp_gt_u32 vcc, 2, v4")
    a("s_nop 1")
    for r in range(4):
        a(f"v_add_u32 v8, {2*r}, v6")
        a(f"v_add_u32 v9, {128*(r//2)+4*(r%2)}, v7")
        a("v_cndmask_b32 v8, v9, v8, vcc")
        a("v_lshl_add_u32 v8, v8, 2, v5")
        a(f"ds_write_b32 v8, v{20+r} offset:{KD_OFF}")
    a(f"s_branch {done}")
    a.label(t2)
    a("v_lshlrev_b32 v6, 9, v4"); a("v_add_u32 v6, 1024, v6")
    for r in range(4):
        a(f"v_add_u32 v8, {128*r}, v6")
        a("v_min_u32 v8, 2176, v8")
        a("v_lshl_add_u32 v8, v8, 2, v5")
        a(f"ds_write_b32 v8, v{20+r} offset:{KD_OFF}")
    a.label(done)
    a.label(skip)
    a("s_waitcnt lgkmcnt(0)")
    a("s_barrier")
    a("v_lshl_add_u32 v18, v17, 6, v1")
    a("v_lshlrev_b32 v19, 3, v18")
    a("v_sub_u32 v19, 2047, v19")
    for e in range(8):
        a(f"v_subrev_u32 v4, {e}, v19")
        a("v_cvt_f32_u32 v4, v4")
        a("v_cvt_pk_bf16_f32 v4, v4, v4")
        a("v_lshlrev_b32 v4, 16, v4")
        a("v_cvt_u32_f32 v4, v4")
        a("v_lshl_add_u32 v4, v4, 2, v16")
        a(f"ds_read_b32 v{20+e}, v4 offset:{KD_OFF}")
    a(f"v_mul_u32_u24 v5, {KRP}, v2")
    a("v_lshl_add_u32 v5, v18, 4, v5")
    a("s_waitcnt lgkmcnt(0)")
    for e in range(4):
        a(f"v_cvt_pk_bf16_f32 v{28+e}, v{20+2*e}, v{21+2*e}")
    a("buffer_store_dwordx4 v[28:31], v5, s[44:47], 0 offen")
    a("v_mov_b32 v32, 0"); a("v_mov_b32 v33, 0"); a("v_mov_b32 v34, 0"); a("v_mov_b32 v35, 0")
    a("v_cmp_gt_u32 vcc, 8, v18")
    a("s_and_saveexec_b64 s[48:49], vcc")
    skipz=a.newlabel("kg_z")
    a(f"s_cbranch_execz {skipz}")
    a("s_mov_b32 s28, 4096")
    a("buffer_store_dwordx4 v[32:35], v5, s[44:47], s28 offen")
    a.label(skipz)
    rt_end(a,0)

def ka(name):
    a=Asm()
    EXIT[0]=f"{name}_exit"
    a.label(name)
    if RT: a("s_memrealtime s[90:91]")
    a("""
    s_load_dwordx16 s[64:79], s[0:1], 0
    s_load_dwordx2 s[80:81], s[0:1], 64
    s_load_dwordx2 s[82:83], s[0:1], 88
    s_load_dwordx2 s[84:85], s[0:1], 72
    s_load_dwordx2 s[6:7], s[0:1], 96
    s_waitcnt lgkmcnt(0)
    s_mov_b32 s4, s64
    s_mov_b32 s5, s65
    """)
    a(f"s_cmp_ge_u32 s2, {G1_WGS+KG_WGS+LN_WGS}")
    a(f"s_cbranch_scc1 {name}_exit")
    a(f"s_cmp_ge_u32 s2, {G1_WGS+KG_WGS}")
    a(f"s_cbranch_scc1 {name}_ln")
    a(f"s_cmp_ge_u32 s2, {G1_WGS}")
    a(f"s_cbranch_scc1 {name}_kgen")
    if 'g1' in DIS: a("s_endpgm")
    gemm1_role(a)
    a.label(f"{name}_kgen")
    if 'kgen' in DIS: a("s_endpgm")
    kgen_role(a)
    a.label(f"{name}_ln")
    if 'ln' in DIS: a("s_endpgm")
    ln_role(a)
    a.label(f"{name}_exit")
    a("s_endpgm")
    return a.text()
```

```python
from asm import *
from ka import *

G2_WGS=256
CONV_WGS=224
KB_LDS=81920
RP=272
CS=4160; KC_SZ=8*CS; XB_SZ=95*80; CH_SZ=KC_SZ+XB_SZ

RT=os.environ.get('RT','')
def rt_end(a, kid):
    if RT:
        a("s_waitcnt vmcnt(0) lgkmcnt(0)")
        a("s_memrealtime s[92:93]")
        a("s_mov_b64 exec, -1")
        a("s_waitcnt lgkmcnt(0)")
        a(f"s_add_u32 s96, s6, {0x1100000+kid*0x10000}")
        a("s_addc_u32 s97, s7, 0")
        a("s_mov_b32 s98, 0x10000")
        a("s_mov_b32 s99, 0x00020000")
        a("s_lshl_b32 s94, s2, 5")
        a("v_mov_b32 v4, s90\nv_mov_b32 v5, s91\nv_mov_b32 v6, s92\nv_mov_b32 v7, s93\nv_mov_b32 v8, s94")
        a("buffer_store_dwordx4 v[4:7], v8, s[96:99], 0 offen")
        a("s_nop 2")
        a("v_mov_b32 v4, s84\nv_mov_b32 v5, s85\nv_mov_b32 v6, s86\nv_mov_b32 v7, s87")
        a("buffer_store_dwordx4 v[4:7], v8, s[96:99], 0 offen offset:16")
    a("s_endpgm")

TS=os.environ.get('TS','')!=''
def ts(a, idx):
    if not TS: return
    a(f"s_memtime s[{60+2*idx}:{61+2*idx}]")
def ts_flush(a, n):
    if not TS: return
    a("s_waitcnt lgkmcnt(0)")
    ws_srd(a, 56, 0x1000000, 0x100000)
    a("s_lshl_b32 s80, s3, 8")
    a("v_lshrrev_b32 v160, 6, v0")
    a("v_lshlrev_b32 v160, 6, v160")
    a("v_add_u32 v160, s80, v160")
    for i in range(n):
        a(f"v_mov_b32 v162, s{60+2*i}")
        a(f"v_mov_b32 v163, s{61+2*i}")
        a(f"buffer_store_dwordx2 v[162:163], v160, s[56:59], 0 offen offset:{8*i}")
        a("s_nop 2")

def gemm2_role(a):
    ts(a,0)
    ws_srd(a, 8, H_OFF, H_SZ)
    ws_srd(a, 16, ST_OFF, XN_SZ)
    srd(a, 12, 68, 69, 1792*896)
    srd(a, 40, 64, 65, XN_SZ)
    srd(a, 44, 70, 71, XN_SZ)
    srd(a, 48, 72, 73, 256)
    a("""
    v_and_b32 v1, 63, v0
    v_lshrrev_b32 v2, 6, v0
    s_nop 0
    v_readfirstlane_b32 s22, v2
    s_nop 3
    """)
    claim_tile(a, 48, 32, EXIT[0], 22)
    a("s_mul_hi_u32 s20, s26, 0x24924925")
    a("s_mul_i32 s21, s20, 7")
    a("s_sub_u32 s21, s26, s21")
    a("s_lshl_b32 s27, s27, 2")
    a("s_add_u32 s20, s20, s27")
    a("s_mov_b32 s31, s26")
    a("""
    v_lshrrev_b32 v3, 3, v1
    v_lshl_add_u32 v3, v2, 4, v3
    s_lshl_b32 s23, s20, 6
    v_add_u32 v3, s23, v3
    v_mul_u32_u24 v3, 3584, v3
    v_and_b32 v4, 7, v1
    v_lshrrev_b32 v5, 4, v1
    v_xor_b32 v4, v4, v5
    v_lshl_add_u32 v3, v4, 4, v3       ; voffA i=0
    v_xor_b32 v4, 64, v3               ; voffA i=1
    v_lshrrev_b32 v5, 3, v1
    v_lshl_add_u32 v5, v2, 4, v5
    v_mul_u32_u24 v5, 896, v5
    v_bfe_u32 v6, v1, 2, 1
    v_bfe_u32 v7, v1, 4, 1
    v_xor_b32 v6, v6, v7
    v_and_b32 v7, 3, v1
    v_lshl_add_u32 v6, v6, 2, v7
    v_lshl_add_u32 v5, v6, 4, v5
    s_lshl_b32 s23, s21, 7
    v_add_u32 v5, s23, v5              ; voffB
    s_lshl_b32 s24, s22, 11            ; wave*2048
    """)
    NST=28; NBS=5; PS=17
    def issue(s):
        sl=(s%NBS)*16384
        a("s_lshl_b32 s26, s31, 7")
        a(f"s_mul_i32 s27, s31, {64*896}")
        for i in range(2):
            a(f"s_add_u32 m0, s24, {sl+i*1024}")
            a(f"s_add_u32 s25, s26, {i*8*3584}")
            a(f"buffer_load_dwordx4 v{3+i}, s[8:11], s25 offen lds")
            a.vm_issue(s)
        for i in range(2):
            a(f"s_add_u32 m0, s24, {sl+8192+i*1024}")
            a(f"s_add_u32 s25, s27, {i*8*896}")
            a(f"buffer_load_dwordx4 v5, s[12:15], s25 offen lds")
            a.vm_issue(s)
        a("s_add_u32 s31, s31, 1")
        a("s_cmp_eq_u32 s31, 28")
        a("s_cselect_b32 s31, 0, s31")
    for s in range(NBS): issue(s)
    a("""
    s_lshl_b32 s23, s20, 6
    v_add_u32 v22, s23, v1
    v_mul_u32_u24 v22, 896, v22
    v_lshl_add_u32 v22, v2, 5, v22
    s_lshl_b32 s23, s21, 7
    v_add_u32 v22, s23, v22
    buffer_load_dwordx4 v[24:27], v22, s[40:43], 0 offen
    buffer_load_dwordx4 v[28:31], v22, s[40:43], 0 offen offset:16
    """)
    a.vm_issue('x'); a.vm_issue('x')
    a("""
    v_and_b32 v8, 31, v1
    v_lshrrev_b32 v9, 5, v1
    v_lshlrev_b32 v12, 7, v8
    v_lshl_add_u32 v13, v2, 1, v9
    v_bfe_u32 v14, v8, 1, 3
    v_xor_b32 v13, v13, v14
    v_lshl_add_u32 v12, v13, 4, v12    ; vA
    v_add_u32 v13, 0x10000, v12
    v_bfe_u32 v14, v1, 2, 2            ; r
    v_lshl_add_u32 v15, v9, 3, v14
    v_lshl_add_u32 v15, v2, 4, v15
    v_lshlrev_b32 v15, 7, v15
    v_lshrrev_b32 v16, 1, v14
    v_lshl_add_u32 v15, v16, 6, v15
    v_bfe_u32 v16, v1, 4, 1
    v_lshl_add_u32 v15, v16, 5, v15
    v_and_b32 v16, 3, v1
    v_lshl_add_u32 v15, v16, 3, v15
    v_add_u32 v15, 8192, v15           ; vB0
    v_xor_b32 v16, 64, v15             ; vB1
    v_add_u32 v10, 0x10000, v15
    v_add_u32 v11, 0x10000, v16
    """)
    ACC=64
    for i in range(64): a(f"v_mov_b32 v{ACC+i}, 0")
    FAs=[32,128]; FBs=[40,136]
    a("""
    s_lshl_b32 s23, s21, 6
    v_lshlrev_b32 v17, 4, v2
    v_add_u32 v17, s23, v17
    v_lshlrev_b32 v17, 12, v17
    v_lshl_add_u32 v17, v1, 1, v17
    s_lshl_b32 s23, s20, 7
    v_add_u32 v17, s23, v17
    s_lshl_b32 s23, s21, 2
    v_mov_b32 v19, s23
    """)
    def reads(s):
        b=s%NBS; hi=(b==4); off=b*16384-(0x10000 if hi else 0)
        FA=FAs[s&1]; FB=FBs[s&1]
        for mt in range(2):
            r=FA+4*mt
            a(f"ds_read_b128 v[{r}:{r+3}], v{13 if hi else 12} offset:{off+mt*4096}")
        for nt in range(2):
            for i in range(2):
                r=FB+4*nt+2*i
                a(f"ds_read_b64_tr_b16 v[{r}:{r+1}], v{(10+nt) if hi else (15+nt)} offset:{off+4*i*128}")
    a.vm_wait(0)
    a("s_barrier")
    ts(a,1)
    if RT: a("s_memrealtime s[84:85]")
    reads(0)
    for s in range(NST):
        FA=FAs[s&1]; FB=FBs[s&1]
        if s+1<NST and a.vm_has(s+1): a.vm_wait(s+1)
        a("s_waitcnt lgkmcnt(0)")
        a("s_barrier")
        if s==4: ts(a,2)
        if s==16: ts(a,3)
        def fill():
            if s+NBS<NST: issue(s+NBS)
            if s+1<NST: reads(s+1)
        def prim():
            for mt in range(2):
                for nt in range(2):
                    acc=ACC+16*(2*mt+nt)
                    ra=FA+4*mt; rb=FB+4*nt
                    a(f"v_mfma_f32_32x32x16_bf16 v[{acc}:{acc+15}], v[{rb}:{rb+3}], v[{ra}:{ra+3}], v[{acc}:{acc+15}]")
        interleave(a, capture(a,prim), capture(a,fill))
        if s==NST-1:
            lp=a.newlabel("g2_poll"); ld=a.newlabel("g2_pd")
            if RT: a("s_memrealtime s[86:87]")
            lgo=a.newlabel("g2_go"); lw=a.newlabel("g2_w")
            a("s_cmp_lg_u32 s22, 0")
            a(f"s_cbranch_scc1 {lw}")
            a.label(lp)
            a("buffer_load_dword v18, v19, s[48:51], 0 offen sc1")
            a("s_waitcnt vmcnt(0)")
            a("v_readfirstlane_b32 s23, v18")
            a("s_nop 3")
            a(f"s_cmp_ge_u32 s23, {0 if 'conv' in DIS else 32}")
            a(f"s_cbranch_scc1 {lw}")
            a("s_sleep 16")
            a(f"s_branch {lp}")
            a.label(lw)
            a("s_barrier")
            for j in range(16):
                a(f"s_mov_b32 s25, {j*4096}")
                a(f"buffer_load_ushort v{144+j}, v17, s[16:19], s25 offen sc1")
            a.label(ld)
            a.vm_clear()
    ts(a,4)
    a("s_nop 15")
    a("s_barrier")
    ts(a,5)
    a(f"v_mul_u32_u24 v20, {64*RP}, v2")
    a(f"v_mul_u32_u24 v21, {RP}, v8")
    a("v_add_u32 v20, v20, v21")
    a("v_lshl_add_u32 v20, v9, 4, v20")
    for mt in range(2):
        for nt in range(2):
            acc=ACC+16*(2*mt+nt)
            for q in range(4):
                a(f"ds_write_b128 v20, v[{acc+4*q}:{acc+4*q+3}] offset:{mt*32*RP+nt*128+q*32}")
    a("s_waitcnt lgkmcnt(0)")
    a("s_barrier")
    a(f"v_mul_u32_u24 v20, {RP}, v1")
    a("v_lshl_add_u32 v20, v2, 6, v20")
    for wv in range(4):
        for j in range(4):
            r=64+16*wv+4*j
            a(f"ds_read_b128 v[{r}:{r+3}], v20 offset:{wv*64*RP+j*16}")
    a("s_waitcnt lgkmcnt(0)")
    for i in range(16):
        a(f"v_add_f32 v{64+i}, v{64+i}, v{80+i}")
        a(f"v_add_f32 v{96+i}, v{96+i}, v{112+i}")
        a(f"v_add_f32 v{64+i}, v{64+i}, v{96+i}")
    NL2E=hex(f2u(-1.4426950408889634))
    for p in range(8):
        m0,m1=64+2*p,65+2*p
        a(f"v_cvt_pk_bf16_f32 v4, v{m0}, v{m1}")
        a("v_lshlrev_b32 v5, 16, v4")
        a("v_and_b32 v6, 0xffff0000, v4")
        a(f"v_mul_f32 v7, {NL2E}, v5")
        a(f"v_mul_f32 v10, {NL2E}, v6")
        a("v_exp_f32 v7, v7")
        a("v_exp_f32 v10, v10")
        a("s_nop 0")
        a("v_add_f32 v7, 1.0, v7")
        a("v_add_f32 v10, 1.0, v10")
        a("v_rcp_f32 v7, v7")
        a("v_rcp_f32 v10, v10")
        a("s_nop 0")
        a("v_mul_f32 v5, v5, v7")
        a("v_mul_f32 v6, v6, v10")
        a("v_cvt_pk_bf16_f32 v4, v5, v6")
        a("v_lshlrev_b32 v5, 16, v4")
        a("v_and_b32 v6, 0xffff0000, v4")
        if p==0: a("s_waitcnt vmcnt(0)")
        a(f"v_lshlrev_b32 v7, 16, v{144+2*p}")
        a(f"v_lshlrev_b32 v10, 16, v{145+2*p}")
        a("v_mul_f32 v5, v5, v7")
        a("v_mul_f32 v6, v6, v10")
        a("v_cvt_pk_bf16_f32 v4, v5, v6")
        a("v_lshlrev_b32 v5, 16, v4")
        a("v_and_b32 v6, 0xffff0000, v4")
        a(f"v_lshlrev_b32 v7, 16, v{24+p}")
        a(f"v_and_b32 v10, 0xffff0000, v{24+p}")
        a("v_add_f32 v5, v5, v7")
        a("v_add_f32 v6, v6, v10")
        a(f"v_cvt_pk_bf16_f32 v{48+p}, v5, v6")
    a("buffer_store_dwordx4 v[48:51], v22, s[44:47], 0 offen")
    a("buffer_store_dwordx4 v[52:55], v22, s[44:47], 0 offen offset:16")
    a("s_waitcnt vmcnt(0)")
    ts(a,6)
    ts_flush(a,7)
    rt_end(a,1)

def conv_role(a):
    a("s_setprio 2")
    ws_srd(a, 8, KR_OFF, KR_SZ)
    ws_srd(a, 12, XNT_OFF, XN_SZ)
    ws_srd(a, 16, ST_OFF, XN_SZ)
    srd(a, 20, 66, 67, 448*2)
    srd(a, 48, 72, 73, 256)
    a("""
    v_lshrrev_b32 v1, 7, v0            ; chsel
    v_and_b32 v2, 127, v0              ; tau
    s_lshl_b32 s24, s3, 1
    v_add_u32 v3, s24, v1              ; channel d
    """)
    a(f"v_mul_u32_u24 v4, {KRP}, v3")
    a("v_lshl_add_u32 v4, v2, 4, v4")
    a("v_lshlrev_b32 v5, 12, v3")
    a("v_lshl_add_u32 v5, v2, 4, v5")
    a("v_lshlrev_b32 v6, 1, v3")
    a("buffer_load_dwordx4 v[16:19], v4, s[8:11], 0 offen")
    a("buffer_load_dwordx4 v[20:23], v4, s[8:11], 0 offen offset:16")
    a("buffer_load_dwordx4 v[24:27], v4, s[8:11], 0 offen offset:2048")
    a("buffer_load_dwordx4 v[28:31], v4, s[8:11], 0 offen offset:2064")
    a("buffer_load_dwordx4 v[32:35], v5, s[12:15], 0 offen")
    a("buffer_load_dwordx4 v[36:39], v5, s[12:15], 0 offen offset:2048")
    a("buffer_load_ushort v7, v6, s[20:23], 0 offen")
    a(f"v_mul_u32_u24 v8, {CH_SZ}, v1")
    a("v_lshl_add_u32 v9, v2, 4, v8")
    a("v_mov_b32 v40, 0\nv_mov_b32 v41, 0\nv_mov_b32 v42, 0\nv_mov_b32 v43, 0")
    a(f"ds_write_b128 v9, v[40:43] offset:{KC_SZ}")
    a("v_cmp_gt_u32 vcc, 27, v2")
    a("s_and_saveexec_b64 s[26:27], vcc")
    a(f"ds_write_b128 v9, v[40:43] offset:{KC_SZ+2048}")
    a("s_mov_b64 exec, s[26:27]")
    a("v_lshrrev_b32 v10, 2, v2")
    a(f"v_mul_u32_u24 v10, {CS}, v10")
    a("v_and_b32 v11, 3, v2")
    a("v_lshl_add_u32 v10, v11, 4, v10")
    a("v_add_u32 v10, v10, v8")
    a("v_cmp_gt_u32 vcc, 32, v2")
    a("s_and_saveexec_b64 s[26:27], vcc")
    a("ds_write_b128 v10, v[40:43] offset:4096")
    a("s_mov_b64 exec, s[26:27]")
    a("v_lshrrev_b32 v10, 2, v2")
    a("v_mul_u32_u24 v10, 80, v10")
    a("v_lshl_add_u32 v10, v11, 4, v10")
    a("v_add_u32 v10, v10, v8")
    a("s_waitcnt vmcnt(0)")
    a(f"ds_write_b128 v10, v[32:35] offset:{KC_SZ+31*80}")
    a(f"ds_write_b128 v10, v[36:39] offset:{KC_SZ+31*80+32*80}")
    for half in range(2):
        D=16+8*half
        E=44; D1=52; E1=60
        for k in range(7): a(f"v_alignbit_b32 v{E+k}, v{D+k+1}, v{D+k}, 16")
        for k in range(6): a(f"v_mov_b32 v{D1+k}, v{D+k+1}")
        for k in range(6): a(f"v_alignbit_b32 v{E1+k}, v{D+k+2}, v{D+k+1}, 16")
        src={0:D,4:D+2,2:D1,6:D1+2,1:E,5:E+2,3:E1,7:E1+2}
        for c in range(8):
            a(f"ds_write_b128 v9, v[{src[c]}:{src[c]+3}] offset:{c*CS+half*2048}")
    a("v_lshlrev_b32 v7, 16, v7")
    a("s_waitcnt lgkmcnt(0)")
    a("s_barrier")
    a("""
    v_and_b32 v10, 63, v0
    v_and_b32 v11, 31, v10
    v_lshrrev_b32 v12, 5, v10
    v_sub_u32 v13, 7, v11
    v_and_b32 v13, 7, v13
    """)
    a(f"v_mul_u32_u24 v13, {CS}, v13")
    a("v_lshl_add_u32 v13, v12, 4, v13")
    a("v_lshrrev_b32 v14, 3, v11")
    a("v_lshlrev_b32 v14, 4, v14")
    a("v_sub_u32 v13, v13, v14")
    a("v_add_u32 v13, 48, v13")
    a("v_add_u32 v13, v13, v8")
    a("v_mul_u32_u24 v14, 80, v11")
    a("v_lshl_add_u32 v14, v12, 4, v14")
    a(f"v_add_u32 v14, {KC_SZ}, v14")
    a("v_add_u32 v14, v14, v8")
    ACC0=64; ACC1=80
    for i in range(32): a(f"v_mov_b32 v{64+i}, 0")
    a("v_lshrrev_b32 v15, 6, v0")
    a("v_and_b32 v15, 1, v15")
    a("s_nop 0")
    a("v_readfirstlane_b32 s25, v15")
    lB=a.newlabel("cv_B"); lJ=a.newlabel("cv_J")
    a("s_nop 3")
    a("s_cmp_eq_u32 s25, 1")
    a(f"s_cbranch_scc1 {lB}")
    def mainloop(units):
        NS=3
        def issue(u):
            delta,hs=units[u]; base=96+24*(u%NS); n=0
            for q in range(2):
                a(f"ds_read_b128 v[{base+4*q}:{base+4*q+3}], v13 offset:{64*(63-delta)+32*q}"); n+=1
            for hi,h in enumerate(hs):
                for q in range(2):
                    r=base+8+8*hi+4*q
                    a(f"ds_read_b128 v[{r}:{r+3}], v14 offset:{80*(31+32*h-delta)+32*q}"); n+=1
            return n
        cnt=[]
        for u in range(min(NS-1,len(units))): cnt.append(issue(u))
        for u in range(len(units)):
            if u+NS-1<len(units): cnt.append(issue(u+NS-1))
            rem=sum(cnt[u+1:])
            a(f"s_waitcnt lgkmcnt({min(rem,15)})")
            delta,hs=units[u]; base=96+24*(u%NS)
            for q in range(2):
                for hi,h in enumerate(hs):
                    acc=ACC0 if h==0 else ACC1
                    r=base+8+8*hi+4*q
                    a(f"v_mfma_f32_32x32x16_bf16 v[{acc}:{acc+15}], v[{base+4*q}:{base+4*q+3}], v[{r}:{r+3}], v[{acc}:{acc+15}]")
    mainloop([(d,[0,1]) for d in range(16)]+[(d,[0]) for d in range(16,32)])
    a(f"s_branch {lJ}")
    a.label(lB)
    mainloop([(d,[1]) for d in range(16,64)])
    a.label(lJ)
    a("s_nop 15")
    a("s_barrier")
    a("v_lshl_add_u32 v15, v10, 4, v8")
    lB2=a.newlabel("cv_B2"); lJ2=a.newlabel("cv_J2")
    a("s_cmp_eq_u32 s25, 1")
    a(f"s_cbranch_scc1 {lB2}")
    for i in range(4): a(f"ds_write_b128 v15, v[{ACC1+4*i}:{ACC1+4*i+3}] offset:{i*1024}")
    a("s_waitcnt lgkmcnt(0)")
    a.label(lB2)
    a("s_barrier")
    a("s_cmp_eq_u32 s25, 0")
    a(f"s_cbranch_scc1 {lJ2}")
    for i in range(4): a(f"ds_read_b128 v[{96+4*i}:{96+4*i+3}], v15 offset:{i*1024}")
    a("s_waitcnt lgkmcnt(0)")
    for i in range(16): a(f"v_add_f32 v{ACC0+i}, v{ACC1+i}, v{96+i}")
    a.label(lJ2)
    a("v_lshlrev_b32 v16, 3, v12")
    a("v_sub_u32 v16, v14, v16")
    a("s_mul_i32 s26, s25, 2560")
    a("v_add_u32 v16, s26, v16")
    for rq in range(4): a(f"ds_read_b64 v[{96+2*rq}:{97+2*rq}], v16 offset:{80*31+16*rq}")
    a("v_lshlrev_b32 v17, 12, v3")
    a("v_lshl_add_u32 v17, v11, 6, v17")
    a("v_lshl_add_u32 v17, v12, 3, v17")
    a("s_lshl_b32 s26, s25, 11")
    a("v_add_u32 v17, s26, v17")
    a("s_waitcnt lgkmcnt(0)")
    for rq in range(4):
        for p in range(2):
            x=96+2*rq+p
            y0=ACC0+4*rq+2*p
            a(f"v_lshlrev_b32 v20, 16, v{x}")
            a(f"v_and_b32 v21, 0xffff0000, v{x}")
            a("v_mul_f32 v20, v20, v7")
            a("v_mul_f32 v21, v21, v7")
            a("v_cvt_pk_bf16_f32 v22, v20, v21")
            a(f"v_cvt_pk_bf16_f32 v23, v{y0}, v{y0+1}")
            a("v_lshlrev_b32 v20, 16, v22")
            a("v_and_b32 v21, 0xffff0000, v22")
            a("v_lshlrev_b32 v24, 16, v23")
            a("v_and_b32 v25, 0xffff0000, v23")
            a("v_add_f32 v20, v20, v24")
            a("v_add_f32 v21, v21, v25")
            a(f"v_cvt_pk_bf16_f32 v{26+2*(rq&1)+p}, v20, v21")
        a(f"buffer_store_dwordx2 v[{26+2*(rq&1)}:{27+2*(rq&1)}], v17, s[16:19], 0 offen offset:{16*rq} sc1")
    a("s_waitcnt vmcnt(0)")
    a("s_barrier")
    le=a.newlabel("cv_e")
    a("v_cmp_eq_u32 vcc, 0, v0")
    a("s_and_saveexec_b64 s[26:27], vcc")
    a(f"s_cbranch_execz {le}")
    a("s_lshr_b32 s26, s3, 5")
    a("s_lshl_b32 s26, s26, 2")
    a("v_mov_b32 v20, s26")
    a("v_mov_b32 v21, 1")
    a("buffer_atomic_add v21, v20, s[48:51], 0 offen")
    a.label(le)
    rt_end(a,1)

def kb(name):
    a=Asm()
    EXIT[0]=f"{name}_exit"
    a.label(name)
    if RT: a("s_memrealtime s[90:91]")
    a("""
    s_load_dwordx2 s[64:65], s[0:1], 0
    s_load_dwordx2 s[66:67], s[0:1], 48
    s_load_dwordx8 s[68:75], s[0:1], 72
    s_waitcnt lgkmcnt(0)
    s_mov_b32 s6, s74
    s_mov_b32 s7, s75
    """)
    a(f"s_cmp_ge_u32 s2, {G2_WGS+CONV_WGS}")
    a(f"s_cbranch_scc1 {name}_exit")
    a("s_mov_b32 s3, s2")
    a(f"s_cmp_lt_u32 s2, {G2_WGS}")
    a(f"s_cbranch_scc1 {name}_g2")
    a(f"s_sub_u32 s3, s2, {G2_WGS}")
    a(f"s_branch {name}_conv")
    a.label(f"{name}_g2")
    if 'g2' in DIS: a("s_endpgm")
    gemm2_role(a)
    a.label(f"{name}_conv")
    if 'conv' in DIS: a("s_endpgm")
    conv_role(a)
    a.label(f"{name}_exit")
    a("s_endpgm")
    return a.text()


def kconv(name):
    a=Asm()
    a.label(name)
    a("""
    s_load_dwordx2 s[64:65], s[0:1], 0
    s_load_dwordx2 s[66:67], s[0:1], 48
    s_load_dwordx8 s[68:75], s[0:1], 72
    s_waitcnt lgkmcnt(0)
    s_mov_b32 s6, s74
    s_mov_b32 s7, s75
    """)
    a(f"s_cmp_ge_u32 s2, {CONV_WGS}")
    a(f"s_cbranch_scc1 {name}_exit")
    a("s_mov_b32 s3, s2")
    conv_role(a)
    a.label(f"{name}_exit")
    a("s_endpgm")
    return a.text()

def kg2(name):
    a=Asm()
    a.label(name)
    a("""
    s_load_dwordx2 s[64:65], s[0:1], 0
    s_load_dwordx2 s[66:67], s[0:1], 48
    s_load_dwordx8 s[68:75], s[0:1], 72
    s_waitcnt lgkmcnt(0)
    s_mov_b32 s6, s74
    s_mov_b32 s7, s75
    """)
    a(f"s_cmp_ge_u32 s2, {G2_WGS}")
    a(f"s_cbranch_scc1 {name}_exit")
    a("s_mov_b32 s3, s2")
    DIS.append('conv')
    gemm2_role(a)
    DIS.remove('conv')
    a.label(f"{name}_exit")
    a("s_endpgm")
    return a.text()
```

```python
import sys,os
from asm import *
import k3
NAME="recurrent_scan__ssm_conv_s4d__dense_activation_relu__prompt"
hdr=open(f"cdna_kernels/{NAME}.s.ref").read().split("; Override launch geometry")[0]
s=hdr
NBS=int(os.environ.get("NBS","9"))
s+=f"; @launch kernel=ka_kernel grid=(256,1,1) block=(512,1,1) lds=69632\n"
s+=f"; @launch kernel=kb_kernel grid=(480,1,1) block=(256,1,1) lds=81920\n"
s+=f"; @launch kernel=kc_kernel grid=(256,1,1) block=(256,1,1) lds={NBS*16384}\n"
s+='.amdgcn_target "amdgcn-amd-amdhsa--gfx950"\n.text\n'
for n,f in (("ka_kernel",k3.k0),("kb_kernel",k3.k1),("kc_kernel",k3.k2)):
    s+=f".globl {n}\n.p2align 8\n.type {n},@function\n"+f(n)
s+='.section .rodata,"a"\n.p2align 6\n'
s+=kdesc("ka_kernel",128)+kdesc("kb_kernel",168)+kdesc("kc_kernel",168)
out=sys.argv[1] if len(sys.argv)>1 else f"cdna_kernels/{NAME}.s"
open(out,"w").write(s)
print("wrote",out,len(s))
```

```python
from asm import *
import ka as KA, kb as KB
from ka import *
from kb import CS,KC_SZ,XB_SZ,CH_SZ,RP

HEAD_A="""
    s_load_dwordx16 s[64:79], s[0:1], 0
    s_load_dwordx8 s[80:87], s[0:1], 64
    s_load_dwordx2 s[6:7], s[0:1], 96
    s_waitcnt lgkmcnt(0)
    s_mov_b32 s4, s64
    s_mov_b32 s5, s65
"""

CNT_OFF=0x1200000
def claim3(a, kern, exit_label, wave_sgpr):
    ws_srd(a, 52, CNT_OFF+kern*4096, 4096)
    a("s_getreg_b32 s27, hwreg(HW_REG_XCC_ID)")
    a("s_and_b32 s27, s27, 7")
    lskip=a.newlabel("cl_skip"); lp=a.newlabel("cl_loop"); ld=a.newlabel("cl_done"); lnx=a.newlabel("cl_nx"); lno=a.newlabel("cl_no")
    a(f"s_cmp_lg_u32 s{wave_sgpr}, 0")
    a(f"s_cbranch_scc1 {lskip}")
    a("s_mov_b64 s[30:31], exec")
    a("s_mov_b64 exec, 1")
    a("s_lshl_b32 s26, s27, 8")
    a("v_mov_b32 v4, s26")
    a("v_mov_b32 v5, 1")
    a("buffer_atomic_add v5, v4, s[52:55], 0 offen sc0")
    a("s_waitcnt vmcnt(0)")
    a("v_readfirstlane_b32 s26, v5")
    a("s_nop 3")
    a("s_cmp_lt_u32 s26, 28")
    a(f"s_cbranch_scc1 {ld}")
    a("s_mov_b64 exec, 0xff")
    a("v_lshlrev_b32 v4, 8, v0")
    a("buffer_load_dword v6, v4, s[52:55], 0 offen sc1")
    a("s_waitcnt vmcnt(0)")
    a("v_cmp_gt_u32 vcc, 28, v6")
    a("s_mov_b64 exec, 1")
    a("s_nop 3")
    a("s_mov_b32 s28, vcc_lo")
    a.label(lp)
    a("s_cmp_eq_u32 s28, 0")
    a(f"s_cbranch_scc1 {lno}")
    a("s_ff1_i32_b32 s27, s28")
    a("s_bitset0_b32 s28, s27")
    a("s_lshl_b32 s26, s27, 8")
    a("v_mov_b32 v4, s26")
    a("v_mov_b32 v5, 1")
    a("buffer_atomic_add v5, v4, s[52:55], 0 offen sc0")
    a("s_waitcnt vmcnt(0)")
    a("v_readfirstlane_b32 s26, v5")
    a("s_nop 3")
    a("s_cmp_lt_u32 s26, 28")
    a(f"s_cbranch_scc1 {ld}")
    a(f"s_branch {lp}")
    a.label(lno)
    a("s_mov_b32 s26, 0xff")
    a.label(ld)
    a("s_lshl_b32 s28, s27, 8")
    a("s_or_b32 s26, s26, s28")
    a("v_mov_b32 v4, 0")
    a("v_mov_b32 v5, s26")
    a("ds_write_b32 v4, v5")
    a("s_waitcnt lgkmcnt(0)")
    a("s_mov_b64 exec, s[30:31]")
    a.label(lskip)
    a("s_barrier")
    a("v_mov_b32 v4, 0")
    a("ds_read_b32 v5, v4")
    a("s_waitcnt lgkmcnt(0)")
    a("v_readfirstlane_b32 s26, v5")
    a("s_barrier")
    a("s_lshr_b32 s27, s26, 8")
    a("s_and_b32 s26, s26, 0xff")
    a("s_cmp_eq_u32 s26, 0xff")
    a(f"s_cbranch_scc1 {exit_label}")

def gemm1_256(a, exit_label):
    NST=14; NSL=10; NP=28
    a(f"s_setprio {os.environ.get('G1P','0')}")
    ws_srd(a, 8, XN_OFF, XN_SZ)
    ws_srd(a, 16, H_OFF, H_SZ)
    srd(a, 12, 80, 81, 448*3584)
    srd(a, 44, 86, 87, 256)
    a("""
    v_and_b32 v1, 63, v0
    v_lshrrev_b32 v2, 6, v0
    s_nop 0
    v_readfirstlane_b32 s22, v2
    s_nop 3
    """)
    claim3(a, 0, exit_label, 22)
    if RT: a("s_memrealtime s[56:57]")
    a("s_cmp_ge_u32 s26, 14")
    a("s_cselect_b32 s20, 1, 0")
    a("s_mul_i32 s21, s20, 14")
    a("s_sub_u32 s21, s26, s21")
    a("s_lshl_b32 s27, s27, 1")
    a("s_add_u32 s20, s20, s27")
    a("s_mov_b32 s29, s26")
    a("""
    v_lshrrev_b32 v3, 3, v1
    v_lshl_add_u32 v3, v2, 4, v3
    s_lshl_b32 s23, s20, 7
    v_add_u32 v3, s23, v3
    v_mul_u32_u24 v3, 896, v3
    v_and_b32 v4, 7, v1
    v_lshrrev_b32 v5, 4, v1
    v_xor_b32 v4, v4, v5
    v_lshl_add_u32 v3, v4, 4, v3       ; voffA i=0
    v_xor_b32 v4, 64, v3               ; voffA i=1  (896 = 7*128)
    v_bfe_u32 v6, v1, 4, 2
    v_lshrrev_b32 v5, 4, v1
    v_lshl_add_u32 v5, v2, 3, v5       ; krow = 8w + l/16 (+4i)
    v_mul_u32_u24 v5, 3584, v5
    v_bfe_u32 v7, v1, 2, 2
    v_xor_b32 v6, v6, v7
    v_and_b32 v7, 3, v1
    v_lshl_add_u32 v6, v6, 2, v7
    v_lshl_add_u32 v5, v6, 4, v5
    s_lshl_b32 s23, s21, 8
    v_add_u32 v5, s23, v5              ; voffB
    s_lshl_b32 s24, s22, 11
    """)
    a("s_mul_hi_u32 s30, s29, 0x24924925")
    a("s_mul_i32 s30, s30, 7")
    a("s_sub_u32 s31, s29, s30")
    for k in range(7):
        a(f"s_lshl_b32 s{32+k}, s31, 7")
        a("s_add_u32 s31, s31, 1")
        a("s_cmp_eq_u32 s31, 7")
        a("s_cselect_b32 s31, 0, s31")
    def issue(p):
        c=p//4; k=p%4; sl=p%NSL
        if k not in (1,2): a(f"s_mul_i32 s30, s{32+c}, 1792")
        for i in range(2):
            a(f"s_add_u32 m0, s24, {sl*8192+i*1024}")
            if k in (1,2):
                a(f"s_add_u32 s25, s{32+c}, {(k-1)*64*896+i*8*896}")
                a(f"buffer_load_dwordx4 v{3+i}, s[8:11], s25 offen lds")
            else:
                a(f"s_add_u32 s25, s30, {(32*3584 if k==3 else 0)+i*4*3584}")
                a(f"buffer_load_dwordx4 v5, s[12:15], s25 offen lds")
            a.vm_issue(p)
    for p in range(NSL): issue(p)
    a("""
    v_and_b32 v8, 31, v1               ; m / n
    v_lshrrev_b32 v9, 5, v1            ; g
    v_lshrrev_b32 v10, 1, v2           ; wr
    v_and_b32 v11, 1, v2               ; wc
    s_lshr_b32 s28, s22, 1
    v_lshlrev_b32 v12, 7, v8
    v_bfe_u32 v13, v8, 1, 3
    v_xor_b32 v13, v13, v9
    v_lshl_add_u32 v12, v13, 4, v12
    v_bfe_u32 v14, v1, 2, 2            ; r
    v_lshl_add_u32 v15, v9, 3, v14
    v_lshlrev_b32 v15, 8, v15
    v_lshlrev_b32 v16, 1, v11
    v_xor_b32 v16, v16, v14
    v_lshl_add_u32 v15, v16, 6, v15
    v_bfe_u32 v16, v1, 4, 1
    v_lshl_add_u32 v15, v16, 5, v15
    v_and_b32 v16, 3, v1
    v_lshl_add_u32 v15, v16, 3, v15
    """)
    ACC=64
    for i in range(64): a(f"v_mov_b32 v{ACC+i}, 0")
    FAs=[32,128]; FBs=[48,144]
    def reads(s):
        c=s//2; h=s%2
        FA=FAs[s&1]; FB=FBs[s&1]
        pB=4*c+(3 if h else 0)
        sl0=((4*c+1)%NSL)*8192; sl1=((4*c+2)%NSL)*8192
        a(f"s_mov_b32 s26, {sl0}")
        a(f"s_mov_b32 s27, {sl1}")
        a("s_cmp_eq_u32 s28, 0")
        a("s_cselect_b32 s26, s26, s27")
        a(f"v_xor_b32 v17, {64*h}, v12")
        a("v_add_u32 v17, s26, v17")
        a("v_xor_b32 v18, 32, v17")
        a(f"v_add_u32 v19, {(pB%NSL)*8192}, v15")
        a("v_xor_b32 v20, 64, v19")
        for ks in range(2):
            for mt in range(2):
                r=FA+8*ks+4*mt
                a(f"ds_read_b128 v[{r}:{r+3}], v{17+ks} offset:{mt*4096}")
            for nt in range(2):
                for i in range(2):
                    r=FB+8*ks+4*nt+2*i
                    a(f"ds_read_b64_tr_b16 v[{r}:{r+1}], v{19+nt} offset:{(16*ks+4*i)*256}")
    def needs(s):
        c=s//2
        return [4*c+3] if s%2 else [4*c,4*c+1,4*c+2]
    def wait_stage(s):
        idx=[i for i,t in enumerate(a.vm) if t in needs(s)]
        if idx: a.vm_wait(a.vm[max(idx)])
    wait_stage(0)
    a("s_barrier")
    if RT: a("s_memrealtime s[58:59]")
    reads(0)
    st={'nxt':NSL}
    for s in range(NST):
        FA=FAs[s&1]; FB=FBs[s&1]
        if s+1<NST: wait_stage(s+1)
        a("s_waitcnt lgkmcnt(0)")
        a("s_barrier")
        nfree = 1 if s%2==0 else 3
        def fill():
            for _ in range(nfree):
                if st['nxt']<NP: issue(st['nxt']); st['nxt']+=1
            if s+1<NST: reads(s+1)
        def prim():
            for ks in range(2):
                for mt in range(2):
                    for nt in range(2):
                        acc=ACC+16*(2*mt+nt)
                        ra=FA+8*ks+4*mt; rb=FB+8*ks+4*nt
                        a(f"v_mfma_f32_32x32x16_bf16 v[{acc}:{acc+15}], v[{rb}:{rb+3}], v[{ra}:{ra+3}], v[{acc}:{acc+15}]")
        interleave(a, capture(a,prim), capture(a,fill))
    if RT: a("s_memrealtime s[60:61]")
    a("s_nop 15")
    a("s_barrier")
    HP=272
    a(f"v_lshl_add_u32 v20, v10, 6, v8")
    a(f"v_mul_u32_u24 v20, {HP}, v20")
    a("v_lshl_add_u32 v20, v11, 7, v20")
    a("v_lshl_add_u32 v20, v9, 3, v20")
    k=0
    for mt in range(2):
        for nt in range(2):
            acc=ACC+16*(2*mt+nt)
            for q in range(4):
                t=48+2*(k%4); k+=1
                for e in range(4): a(f"v_max_f32 v{acc+4*q+e}, 0, v{acc+4*q+e}")
                a(f"v_cvt_pk_bf16_f32 v{t}, v{acc+4*q}, v{acc+4*q+1}")
                a(f"v_cvt_pk_bf16_f32 v{t+1}, v{acc+4*q+2}, v{acc+4*q+3}")
                a(f"ds_write_b64 v20, v[{t}:{t+1}] offset:{mt*32*HP+nt*64+16*q}")
    a("s_waitcnt lgkmcnt(0)")
    a("s_barrier")
    a("v_lshrrev_b32 v21, 4, v0")
    a("v_and_b32 v22, 15, v0")
    a(f"v_mul_u32_u24 v23, {HP}, v21")
    a("v_lshl_add_u32 v23, v22, 4, v23")
    for j in range(8):
        a(f"ds_read_b128 v[{64+4*j}:{67+4*j}], v23 offset:{j*16*HP}")
    a("s_lshl_b32 s23, s20, 7")
    a("v_add_u32 v21, s23, v21")
    a("v_mul_u32_u24 v21, 3584, v21")
    a("v_lshl_add_u32 v21, v22, 4, v21")
    a("s_lshl_b32 s23, s21, 8")
    a("v_add_u32 v21, s23, v21")
    for j in range(8):
        a(f"s_mov_b32 s25, {j*16*3584}")
        a(f"s_waitcnt lgkmcnt({7-j})")
        a(f"buffer_store_dwordx4 v[{64+4*j}:{67+4*j}], v21, s[16:19], s25 offen")
    rt_end(a,1)

def conv3(a):
    a(f"s_setprio {os.environ.get('CVP','2')}")
    ws_srd(a, 8, KR_OFF, KR_SZ)
    ws_srd(a, 12, XNT_OFF, XN_SZ)
    ws_srd(a, 16, ST_OFF, XN_SZ)
    srd(a, 20, 76, 77, 448*2)
    a("""
    v_lshrrev_b32 v1, 7, v0            ; chsel
    v_and_b32 v2, 127, v0              ; tau
    s_lshl_b32 s24, s3, 1
    v_add_u32 v3, s24, v1              ; channel d
    """)
    a(f"v_mul_u32_u24 v4, {KRP}, v3")
    a("v_lshl_add_u32 v4, v2, 4, v4")
    a("v_lshlrev_b32 v5, 12, v3")
    a("v_lshl_add_u32 v5, v2, 4, v5")
    a("v_lshlrev_b32 v6, 1, v3")
    a("buffer_load_dwordx4 v[16:19], v4, s[8:11], 0 offen")
    a("buffer_load_dwordx4 v[20:23], v4, s[8:11], 0 offen offset:16")
    a("buffer_load_dwordx4 v[24:27], v4, s[8:11], 0 offen offset:2048")
    a("buffer_load_dwordx4 v[28:31], v4, s[8:11], 0 offen offset:2064")
    a("buffer_load_dwordx4 v[32:35], v5, s[12:15], 0 offen")
    a("buffer_load_dwordx4 v[36:39], v5, s[12:15], 0 offen offset:2048")
    a("buffer_load_ushort v7, v6, s[20:23], 0 offen")
    a(f"v_mul_u32_u24 v8, {CH_SZ}, v1")
    a("v_lshl_add_u32 v9, v2, 4, v8")
    a("v_mov_b32 v40, 0\nv_mov_b32 v41, 0\nv_mov_b32 v42, 0\nv_mov_b32 v43, 0")
    a(f"ds_write_b128 v9, v[40:43] offset:{KC_SZ}")
    a("v_cmp_gt_u32 vcc, 27, v2")
    a("s_and_saveexec_b64 s[26:27], vcc")
    a(f"ds_write_b128 v9, v[40:43] offset:{KC_SZ+2048}")
    a("s_mov_b64 exec, s[26:27]")
    a("v_lshrrev_b32 v10, 2, v2")
    a(f"v_mul_u32_u24 v10, {CS}, v10")
    a("v_and_b32 v11, 3, v2")
    a("v_lshl_add_u32 v10, v11, 4, v10")
    a("v_add_u32 v10, v10, v8")
    a("v_cmp_gt_u32 vcc, 32, v2")
    a("s_and_saveexec_b64 s[26:27], vcc")
    a("ds_write_b128 v10, v[40:43] offset:4096")
    a("s_mov_b64 exec, s[26:27]")
    a("v_lshrrev_b32 v10, 2, v2")
    a("v_mul_u32_u24 v10, 80, v10")
    a("v_lshl_add_u32 v10, v11, 4, v10")
    a("v_add_u32 v10, v10, v8")
    a("s_waitcnt vmcnt(0)")
    a(f"ds_write_b128 v10, v[32:35] offset:{KC_SZ+31*80}")
    a(f"ds_write_b128 v10, v[36:39] offset:{KC_SZ+31*80+32*80}")
    for half in range(2):
        D=16+8*half
        E=44; D1=52; E1=60
        for k in range(7): a(f"v_alignbit_b32 v{E+k}, v{D+k+1}, v{D+k}, 16")
        for k in range(6): a(f"v_mov_b32 v{D1+k}, v{D+k+1}")
        for k in range(6): a(f"v_alignbit_b32 v{E1+k}, v{D+k+2}, v{D+k+1}, 16")
        src={0:D,4:D+2,2:D1,6:D1+2,1:E,5:E+2,3:E1,7:E1+2}
        for c in range(8):
            a(f"ds_write_b128 v9, v[{src[c]}:{src[c]+3}] offset:{c*CS+half*2048}")
    a("v_lshlrev_b32 v7, 16, v7")
    a("s_waitcnt lgkmcnt(0)")
    a("s_barrier")
    a("""
    v_and_b32 v10, 63, v0
    v_and_b32 v11, 31, v10
    v_lshrrev_b32 v12, 5, v10
    v_sub_u32 v13, 7, v11
    v_and_b32 v13, 7, v13
    """)
    a(f"v_mul_u32_u24 v13, {CS}, v13")
    a("v_lshl_add_u32 v13, v12, 4, v13")
    a("v_lshrrev_b32 v14, 3, v11")
    a("v_lshlrev_b32 v14, 4, v14")
    a("v_sub_u32 v13, v13, v14")
    a("v_add_u32 v13, 48, v13")
    a("v_add_u32 v13, v13, v8")
    a("v_mul_u32_u24 v14, 80, v11")
    a("v_lshl_add_u32 v14, v12, 4, v14")
    a(f"v_add_u32 v14, {KC_SZ}, v14")
    a("v_add_u32 v14, v14, v8")
    ACC0=64; ACC1=80
    for i in range(32): a(f"v_mov_b32 v{64+i}, 0")
    a("v_lshrrev_b32 v15, 6, v0")
    a("v_and_b32 v15, 1, v15")
    a("s_nop 0")
    a("v_readfirstlane_b32 s25, v15")
    lB=a.newlabel("cv_B"); lJ=a.newlabel("cv_J")
    a("s_nop 3")
    a("s_cmp_eq_u32 s25, 1")
    a(f"s_cbranch_scc1 {lB}")
    def mainloop(units):
        NS=3
        def issue(u):
            delta,hs=units[u]; base=96+24*(u%NS); n=0
            for q in range(2):
                a(f"ds_read_b128 v[{base+4*q}:{base+4*q+3}], v13 offset:{64*(63-delta)+32*q}"); n+=1
            for hi,h in enumerate(hs):
                for q in range(2):
                    r=base+8+8*hi+4*q
                    a(f"ds_read_b128 v[{r}:{r+3}], v14 offset:{80*(31+32*h-delta)+32*q}"); n+=1
            return n
        cnt=[]
        for u in range(min(NS-1,len(units))): cnt.append(issue(u))
        for u in range(len(units)):
            if u+NS-1<len(units): cnt.append(issue(u+NS-1))
            rem=sum(cnt[u+1:])
            a(f"s_waitcnt lgkmcnt({min(rem,15)})")
            delta,hs=units[u]; base=96+24*(u%NS)
            for q in range(2):
                for hi,h in enumerate(hs):
                    acc=ACC0 if h==0 else ACC1
                    r=base+8+8*hi+4*q
                    a(f"v_mfma_f32_32x32x16_bf16 v[{acc}:{acc+15}], v[{base+4*q}:{base+4*q+3}], v[{r}:{r+3}], v[{acc}:{acc+15}]")
    mainloop([(d,[0,1]) for d in range(16)]+[(d,[0]) for d in range(16,32)])
    a(f"s_branch {lJ}")
    a.label(lB)
    mainloop([(d,[1]) for d in range(16,64)])
    a.label(lJ)
    a("s_nop 15")
    a("s_barrier")
    a("v_lshl_add_u32 v15, v10, 4, v8")
    lB2=a.newlabel("cv_B2"); lJ2=a.newlabel("cv_J2")
    a("s_cmp_eq_u32 s25, 1")
    a(f"s_cbranch_scc1 {lB2}")
    for i in range(4): a(f"ds_write_b128 v15, v[{ACC1+4*i}:{ACC1+4*i+3}] offset:{i*1024}")
    a("s_waitcnt lgkmcnt(0)")
    a.label(lB2)
    a("s_barrier")
    a("s_cmp_eq_u32 s25, 0")
    a(f"s_cbranch_scc1 {lJ2}")
    for i in range(4): a(f"ds_read_b128 v[{96+4*i}:{96+4*i+3}], v15 offset:{i*1024}")
    a("s_waitcnt lgkmcnt(0)")
    for i in range(16): a(f"v_add_f32 v{ACC0+i}, v{ACC1+i}, v{96+i}")
    a.label(lJ2)
    a("v_lshlrev_b32 v16, 3, v12")
    a("v_sub_u32 v16, v14, v16")
    a("s_mul_i32 s26, s25, 2560")
    a("v_add_u32 v16, s26, v16")
    for rq in range(4): a(f"ds_read_b64 v[{96+2*rq}:{97+2*rq}], v16 offset:{80*31+16*rq}")
    a("v_lshlrev_b32 v17, 12, v3")
    a("v_lshl_add_u32 v17, v11, 6, v17")
    a("v_lshl_add_u32 v17, v12, 3, v17")
    a("s_lshl_b32 s26, s25, 11")
    a("v_add_u32 v17, s26, v17")
    a("s_waitcnt lgkmcnt(0)")
    for rq in range(4):
        for p in range(2):
            x=96+2*rq+p
            y0=ACC0+4*rq+2*p
            a(f"v_lshlrev_b32 v20, 16, v{x}")
            a(f"v_and_b32 v21, 0xffff0000, v{x}")
            a("v_mul_f32 v20, v20, v7")
            a("v_mul_f32 v21, v21, v7")
            a("v_cvt_pk_bf16_f32 v22, v20, v21")
            a(f"v_cvt_pk_bf16_f32 v23, v{y0}, v{y0+1}")
            a("v_lshlrev_b32 v20, 16, v22")
            a("v_and_b32 v21, 0xffff0000, v22")
            a("v_lshlrev_b32 v24, 16, v23")
            a("v_and_b32 v25, 0xffff0000, v23")
            a("v_add_f32 v20, v20, v24")
            a("v_add_f32 v21, v21, v25")
            a(f"v_cvt_pk_bf16_f32 v{26+2*(rq&1)+p}, v20, v21")
        a(f"buffer_store_dwordx2 v[{26+2*(rq&1)}:{27+2*(rq&1)}], v17, s[16:19], 0 offen offset:{16*rq}")
    if not os.environ.get('NOPF2'):
        ws_srd(a, 52, CNT_OFF+2*4096, 4096)
        srd(a, 48, 82, 83, 1792*896)
        a("s_getreg_b32 s27, hwreg(HW_REG_XCC_ID)")
        a("s_and_b32 s27, s27, 7")
        a("s_lshl_b32 s27, s27, 8")
        a("v_lshrrev_b32 v4, 6, v0")
        a("v_mov_b32 v4, s27")
        a("v_mov_b32 v5, 1")
        a("s_mov_b64 s[30:31], exec")
        a("s_mov_b64 exec, 1")
        a("buffer_atomic_add v5, v4, s[52:55], 0 offen sc0")
        a("s_waitcnt vmcnt(0)")
        a("s_mov_b64 exec, s[30:31]")
        a("v_readfirstlane_b32 s26, v5")
        a("v_and_b32 v6, 63, v0")
        a("v_lshlrev_b32 v6, 4, v6")
        a("s_mul_i32 s26, s26, 14336")
        for i2 in range(14):
            a("buffer_load_dwordx4 v[160:163], v6, s[48:51], s26 offen")
            if i2<13: a("s_add_u32 s26, s26, 1024")
    rt_end(a,1)


def gemm2_3(a, exit_label):
    ws_srd(a, 8, H_OFF, H_SZ)
    ws_srd(a, 16, ST_OFF, XN_SZ)
    srd(a, 12, 82, 83, 1792*896)
    srd(a, 40, 64, 65, XN_SZ)
    srd(a, 44, 84, 85, XN_SZ)
    srd(a, 48, 86, 87, 256)
    a("""
    v_and_b32 v1, 63, v0
    v_lshrrev_b32 v2, 6, v0
    s_nop 0
    v_readfirstlane_b32 s22, v2
    s_nop 3
    """)
    claim3(a, 1, exit_label, 22)
    if RT: a("s_memrealtime s[56:57]")
    a("s_mul_hi_u32 s20, s26, 0x24924925")
    a("s_mul_i32 s21, s20, 7")
    a("s_sub_u32 s21, s26, s21")
    a("s_lshl_b32 s27, s27, 2")
    a("s_add_u32 s20, s20, s27")
    a("s_mov_b32 s31, s26")
    a("""
    v_lshrrev_b32 v3, 3, v1
    v_lshl_add_u32 v3, v2, 4, v3
    s_lshl_b32 s23, s20, 6
    v_add_u32 v3, s23, v3
    v_mul_u32_u24 v3, 3584, v3
    v_and_b32 v4, 7, v1
    v_lshrrev_b32 v5, 4, v1
    v_xor_b32 v4, v4, v5
    v_lshl_add_u32 v3, v4, 4, v3       ; voffA i=0
    v_xor_b32 v4, 64, v3               ; voffA i=1
    v_lshrrev_b32 v5, 3, v1
    v_lshl_add_u32 v5, v2, 4, v5
    v_mul_u32_u24 v5, 896, v5
    v_bfe_u32 v6, v1, 2, 1
    v_bfe_u32 v7, v1, 4, 1
    v_xor_b32 v6, v6, v7
    v_and_b32 v7, 3, v1
    v_lshl_add_u32 v6, v6, 2, v7
    v_lshl_add_u32 v5, v6, 4, v5
    s_lshl_b32 s23, s21, 7
    v_add_u32 v5, s23, v5              ; voffB
    s_lshl_b32 s24, s22, 11            ; wave*2048
    """)
    NST=28; NBS=int(os.environ.get("NBS","9"))
    def issue(s):
        sl=(s%NBS)*16384
        a("s_lshl_b32 s26, s31, 7")
        a(f"s_mul_i32 s27, s31, {64*896}")
        for i in range(2):
            a(f"s_add_u32 m0, s24, {sl+i*1024}")
            a(f"s_add_u32 s25, s26, {i*8*3584}")
            a(f"buffer_load_dwordx4 v{3+i}, s[8:11], s25 offen lds")
            a.vm_issue(s)
        for i in range(2):
            a(f"s_add_u32 m0, s24, {sl+8192+i*1024}")
            a(f"s_add_u32 s25, s27, {i*8*896}")
            a(f"buffer_load_dwordx4 v5, s[12:15], s25 offen lds")
            a.vm_issue(s)
        a("s_add_u32 s31, s31, 1")
        a("s_cmp_eq_u32 s31, 28")
        a("s_cselect_b32 s31, 0, s31")
    for s in range(NBS): issue(s)
    a("""
    s_lshl_b32 s23, s20, 6
    v_add_u32 v22, s23, v1
    v_mul_u32_u24 v22, 896, v22
    v_lshl_add_u32 v22, v2, 5, v22
    s_lshl_b32 s23, s21, 7
    v_add_u32 v22, s23, v22
    buffer_load_dwordx4 v[24:27], v22, s[40:43], 0 offen
    buffer_load_dwordx4 v[28:31], v22, s[40:43], 0 offen offset:16
    """)
    a.vm_issue('x'); a.vm_issue('x')
    a("""
    v_and_b32 v8, 31, v1
    v_lshrrev_b32 v9, 5, v1
    v_lshlrev_b32 v12, 7, v8
    v_lshl_add_u32 v13, v2, 1, v9
    v_bfe_u32 v14, v8, 1, 3
    v_xor_b32 v13, v13, v14
    v_lshl_add_u32 v12, v13, 4, v12    ; vA
    v_add_u32 v13, 0x10000, v12
    v_bfe_u32 v14, v1, 2, 2            ; r
    v_lshl_add_u32 v15, v9, 3, v14
    v_lshl_add_u32 v15, v2, 4, v15
    v_lshlrev_b32 v15, 7, v15
    v_lshrrev_b32 v16, 1, v14
    v_lshl_add_u32 v15, v16, 6, v15
    v_bfe_u32 v16, v1, 4, 1
    v_lshl_add_u32 v15, v16, 5, v15
    v_and_b32 v16, 3, v1
    v_lshl_add_u32 v15, v16, 3, v15
    v_add_u32 v15, 8192, v15           ; vB0
    v_xor_b32 v16, 64, v15             ; vB1
    v_add_u32 v10, 0x10000, v15
    v_add_u32 v11, 0x10000, v16
    """)
    ACC=64
    for i in range(64): a(f"v_mov_b32 v{ACC+i}, 0")
    FAs=[32,128]; FBs=[40,136]
    a("""
    s_lshl_b32 s23, s21, 6
    v_lshlrev_b32 v17, 4, v2
    v_add_u32 v17, s23, v17
    v_lshlrev_b32 v17, 12, v17
    v_lshl_add_u32 v17, v1, 1, v17
    s_lshl_b32 s23, s20, 7
    v_add_u32 v17, s23, v17
    s_lshl_b32 s23, s21, 2
    v_mov_b32 v19, s23
    """)
    for j in range(16):
        a(f"s_mov_b32 s25, {j*4096}")
        a(f"buffer_load_ushort v{144+j}, v17, s[16:19], s25 offen")
        a.vm_issue('x')
    def reads(s):
        b=s%NBS
        FA=FAs[s&1]; FB=FBs[s&1]
        a(f"v_add_u32 v13, {b*16384}, v12")
        a(f"v_add_u32 v10, {b*16384}, v15")
        a(f"v_add_u32 v11, {b*16384}, v16")
        for mt in range(2):
            r=FA+4*mt
            a(f"ds_read_b128 v[{r}:{r+3}], v13 offset:{mt*4096}")
        for nt in range(2):
            for i in range(2):
                r=FB+4*nt+2*i
                a(f"ds_read_b64_tr_b16 v[{r}:{r+1}], v{10+nt} offset:{4*i*128}")
    a.vm_wait(0)
    a("s_barrier")
    if RT: a("s_memrealtime s[58:59]")
    reads(0)
    for s in range(NST):
        FA=FAs[s&1]; FB=FBs[s&1]
        if s+1<NST and a.vm_has(s+1): a.vm_wait(s+1)
        a("s_waitcnt lgkmcnt(0)")
        a("s_barrier")
        def fill():
            if s+NBS<NST: issue(s+NBS)
            if s+1<NST: reads(s+1)
        def prim():
            for mt in range(2):
                for nt in range(2):
                    acc=ACC+16*(2*mt+nt)
                    ra=FA+4*mt; rb=FB+4*nt
                    a(f"v_mfma_f32_32x32x16_bf16 v[{acc}:{acc+15}], v[{rb}:{rb+3}], v[{ra}:{ra+3}], v[{acc}:{acc+15}]")
        interleave(a, capture(a,prim), capture(a,fill))
    if RT: a("s_memrealtime s[60:61]")
    a("s_nop 15")
    a("s_barrier")
    a(f"v_mul_u32_u24 v20, {64*RP}, v2")
    a(f"v_mul_u32_u24 v21, {RP}, v8")
    a("v_add_u32 v20, v20, v21")
    a("v_lshl_add_u32 v20, v9, 4, v20")
    for mt in range(2):
        for nt in range(2):
            acc=ACC+16*(2*mt+nt)
            for q in range(4):
                a(f"ds_write_b128 v20, v[{acc+4*q}:{acc+4*q+3}] offset:{mt*32*RP+nt*128+q*32}")
    a("s_waitcnt lgkmcnt(0)")
    a("s_barrier")
    a(f"v_mul_u32_u24 v20, {RP}, v1")
    a("v_lshl_add_u32 v20, v2, 6, v20")
    for wv in range(4):
        for j in range(4):
            r=64+16*wv+4*j
            a(f"ds_read_b128 v[{r}:{r+3}], v20 offset:{wv*64*RP+j*16}")
    a("s_waitcnt lgkmcnt(0)")
    for i in range(16):
        a(f"v_add_f32 v{64+i}, v{64+i}, v{80+i}")
        a(f"v_add_f32 v{96+i}, v{96+i}, v{112+i}")
        a(f"v_add_f32 v{64+i}, v{64+i}, v{96+i}")
    NL2E=hex(f2u(-1.4426950408889634))
    for p in range(8):
        m0,m1=64+2*p,65+2*p
        a(f"v_cvt_pk_bf16_f32 v4, v{m0}, v{m1}")
        a("v_lshlrev_b32 v5, 16, v4")
        a("v_and_b32 v6, 0xffff0000, v4")
        a(f"v_mul_f32 v7, {NL2E}, v5")
        a(f"v_mul_f32 v10, {NL2E}, v6")
        a("v_exp_f32 v7, v7")
        a("v_exp_f32 v10, v10")
        a("s_nop 0")
        a("v_add_f32 v7, 1.0, v7")
        a("v_add_f32 v10, 1.0, v10")
        a("v_rcp_f32 v7, v7")
        a("v_rcp_f32 v10, v10")
        a("s_nop 0")
        a("v_mul_f32 v5, v5, v7")
        a("v_mul_f32 v6, v6, v10")
        a("v_cvt_pk_bf16_f32 v4, v5, v6")
        a("v_lshlrev_b32 v5, 16, v4")
        a("v_and_b32 v6, 0xffff0000, v4")
        if p==0: a("s_waitcnt vmcnt(0)")
        a(f"v_lshlrev_b32 v7, 16, v{144+2*p}")
        a(f"v_lshlrev_b32 v10, 16, v{145+2*p}")
        a("v_mul_f32 v5, v5, v7")
        a("v_mul_f32 v6, v6, v10")
        a("v_cvt_pk_bf16_f32 v4, v5, v6")
        a("v_lshlrev_b32 v5, 16, v4")
        a("v_and_b32 v6, 0xffff0000, v4")
        a(f"v_lshlrev_b32 v7, 16, v{24+p}")
        a(f"v_and_b32 v10, 0xffff0000, v{24+p}")
        a("v_add_f32 v5, v5, v7")
        a("v_add_f32 v6, v6, v10")
        a(f"v_cvt_pk_bf16_f32 v{48+p}, v5, v6")
    a("buffer_store_dwordx4 v[48:51], v22, s[44:47], 0 offen")
    a("buffer_store_dwordx4 v[52:55], v22, s[44:47], 0 offen offset:16")
    a("s_waitcnt vmcnt(0)")
    rt_end(a,2)


def ln3(a):
    PITCH=928
    a("s_setprio 3")
    srd(a, 8, 4, 5, XN_SZ)
    ws_srd(a, 16, XNT_OFF, XN_SZ)
    a("""
    v_lshrrev_b32 v2, 3, v0
    v_and_b32 v3, 7, v0
    s_lshl_b32 s20, s3, 6
    v_add_u32 v4, s20, v2
    v_mul_u32_u24 v1, 896, v4
    v_lshl_add_u32 v1, v3, 4, v1
    """)
    for i in range(7):
        a(f"buffer_load_dwordx4 v[{16+4*i}:{19+4*i}], v1, s[8:11], 0 offen offset:{i*128}")
    a("v_mov_b32 v5, 0x3f803f80")
    a("v_mov_b32 v6, 0")
    a("v_mov_b32 v7, 0")
    a("s_waitcnt vmcnt(0)")
    for i in range(28):
        a(f"v_dot2_f32_bf16 v{6+(i&1)}, v{16+i}, v5, v{6+(i&1)}")
    a("s_nop 3")
    a("v_add_f32 v6, v6, v7")
    dpp_reduce8(a, 6)
    a(f"v_mul_f32 v6, {hex(f2u(1.0/448))}, v6")
    a("v_mov_b32 v7, v6")
    for i in range(28):
        a(f"v_lshlrev_b32 v{44+2*i}, 16, v{16+i}")
        a(f"v_and_b32 v{45+2*i}, 0xffff0000, v{16+i}")
    a("v_mov_b32 v8, 0")
    a("v_mov_b32 v9, 0")
    for i in range(28):
        a(f"v_pk_add_f32 v[10:11], v[{44+2*i}:{45+2*i}], v[6:7] neg_lo:[0,1] neg_hi:[0,1]")
        a("v_pk_fma_f32 v[8:9], v[10:11], v[10:11], v[8:9]")
    a("v_add_f32 v8, v8, v9")
    dpp_reduce8(a, 8)
    a(f"v_mul_f32 v8, {hex(f2u(1.0/448))}, v8")
    bf16r(a, 8, 8)
    a(f"v_add_f32 v8, {hex(f2u(1e-5))}, v8")
    bf16r(a, 8, 8)
    a("v_sqrt_f32 v8, v8")
    a("s_nop 0")
    bf16r(a, 8, 8)
    a("v_rcp_f32 v12, v8")
    a("v_mov_b32 v9, v8")
    bf16r(a, 6, 6)
    a("v_mov_b32 v7, v6")
    a("v_mov_b32 v13, v12")
    for i in range(28):
        lo, hi = 44+2*i, 45+2*i
        a(f"v_pk_add_f32 v[{lo}:{hi}], v[{lo}:{hi}], v[6:7] neg_lo:[0,1] neg_hi:[0,1]")
        a(f"v_cvt_pk_bf16_f32 v10, v{lo}, v{hi}")
        a(f"v_lshlrev_b32 v{lo}, 16, v10")
        a(f"v_and_b32 v{hi}, 0xffff0000, v10")
        a(f"v_pk_mul_f32 v[10:11], v[{lo}:{hi}], v[12:13]")
        a(f"v_pk_fma_f32 v[{lo}:{hi}], v[10:11], v[8:9], v[{lo}:{hi}] neg_lo:[1,0,0] neg_hi:[1,0,0]")
        a(f"v_pk_fma_f32 v[10:11], v[{lo}:{hi}], v[12:13], v[10:11]")
        a(f"v_cvt_pk_bf16_f32 v{16+i}, v10, v11")
    a(f"v_mul_u32_u24 v9, {PITCH}, v2")
    a("v_lshl_add_u32 v9, v3, 4, v9")
    ws_srd(a, 12, XN_OFF, XN_SZ)
    for i in range(7):
        a(f"buffer_store_dwordx4 v[{16+4*i}:{19+4*i}], v1, s[12:15], 0 offen offset:{i*128}")
        a(f"ds_write_b128 v9, v[{16+4*i}:{19+4*i}] offset:{i*128}")
    a("s_waitcnt lgkmcnt(0)")
    a("s_barrier")
    a("""
    v_and_b32 v10, 63, v0
    v_lshrrev_b32 v11, 6, v0          ; wave
    v_lshrrev_b32 v15, 2, v11         ; th
    v_and_b32 v11, 3, v11             ; dq
    v_lshrrev_b32 v12, 4, v10         ; gam
    v_bfe_u32 v13, v10, 2, 2          ; r
    v_and_b32 v14, 3, v10             ; c
    v_lshl_add_u32 v13, v12, 3, v13   ; 8gam + r
    v_lshl_add_u32 v13, v15, 5, v13   ; + 32 th
    """)
    a(f"v_mul_u32_u24 v13, {PITCH}, v13")
    a("v_lshl_add_u32 v13, v14, 3, v13")
    a("v_lshl_add_u32 v13, v11, 5, v13")
    a("""
    v_and_b32 v14, 15, v10
    v_lshl_add_u32 v14, v11, 4, v14
    v_lshlrev_b32 v14, 12, v14
    v_lshl_add_u32 v14, v12, 4, v14
    v_lshl_add_u32 v14, v15, 6, v14
    s_lshl_b32 s21, s3, 7
    v_add_u32 v14, s21, v14
    """)
    for it in range(7):
        a(f"ds_read_b64_tr_b16 v[{16+4*it}:{17+4*it}], v13 offset:{it*128}")
        a(f"ds_read_b64_tr_b16 v[{18+4*it}:{19+4*it}], v13 offset:{it*128+4*PITCH}")
    a("s_waitcnt lgkmcnt(0)")
    for it in range(7):
        a(f"s_mov_b32 s22, {it*64*4096}")
        a(f"buffer_store_dwordx4 v[{16+4*it}:{19+4*it}], v14, s[16:19], s22 offen")
    rt_end(a,0)


def kgen3(a):
    UP=528; WREG=16*UP; CHREG=4*WREG
    KD_OFF=12288
    a(f"s_setprio {os.environ.get('KGP','2')}")
    srd(a, 8, 66, 67, 448*512)
    srd(a, 12, 68, 69, 448*512)
    srd(a, 16, 70, 71, 448*512)
    srd(a, 20, 72, 73, 448*512)
    srd(a, 24, 74, 75, 448*2)
    ws_srd(a, 44, KR_OFF, KR_SZ)
    a("""
    s_lshl_b32 s28, s3, 10
    v_lshlrev_b32 v1, 1, v0
    v_add_u32 v1, s28, v1
    v_lshrrev_b32 v3, 8, v0            ; chsel
    s_lshl_b32 s29, s3, 1
    v_add_u32 v2, s29, v3              ; channel d
    v_lshlrev_b32 v10, 1, v2
    buffer_load_ushort v4, v1, s[8:11], 0 offen
    buffer_load_ushort v5, v1, s[12:15], 0 offen
    buffer_load_ushort v6, v1, s[16:19], 0 offen
    buffer_load_ushort v7, v1, s[20:23], 0 offen
    buffer_load_ushort v8, v10, s[24:27], 0 offen
    """)
    a("v_and_b32 v1, 63, v0")
    a("v_lshrrev_b32 v0, 6, v0")
    a(f"v_mul_u32_u24 v14, {WREG}, v0")
    a("v_lshrrev_b32 v10, 4, v1")
    a("v_and_b32 v15, 15, v1")
    a(f"v_mul_u32_u24 v15, {UP}, v15")
    a("v_lshl_add_u32 v15, v10, 4, v15")
    a("v_add_u32 v15, v15, v14")
    a("v_lshl_add_u32 v14, v1, 2, v14")
    a("""
    s_waitcnt vmcnt(0)
    v_lshlrev_b32 v4, 16, v4
    v_lshlrev_b32 v5, 16, v5
    v_lshlrev_b32 v6, 16, v6
    v_lshlrev_b32 v7, 16, v7
    v_lshlrev_b32 v8, 16, v8
    """)
    if RT: a("s_memrealtime s[56:57]")
    if not os.environ.get('NOPF1'):
        srd(a, 48, 80, 81, 448*3584)
        a("s_lshr_b32 s23, s2, 3")
        a("s_mul_i32 s23, s23, 57344")
        a("v_lshl_add_u32 v60, v0, 6, v1")
        a("v_lshlrev_b32 v60, 4, v60")
        for i in range(7):
            a(f"buffer_load_dwordx4 v[124:127], v60, s[48:51], s23 offen")
            if i<6: a("s_add_u32 s23, s23, 8192")
        if not os.environ.get('NOPF2'):
            srd(a, 48, 82, 83, 1792*896)
            a("s_lshr_b32 s23, s2, 3")
            a("s_mul_i32 s23, s23, 57344")
            for i in range(7):
                a(f"buffer_load_dwordx4 v[124:127], v60, s[48:51], s23 offen")
                if i<6: a("s_add_u32 s23, s23, 8192")
    acc_exp(a, 9, 8, 10, 11)
    bf16r(a, 9, 9)
    acc_exp(a, 12, 4, 10, 11)
    bf16r(a, 12, 12)
    a("v_mul_f32 v12, v12, v9")
    a("v_mul_f32 v13, v5, v9")
    a("v_mul_f32 v6, v6, v9")
    a("v_mul_f32 v7, v7, v9")
    a("v_add_f32 v6, v6, v6")
    a("v_add_f32 v7, v7, v7")
    a(f"v_mul_f32 v12, {hex(f2u(-1.4426950408889634))}, v12")
    a(f"v_mul_f32 v13, {hex(f2u(0.15915494309189535))}, v13")
    T=16
    def direct(d,p):
        a(f"v_mul_f32 v{T}, {hex(f2u(float(p)))}, v12")
        a(f"v_mul_f32 v{T+1}, {hex(f2u(float(p)))}, v13")
        a(f"v_exp_f32 v{T}, v{T}")
        a(f"v_fract_f32 v{T+1}, v{T+1}")
        a(f"v_cos_f32 v{d}, v{T+1}")
        a(f"v_sin_f32 v{d+1}, v{T+1}")
        a("s_nop 0")
        a(f"v_mul_f32 v{d}, v{d}, v{T}")
        a(f"v_mul_f32 v{d+1}, v{d+1}, v{T}")
    def split_write(src,row):
        a(f"v_cvt_pk_bf16_f32 v4, v{src}, v{src+1}")
        a("v_lshlrev_b32 v8, 16, v4")
        a("v_and_b32 v9, 0xffff0000, v4")
        a(f"v_pk_add_f32 v[8:9], v[{src}:{src+1}], v[8:9] neg_lo:[0,1] neg_hi:[0,1]")
        a("v_cvt_pk_bf16_f32 v5, v8, v9")
        a(f"v_add_u32 v10, {row*UP}, v14")
        a("ds_write2_b32 v10, v4, v5 offset0:0 offset1:64")
    BH=64; BL=80; AF=96; ACC=112
    V={1:20,2:22,4:24,8:26,3:28,5:30,6:32,7:34}
    direct(V[1],8); pk_cmul(a,V[2],V[1],V[1],T); pk_cmul(a,V[4],V[2],V[2],T); pk_cmul(a,V[8],V[4],V[4],T)
    pk_cmul(a,V[3],V[1],V[2],T); pk_cmul(a,V[5],V[4],V[1],T); pk_cmul(a,V[6],V[4],V[2],T); pk_cmul(a,V[7],V[4],V[3],T)
    a("v_mov_b32 v36, 1.0"); a("v_mov_b32 v37, 0")
    split_write(36,0)
    for j in range(1,9): split_write(V[j],j)
    for j in range(9,16):
        pk_cmul(a,36,V[8],V[j-8],T); split_write(36,j)
    a("s_waitcnt lgkmcnt(0)")
    for s in range(4):
        a(f"ds_read_b128 v[{BH+4*s}:{BH+4*s+3}], v15 offset:{64*s}")
        a(f"ds_read_b128 v[{BL+4*s}:{BL+4*s+3}], v15 offset:{256+64*s}")
    S={1:20,2:22,3:24,4:26,5:28,6:30,7:32}
    direct(S[1],1); pk_cmul(a,S[2],S[1],S[1],T); pk_cmul(a,S[4],S[2],S[2],T)
    pk_cmul(a,S[3],S[1],S[2],T); pk_cmul(a,S[5],S[1],S[4],T); pk_cmul(a,S[6],S[2],S[4],T); pk_cmul(a,S[7],S[3],S[4],T)
    G={1:48,2:50,4:52,8:54,16:56}
    direct(G[1],128)
    for m in (2,4,8,16): pk_cmul(a,G[m],G[m//2],G[m//2],T)
    W={0:6}
    for m in range(1,8): W[m]=32+2*m
    pk_cmul(a,W[1],6,G[1],T); pk_cmul(a,W[2],6,G[2],T); pk_cmul(a,W[3],W[1],G[2],T); pk_cmul(a,W[4],6,G[4],T)
    pk_cmul(a,W[5],W[1],G[4],T); pk_cmul(a,W[6],W[2],G[4],T); pk_cmul(a,W[7],W[3],G[4],T)
    for i in range(12): a(f"v_mov_b32 v{ACC+i}, 0")
    R=58
    rows={}
    rows[0]=[('ws',i//8,i%8) for i in range(16)]
    rows[1]=[('ws',2+i//4,2*(i%4)) for i in range(8)]+[('ws',4+i//2,4*(i%2)) for i in range(8)]
    rows[2]=[('wg',i,8) for i in range(8)]+[('wg',0,16)]+[None]*7
    for t in (2,1,0):
        a("s_waitcnt lgkmcnt(0)")
        for i,rw in enumerate(rows[t]):
            if rw is None:
                a(f"v_mov_b32 v{R}, 0"); a(f"v_mov_b32 v{R+1}, 0")
            elif rw[0]=='wg':
                pk_cmul(a,R,W[rw[1]],G[rw[2]],T,negim=True)
            elif rw[2]==0:
                a(f"v_mov_b32 v{R}, v{W[rw[1]]}")
                a(f"v_sub_f32 v{R+1}, 0, v{W[rw[1]]+1}")
            else:
                pk_cmul(a,R,W[rw[1]],S[rw[2]],T,negim=True)
            split_write(R,i)
        a("s_waitcnt lgkmcnt(0)")
        acc=ACC+4*t
        for s in range(4): a(f"ds_read_b128 v[{AF+4*s}:{AF+4*s+3}], v15 offset:{64*s}")
        for s in range(4):
            a(f"s_waitcnt lgkmcnt({3-s})")
            a(f"v_mfma_f32_16x16x32_bf16 v[{acc}:{acc+3}], v[{AF+4*s}:{AF+4*s+3}], v[{BH+4*s}:{BH+4*s+3}], v[{acc}:{acc+3}]")
            a(f"v_mfma_f32_16x16x32_bf16 v[{acc}:{acc+3}], v[{AF+4*s}:{AF+4*s+3}], v[{BL+4*s}:{BL+4*s+3}], v[{acc}:{acc+3}]")
        for s in range(4): a(f"ds_read_b128 v[{AF+4*s}:{AF+4*s+3}], v15 offset:{256+64*s}")
        for s in range(4):
            a(f"s_waitcnt lgkmcnt({3-s})")
            a(f"v_mfma_f32_16x16x32_bf16 v[{acc}:{acc+3}], v[{AF+4*s}:{AF+4*s+3}], v[{BH+4*s}:{BH+4*s+3}], v[{acc}:{acc+3}]")
    if RT: a("s_memrealtime s[58:59]")
    a("s_nop 15")
    a("s_barrier")
    a(f"v_mul_u32_u24 v16, {CHREG}, v3")
    a("v_and_b32 v17, 3, v0")
    a("v_mul_u32_u24 v18, 3072, v17")
    a("v_add_u32 v18, v18, v16")
    a("v_lshl_add_u32 v18, v1, 4, v18")
    for t in range(3):
        a(f"ds_write_b128 v18, v[{ACC+4*t}:{ACC+4*t+3}] offset:{t*1024}")
    a("s_waitcnt lgkmcnt(0)")
    a("s_barrier")
    skip=a.newlabel("kg_skip")
    a("v_readfirstlane_b32 s28, v17")
    a("s_nop 3")
    a("s_cmp_ge_u32 s28, 3")
    a(f"s_cbranch_scc1 {skip}")
    a("v_lshlrev_b32 v18, 10, v17")
    a("v_add_u32 v18, v18, v16")
    a("v_lshl_add_u32 v18, v1, 4, v18")
    for w in range(4):
        a(f"ds_read_b128 v[{20+4*w}:{23+4*w}], v18 offset:{w*3072}")
    a("s_waitcnt lgkmcnt(0)")
    for r in range(4):
        a(f"v_add_f32 v{20+r}, v{20+r}, v{24+r}")
        a(f"v_add_f32 v{28+r}, v{28+r}, v{32+r}")
        a(f"v_add_f32 v{20+r}, v{20+r}, v{28+r}")
    a("v_lshrrev_b32 v4, 4, v1")
    a("v_and_b32 v5, 15, v1")
    a("v_lshlrev_b32 v5, 5, v5")
    a("v_add_u32 v5, v5, v16")
    t1=a.newlabel("kg_t1"); t2=a.newlabel("kg_t2"); done=a.newlabel("kg_td")
    a("s_cmp_eq_u32 s28, 1"); a(f"s_cbranch_scc1 {t1}")
    a("s_cmp_eq_u32 s28, 2"); a(f"s_cbranch_scc1 {t2}")
    a("v_lshrrev_b32 v6, 1, v4"); a("v_lshlrev_b32 v6, 7, v6"); a("v_and_b32 v7, 1, v4"); a("v_lshl_add_u32 v6, v7, 2, v6")
    a("v_lshl_add_u32 v6, v6, 2, v5")
    for r in range(4): a(f"ds_write_b32 v6, v{20+r} offset:{KD_OFF+4*r}")
    a(f"s_branch {done}")
    a.label(t1)
    a("v_lshlrev_b32 v6, 7, v4"); a("v_add_u32 v6, 256, v6")
    a("v_lshlrev_b32 v7, 8, v4")
    a("v_cmp_gt_u32 vcc, 2, v4")
    a("s_nop 1")
    for r in range(4):
        a(f"v_add_u32 v8, {2*r}, v6")
        a(f"v_add_u32 v9, {128*(r//2)+4*(r%2)}, v7")
        a("v_cndmask_b32 v8, v9, v8, vcc")
        a("v_lshl_add_u32 v8, v8, 2, v5")
        a(f"ds_write_b32 v8, v{20+r} offset:{KD_OFF}")
    a(f"s_branch {done}")
    a.label(t2)
    a("v_lshlrev_b32 v6, 9, v4"); a("v_add_u32 v6, 1024, v6")
    for r in range(4):
        a(f"v_add_u32 v8, {128*r}, v6")
        a("v_min_u32 v8, 2176, v8")
        a("v_lshl_add_u32 v8, v8, 2, v5")
        a(f"ds_write_b32 v8, v{20+r} offset:{KD_OFF}")
    a.label(done)
    a.label(skip)
    a("s_waitcnt lgkmcnt(0)")
    a("s_barrier")
    a("v_lshl_add_u32 v18, v17, 6, v1")
    a("v_lshlrev_b32 v19, 3, v18")
    a("v_sub_u32 v19, 2047, v19")
    for e in range(8):
        a(f"v_subrev_u32 v4, {e}, v19")
        a("v_cvt_f32_u32 v4, v4")
        a("v_cvt_pk_bf16_f32 v4, v4, v4")
        a("v_lshlrev_b32 v4, 16, v4")
        a("v_cvt_u32_f32 v4, v4")
        a("v_lshl_add_u32 v4, v4, 2, v16")
        a(f"ds_read_b32 v{20+e}, v4 offset:{KD_OFF}")
    a(f"v_mul_u32_u24 v5, {KRP}, v2")
    a("v_lshl_add_u32 v5, v18, 4, v5")
    a("s_waitcnt lgkmcnt(0)")
    for e in range(4):
        a(f"v_cvt_pk_bf16_f32 v{28+e}, v{20+2*e}, v{21+2*e}")
    a("buffer_store_dwordx4 v[28:31], v5, s[44:47], 0 offen")
    a("v_mov_b32 v32, 0"); a("v_mov_b32 v33, 0"); a("v_mov_b32 v34, 0"); a("v_mov_b32 v35, 0")
    a("v_cmp_gt_u32 vcc, 8, v18")
    a("s_and_saveexec_b64 s[48:49], vcc")
    skipz=a.newlabel("kg_z")
    a(f"s_cbranch_execz {skipz}")
    a("s_mov_b32 s28, 4096")
    a("buffer_store_dwordx4 v[32:35], v5, s[44:47], s28 offen")
    a.label(skipz)
    rt_end(a,0)


def k0(name):
    a=Asm(); a.label(name)
    if RT: a("s_memrealtime s[90:91]")
    a(HEAD_A)
    a("s_cmp_ge_u32 s2, 256")
    a(f"s_cbranch_scc1 {name}_exit")
    a("s_cmp_ge_u32 s2, 224")
    a(f"s_cbranch_scc1 {name}_ln")
    a("s_mov_b32 s3, s2")
    kgen3(a)
    a.label(f"{name}_ln")
    a("s_sub_u32 s3, s2, 224")
    lz=a.newlabel("k0_z")
    a("s_cmp_lg_u32 s3, 0")
    a(f"s_cbranch_scc1 {lz}")
    ws_srd(a, 52, CNT_OFF, 24576)
    a("v_lshlrev_b32 v4, 4, v0")
    a("v_mov_b32 v8, 0\nv_mov_b32 v9, 0\nv_mov_b32 v10, 0\nv_mov_b32 v11, 0")
    a("buffer_store_dwordx4 v[8:11], v4, s[52:55], 0 offen")
    a("s_mov_b32 s26, 8192")
    a("buffer_store_dwordx4 v[8:11], v4, s[52:55], s26 offen")
    a("s_mov_b32 s26, 16384")
    a("buffer_store_dwordx4 v[8:11], v4, s[52:55], s26 offen")
    a.label(lz)
    ln3(a)
    a.label(f"{name}_exit")
    a("s_endpgm")
    return a.text()
def k1(name):
    a=Asm(); a.label(name)
    if RT: a("s_memrealtime s[90:91]")
    a(HEAD_A)
    a("s_cmp_ge_u32 s2, 480")
    a(f"s_cbranch_scc1 {name}_exit")
    a("s_cmp_ge_u32 s2, 256")
    a(f"s_cbranch_scc1 {name}_conv")
    gemm1_256(a, f"{name}_exit")
    a.label(f"{name}_conv")
    a("s_sub_u32 s3, s2, 256")
    conv3(a)
    a.label(f"{name}_exit")
    a("s_endpgm")
    return a.text()
def k2(name):
    a=Asm(); a.label(name)
    if RT: a("s_memrealtime s[90:91]")
    a(HEAD_A)
    a("s_cmp_ge_u32 s2, 256")
    a(f"s_cbranch_scc1 {name}_exit")
    gemm2_3(a, f"{name}_exit")
    a.label(f"{name}_exit")
    a("s_endpgm")
    return a.text()
```

```python
from k3 import *
HF_OFF=CNT_OFF+12288; CF_OFF=CNT_OFF+16384

def claim_both(a):
    ws_srd(a, 52, CNT_OFF, 8192)
    a("s_getreg_b32 s27, hwreg(HW_REG_XCC_ID)")
    a("s_and_b32 s27, s27, 7")
    lskip=a.newlabel("cl_skip")
    a("s_cmp_lg_u32 s22, 0")
    a(f"s_cbranch_scc1 {lskip}")
    a("s_mov_b64 s[30:31], exec")
    a("s_mov_b64 exec, 3")
    a("s_lshl_b32 s26, s27, 8")
    a("v_lshlrev_b32 v4, 12, v0")
    a("v_add_u32 v4, s26, v4")
    a("v_mov_b32 v5, 1")
    a("buffer_atomic_add v5, v4, s[52:55], 0 offen sc0")
    a("s_waitcnt vmcnt(0)")
    a("v_readlane_b32 s88, v5, 0")
    a("v_readlane_b32 s89, v5, 1")
    a("s_mov_b32 s29, s27")
    for st,reg in ((0,88),(1,89)):
        lp=a.newlabel("cl_loop"); ld=a.newlabel("cl_done"); lno=a.newlabel("cl_no")
        a("s_mov_b32 s27, s29")
        a("s_nop 3")
        a(f"s_cmp_lt_u32 s{reg}, 28")
        a(f"s_cbranch_scc1 {ld}")
        a("s_mov_b64 exec, 0xff")
        a("v_lshlrev_b32 v4, 8, v0")
        a(f"v_add_u32 v4, {st*4096}, v4")
        a("buffer_load_dword v6, v4, s[52:55], 0 offen sc1")
        a("s_waitcnt vmcnt(0)")
        a("v_cmp_gt_u32 vcc, 28, v6")
        a("s_mov_b64 exec, 1")
        a("s_nop 3")
        a("s_mov_b32 s28, vcc_lo")
        a.label(lp)
        a("s_cmp_eq_u32 s28, 0")
        a(f"s_cbranch_scc1 {lno}")
        a("s_ff1_i32_b32 s27, s28")
        a("s_bitset0_b32 s28, s27")
        a("s_lshl_b32 s26, s27, 8")
        a(f"s_add_u32 s26, s26, {st*4096}")
        a("v_mov_b32 v4, s26")
        a("v_mov_b32 v5, 1")
        a("buffer_atomic_add v5, v4, s[52:55], 0 offen sc0")
        a("s_waitcnt vmcnt(0)")
        a(f"v_readfirstlane_b32 s{reg}, v5")
        a("s_nop 3")
        a(f"s_cmp_lt_u32 s{reg}, 28")
        a(f"s_cbranch_scc1 {ld}")
        a(f"s_branch {lp}")
        a.label(lno)
        a(f"s_mov_b32 s{reg}, 0xff")
        a.label(ld)
        a("s_lshl_b32 s28, s27, 8")
        a(f"s_or_b32 s{reg}, s{reg}, s28")
    a("s_mov_b64 exec, 1")
    a("v_mov_b32 v4, 0")
    a("v_mov_b32 v6, s88")
    a("v_mov_b32 v7, s89")
    a("ds_write_b64 v4, v[6:7]")
    a("s_waitcnt lgkmcnt(0)")
    a("s_mov_b64 exec, s[30:31]")
    a.label(lskip)
    a("s_barrier")
    a("v_mov_b32 v4, 0")
    a("ds_read_b64 v[6:7], v4")
    a("s_waitcnt lgkmcnt(0)")
    a("v_readfirstlane_b32 s88, v6")
    a("v_readfirstlane_b32 s89, v7")
    a("s_barrier")

def poll_ge(a, srdbase, off_sgpr, target, sleep):
    lp=a.newlabel("poll"); ld=a.newlabel("polld")
    a("s_cmp_lg_u32 s22, 0")
    a(f"s_cbranch_scc1 {ld}")
    a(f"v_mov_b32 v18, s{off_sgpr}")
    a.label(lp)
    a(f"buffer_load_dword v19, v18, s[{srdbase}:{srdbase+3}], 0 offen sc1")
    a("s_waitcnt vmcnt(0)")
    a("v_readfirstlane_b32 s23, v19")
    a("s_nop 3")
    a(f"s_cmp_ge_u32 s23, {target}")
    a(f"s_cbranch_scc1 {ld}")
    a(f"s_sleep {sleep}")
    a(f"s_branch {lp}")
    a.label(ld)
    a("s_barrier")

def gemm1_4(a, next_label):
    NST=14; NSL=10; NP=28
    a(f"s_setprio {os.environ.get('G1P','0')}")
    ws_srd(a, 8, XN_OFF, XN_SZ)
    ws_srd(a, 16, H_OFF, H_SZ)
    srd(a, 12, 80, 81, 448*3584)
    a("s_and_b32 s26, s88, 0xff")
    a("s_lshr_b32 s27, s88, 8")
    a("s_cmp_eq_u32 s26, 0xff")
    a(f"s_cbranch_scc1 {next_label}")
    a("s_cmp_ge_u32 s26, 14")
    a("s_cselect_b32 s20, 1, 0")
    a("s_mul_i32 s21, s20, 14")
    a("s_sub_u32 s21, s26, s21")
    a("s_lshl_b32 s27, s27, 1")
    a("s_add_u32 s20, s20, s27")
    a("s_mov_b32 s29, s26")
    a("""
    v_lshrrev_b32 v3, 3, v1
    v_lshl_add_u32 v3, v2, 4, v3
    s_lshl_b32 s23, s20, 7
    v_add_u32 v3, s23, v3
    v_mul_u32_u24 v3, 896, v3
    v_and_b32 v4, 7, v1
    v_lshrrev_b32 v5, 4, v1
    v_xor_b32 v4, v4, v5
    v_lshl_add_u32 v3, v4, 4, v3       ; voffA i=0
    v_xor_b32 v4, 64, v3               ; voffA i=1  (896 = 7*128)
    v_bfe_u32 v6, v1, 4, 2
    v_lshrrev_b32 v5, 4, v1
    v_lshl_add_u32 v5, v2, 3, v5       ; krow = 8w + l/16 (+4i)
    v_mul_u32_u24 v5, 3584, v5
    v_bfe_u32 v7, v1, 2, 2
    v_xor_b32 v6, v6, v7
    v_and_b32 v7, 3, v1
    v_lshl_add_u32 v6, v6, 2, v7
    v_lshl_add_u32 v5, v6, 4, v5
    s_lshl_b32 s23, s21, 8
    v_add_u32 v5, s23, v5              ; voffB
    s_lshl_b32 s24, s22, 11
    """)
    a("s_mul_hi_u32 s30, s29, 0x24924925")
    a("s_mul_i32 s30, s30, 7")
    a("s_sub_u32 s31, s29, s30")
    for k in range(7):
        a(f"s_lshl_b32 s{32+k}, s31, 7")
        a("s_add_u32 s31, s31, 1")
        a("s_cmp_eq_u32 s31, 7")
        a("s_cselect_b32 s31, 0, s31")
    def issue(p):
        c=p//4; k=p%4; sl=p%NSL
        if k not in (1,2): a(f"s_mul_i32 s30, s{32+c}, 1792")
        for i in range(2):
            a(f"s_add_u32 m0, s24, {sl*8192+i*1024}")
            if k in (1,2):
                a(f"s_add_u32 s25, s{32+c}, {(k-1)*64*896+i*8*896}")
                a(f"buffer_load_dwordx4 v{3+i}, s[8:11], s25 offen lds")
            else:
                a(f"s_add_u32 s25, s30, {(32*3584 if k==3 else 0)+i*4*3584}")
                a(f"buffer_load_dwordx4 v5, s[12:15], s25 offen lds")
            a.vm_issue(p)
    for p in range(NSL): issue(p)
    a("""
    v_and_b32 v8, 31, v1               ; m / n
    v_lshrrev_b32 v9, 5, v1            ; g
    v_lshrrev_b32 v10, 1, v2           ; wr
    v_and_b32 v11, 1, v2               ; wc
    s_lshr_b32 s28, s22, 1
    v_lshlrev_b32 v12, 7, v8
    v_bfe_u32 v13, v8, 1, 3
    v_xor_b32 v13, v13, v9
    v_lshl_add_u32 v12, v13, 4, v12
    v_bfe_u32 v14, v1, 2, 2            ; r
    v_lshl_add_u32 v15, v9, 3, v14
    v_lshlrev_b32 v15, 8, v15
    v_lshlrev_b32 v16, 1, v11
    v_xor_b32 v16, v16, v14
    v_lshl_add_u32 v15, v16, 6, v15
    v_bfe_u32 v16, v1, 4, 1
    v_lshl_add_u32 v15, v16, 5, v15
    v_and_b32 v16, 3, v1
    v_lshl_add_u32 v15, v16, 3, v15
    """)
    ACC=64
    for i in range(64): a(f"v_mov_b32 v{ACC+i}, 0")
    FAs=[32,128]; FBs=[48,144]
    def reads(s):
        c=s//2; h=s%2
        FA=FAs[s&1]; FB=FBs[s&1]
        pB=4*c+(3 if h else 0)
        sl0=((4*c+1)%NSL)*8192; sl1=((4*c+2)%NSL)*8192
        a(f"s_mov_b32 s26, {sl0}")
        a(f"s_mov_b32 s27, {sl1}")
        a("s_cmp_eq_u32 s28, 0")
        a("s_cselect_b32 s26, s26, s27")
        a(f"v_xor_b32 v17, {64*h}, v12")
        a("v_add_u32 v17, s26, v17")
        a("v_xor_b32 v18, 32, v17")
        a(f"v_add_u32 v19, {(pB%NSL)*8192}, v15")
        a("v_xor_b32 v20, 64, v19")
        for ks in range(2):
            for mt in range(2):
                r=FA+8*ks+4*mt
                a(f"ds_read_b128 v[{r}:{r+3}], v{17+ks} offset:{mt*4096}")
            for nt in range(2):
                for i in range(2):
                    r=FB+8*ks+4*nt+2*i
                    a(f"ds_read_b64_tr_b16 v[{r}:{r+1}], v{19+nt} offset:{(16*ks+4*i)*256}")
    def needs(s):
        c=s//2
        return [4*c+3] if s%2 else [4*c,4*c+1,4*c+2]
    def wait_stage(s):
        idx=[i for i,t in enumerate(a.vm) if t in needs(s)]
        if idx: a.vm_wait(a.vm[max(idx)])
    wait_stage(0)
    a("s_barrier")
    if RT: a("s_memrealtime s[58:59]")
    reads(0)
    st={'nxt':NSL}
    for s in range(NST):
        FA=FAs[s&1]; FB=FBs[s&1]
        if s+1<NST: wait_stage(s+1)
        a("s_waitcnt lgkmcnt(0)")
        a("s_barrier")
        nfree = 1 if s%2==0 else 3
        def fill():
            for _ in range(nfree):
                if st['nxt']<NP: issue(st['nxt']); st['nxt']+=1
            if s+1<NST: reads(s+1)
        def prim():
            for ks in range(2):
                for mt in range(2):
                    for nt in range(2):
                        acc=ACC+16*(2*mt+nt)
                        ra=FA+8*ks+4*mt; rb=FB+8*ks+4*nt
                        a(f"v_mfma_f32_32x32x16_bf16 v[{acc}:{acc+15}], v[{rb}:{rb+3}], v[{ra}:{ra+3}], v[{acc}:{acc+15}]")
        interleave(a, capture(a,prim), capture(a,fill))
    if RT: a("s_memrealtime s[60:61]")
    a("s_nop 15")
    a("s_barrier")
    HP=272
    a(f"v_lshl_add_u32 v20, v10, 6, v8")
    a(f"v_mul_u32_u24 v20, {HP}, v20")
    a("v_lshl_add_u32 v20, v11, 7, v20")
    a("v_lshl_add_u32 v20, v9, 3, v20")
    k=0
    for mt in range(2):
        for nt in range(2):
            acc=ACC+16*(2*mt+nt)
            for q in range(4):
                t=48+2*(k%4); k+=1
                for e in range(4): a(f"v_max_f32 v{acc+4*q+e}, 0, v{acc+4*q+e}")
                a(f"v_cvt_pk_bf16_f32 v{t}, v{acc+4*q}, v{acc+4*q+1}")
                a(f"v_cvt_pk_bf16_f32 v{t+1}, v{acc+4*q+2}, v{acc+4*q+3}")
                a(f"ds_write_b64 v20, v[{t}:{t+1}] offset:{mt*32*HP+nt*64+16*q}")
    a("s_waitcnt lgkmcnt(0)")
    a("s_barrier")
    a("v_lshrrev_b32 v21, 4, v0")
    a("v_and_b32 v22, 15, v0")
    a(f"v_mul_u32_u24 v23, {HP}, v21")
    a("v_lshl_add_u32 v23, v22, 4, v23")
    for j in range(8):
        a(f"ds_read_b128 v[{64+4*j}:{67+4*j}], v23 offset:{j*16*HP}")
    a("s_lshl_b32 s23, s20, 7")
    a("v_add_u32 v21, s23, v21")
    a("v_mul_u32_u24 v21, 3584, v21")
    a("v_lshl_add_u32 v21, v22, 4, v21")
    a("s_lshl_b32 s23, s21, 8")
    a("v_add_u32 v21, s23, v21")
    for j in range(8):
        a(f"s_mov_b32 s25, {j*16*3584}")
        a(f"s_waitcnt lgkmcnt({7-j})")
        a(f"buffer_store_dwordx4 v[{64+4*j}:{67+4*j}], v21, s[16:19], s25 offen sc1")
    a("s_waitcnt vmcnt(0)")
    a("s_barrier")
    ws_srd(a, 52, HF_OFF, 4096)
    a("s_lshl_b32 s23, s20, 8")
    a("v_mov_b32 v4, s23")
    a("v_mov_b32 v5, 1")
    a("v_cmp_eq_u32 vcc, 0, v0")
    a("s_and_saveexec_b64 s[30:31], vcc")
    a("buffer_atomic_add v5, v4, s[52:55], 0 offen")
    a("s_mov_b64 exec, s[30:31]")
    a.vm_clear()


def gemm2_4(a, exit_label):
    ws_srd(a, 8, H_OFF, H_SZ)
    ws_srd(a, 16, ST_OFF, XN_SZ)
    srd(a, 12, 82, 83, 1792*896)
    srd(a, 40, 64, 65, XN_SZ)
    srd(a, 44, 84, 85, XN_SZ)
    a("s_and_b32 s26, s89, 0xff")
    a("s_lshr_b32 s27, s89, 8")
    a("s_cmp_eq_u32 s26, 0xff")
    a(f"s_cbranch_scc1 {exit_label}")
    if RT: a("s_memrealtime s[62:63]")
    a("s_mul_hi_u32 s20, s26, 0x24924925")
    a("s_mul_i32 s21, s20, 7")
    a("s_sub_u32 s21, s26, s21")
    a("s_lshl_b32 s27, s27, 2")
    a("s_add_u32 s20, s20, s27")
    a("s_mov_b32 s31, s26")
    a("""
    v_lshrrev_b32 v3, 3, v1
    v_lshl_add_u32 v3, v2, 4, v3
    s_lshl_b32 s23, s20, 6
    v_add_u32 v3, s23, v3
    v_mul_u32_u24 v3, 3584, v3
    v_and_b32 v4, 7, v1
    v_lshrrev_b32 v5, 4, v1
    v_xor_b32 v4, v4, v5
    v_lshl_add_u32 v3, v4, 4, v3       ; voffA i=0
    v_xor_b32 v4, 64, v3               ; voffA i=1
    v_lshrrev_b32 v5, 3, v1
    v_lshl_add_u32 v5, v2, 4, v5
    v_mul_u32_u24 v5, 896, v5
    v_bfe_u32 v6, v1, 2, 1
    v_bfe_u32 v7, v1, 4, 1
    v_xor_b32 v6, v6, v7
    v_and_b32 v7, 3, v1
    v_lshl_add_u32 v6, v6, 2, v7
    v_lshl_add_u32 v5, v6, 4, v5
    s_lshl_b32 s23, s21, 7
    v_add_u32 v5, s23, v5              ; voffB
    s_lshl_b32 s24, s22, 11            ; wave*2048
    """)
    NST=28; NBS=5
    a("s_mov_b32 s32, s31")
    a("s_mov_b32 s33, s31")
    def adv(r):
        a(f"s_add_u32 s{r}, s{r}, 1")
        a(f"s_cmp_eq_u32 s{r}, 28")
        a(f"s_cselect_b32 s{r}, 0, s{r}")
    def issueA(s):
        sl=(s%NBS)*16384
        a("s_lshl_b32 s26, s32, 7")
        for i in range(2):
            a(f"s_add_u32 m0, s24, {sl+i*1024}")
            a(f"s_add_u32 s25, s26, {i*8*3584}")
            a(f"buffer_load_dwordx4 v{3+i}, s[8:11], s25 offen lds")
            a.vm_issue(s)
        adv(32)
    def issueB(s):
        sl=(s%NBS)*16384
        a(f"s_mul_i32 s27, s33, {64*896}")
        for i in range(2):
            a(f"s_add_u32 m0, s24, {sl+8192+i*1024}")
            a(f"s_add_u32 s25, s27, {i*8*896}")
            a(f"buffer_load_dwordx4 v5, s[12:15], s25 offen lds")
            a.vm_issue(s)
        adv(33)
    def issue(s):
        issueA(s); issueB(s)
    for s in range(NBS): issueB(s)
    ws_srd(a, 52, HF_OFF, 8192)
    a("s_lshr_b32 s23, s20, 1")
    a("s_lshl_b32 s30, s23, 8")
    poll_ge(a, 52, 30, 14, 8)
    if RT: a("s_memrealtime s[56:57]")
    a.vm_clear()
    for s in range(NBS): issueA(s)
    a("""
    s_lshl_b32 s23, s20, 6
    v_add_u32 v22, s23, v1
    v_mul_u32_u24 v22, 896, v22
    v_lshl_add_u32 v22, v2, 5, v22
    s_lshl_b32 s23, s21, 7
    v_add_u32 v22, s23, v22
    buffer_load_dwordx4 v[24:27], v22, s[40:43], 0 offen
    buffer_load_dwordx4 v[28:31], v22, s[40:43], 0 offen offset:16
    """)
    a.vm_issue('x'); a.vm_issue('x')
    a("""
    v_and_b32 v8, 31, v1
    v_lshrrev_b32 v9, 5, v1
    v_lshlrev_b32 v12, 7, v8
    v_lshl_add_u32 v13, v2, 1, v9
    v_bfe_u32 v14, v8, 1, 3
    v_xor_b32 v13, v13, v14
    v_lshl_add_u32 v12, v13, 4, v12    ; vA
    v_add_u32 v13, 0x10000, v12
    v_bfe_u32 v14, v1, 2, 2            ; r
    v_lshl_add_u32 v15, v9, 3, v14
    v_lshl_add_u32 v15, v2, 4, v15
    v_lshlrev_b32 v15, 7, v15
    v_lshrrev_b32 v16, 1, v14
    v_lshl_add_u32 v15, v16, 6, v15
    v_bfe_u32 v16, v1, 4, 1
    v_lshl_add_u32 v15, v16, 5, v15
    v_and_b32 v16, 3, v1
    v_lshl_add_u32 v15, v16, 3, v15
    v_add_u32 v15, 8192, v15           ; vB0
    v_xor_b32 v16, 64, v15             ; vB1
    v_add_u32 v10, 0x10000, v15
    v_add_u32 v11, 0x10000, v16
    """)
    ACC=64
    for i in range(64): a(f"v_mov_b32 v{ACC+i}, 0")
    FAs=[32,128]; FBs=[40,136]
    a("""
    s_lshl_b32 s23, s21, 6
    v_lshlrev_b32 v17, 4, v2
    v_add_u32 v17, s23, v17
    v_lshlrev_b32 v17, 12, v17
    v_lshl_add_u32 v17, v1, 1, v17
    s_lshl_b32 s23, s20, 7
    v_add_u32 v17, s23, v17
    s_lshl_b32 s23, s21, 2
    v_mov_b32 v19, s23
    """)
    def reads(s):
        b=s%NBS
        FA=FAs[s&1]; FB=FBs[s&1]
        a(f"v_add_u32 v13, {b*16384}, v12")
        a(f"v_add_u32 v10, {b*16384}, v15")
        a(f"v_add_u32 v11, {b*16384}, v16")
        for mt in range(2):
            r=FA+4*mt
            a(f"ds_read_b128 v[{r}:{r+3}], v13 offset:{mt*4096}")
        for nt in range(2):
            for i in range(2):
                r=FB+4*nt+2*i
                a(f"ds_read_b64_tr_b16 v[{r}:{r+1}], v{10+nt} offset:{4*i*128}")
    a.vm_wait(0)
    a("s_barrier")
    if RT: a("s_memrealtime s[58:59]")
    reads(0)
    for s in range(NST):
        FA=FAs[s&1]; FB=FBs[s&1]
        if s+1<NST and a.vm_has(s+1): a.vm_wait(s+1)
        a("s_waitcnt lgkmcnt(0)")
        a("s_barrier")
        def fill():
            if s+NBS<NST: issue(s+NBS)
            if s+1<NST: reads(s+1)
        def prim():
            for mt in range(2):
                for nt in range(2):
                    acc=ACC+16*(2*mt+nt)
                    ra=FA+4*mt; rb=FB+4*nt
                    a(f"v_mfma_f32_32x32x16_bf16 v[{acc}:{acc+15}], v[{rb}:{rb+3}], v[{ra}:{ra+3}], v[{acc}:{acc+15}]")
        interleave(a, capture(a,prim), capture(a,fill))
    if RT: a("s_memrealtime s[60:61]")
    a("s_lshl_b32 s30, s21, 8")
    a("s_add_u32 s30, s30, 4096")
    poll_ge(a, 52, 30, 32, 8)
    for j in range(16):
        a(f"s_mov_b32 s25, {j*4096}")
        a(f"buffer_load_ushort v{144+j}, v17, s[16:19], s25 offen sc1")
    a("s_nop 15")
    a("s_barrier")
    a(f"v_mul_u32_u24 v20, {64*RP}, v2")
    a(f"v_mul_u32_u24 v21, {RP}, v8")
    a("v_add_u32 v20, v20, v21")
    a("v_lshl_add_u32 v20, v9, 4, v20")
    for mt in range(2):
        for nt in range(2):
            acc=ACC+16*(2*mt+nt)
            for q in range(4):
                a(f"ds_write_b128 v20, v[{acc+4*q}:{acc+4*q+3}] offset:{mt*32*RP+nt*128+q*32}")
    a("s_waitcnt lgkmcnt(0)")
    a("s_barrier")
    a(f"v_mul_u32_u24 v20, {RP}, v1")
    a("v_lshl_add_u32 v20, v2, 6, v20")
    for wv in range(4):
        for j in range(4):
            r=64+16*wv+4*j
            a(f"ds_read_b128 v[{r}:{r+3}], v20 offset:{wv*64*RP+j*16}")
    a("s_waitcnt lgkmcnt(0)")
    for i in range(16):
        a(f"v_add_f32 v{64+i}, v{64+i}, v{80+i}")
        a(f"v_add_f32 v{96+i}, v{96+i}, v{112+i}")
        a(f"v_add_f32 v{64+i}, v{64+i}, v{96+i}")
    NL2E=hex(f2u(-1.4426950408889634))
    for p in range(8):
        m0,m1=64+2*p,65+2*p
        a(f"v_cvt_pk_bf16_f32 v4, v{m0}, v{m1}")
        a("v_lshlrev_b32 v5, 16, v4")
        a("v_and_b32 v6, 0xffff0000, v4")
        a(f"v_mul_f32 v7, {NL2E}, v5")
        a(f"v_mul_f32 v10, {NL2E}, v6")
        a("v_exp_f32 v7, v7")
        a("v_exp_f32 v10, v10")
        a("s_nop 0")
        a("v_add_f32 v7, 1.0, v7")
        a("v_add_f32 v10, 1.0, v10")
        a("v_rcp_f32 v7, v7")
        a("v_rcp_f32 v10, v10")
        a("s_nop 0")
        a("v_mul_f32 v5, v5, v7")
        a("v_mul_f32 v6, v6, v10")
        a("v_cvt_pk_bf16_f32 v4, v5, v6")
        a("v_lshlrev_b32 v5, 16, v4")
        a("v_and_b32 v6, 0xffff0000, v4")
        if p==0: a("s_waitcnt vmcnt(0)")
        a(f"v_lshlrev_b32 v7, 16, v{144+2*p}")
        a(f"v_lshlrev_b32 v10, 16, v{145+2*p}")
        a("v_mul_f32 v5, v5, v7")
        a("v_mul_f32 v6, v6, v10")
        a("v_cvt_pk_bf16_f32 v4, v5, v6")
        a("v_lshlrev_b32 v5, 16, v4")
        a("v_and_b32 v6, 0xffff0000, v4")
        a(f"v_lshlrev_b32 v7, 16, v{24+p}")
        a(f"v_and_b32 v10, 0xffff0000, v{24+p}")
        a("v_add_f32 v5, v5, v7")
        a("v_add_f32 v6, v6, v10")
        a(f"v_cvt_pk_bf16_f32 v{48+p}, v5, v6")
    a("buffer_store_dwordx4 v[48:51], v22, s[44:47], 0 offen")
    a("buffer_store_dwordx4 v[52:55], v22, s[44:47], 0 offen offset:16")
    a("s_waitcnt vmcnt(0)")
    rt_end(a,1)


def conv4(a):
    a(f"s_setprio {os.environ.get('CVP','2')}")
    ws_srd(a, 8, KR_OFF, KR_SZ)
    ws_srd(a, 12, XNT_OFF, XN_SZ)
    ws_srd(a, 16, ST_OFF, XN_SZ)
    srd(a, 20, 76, 77, 448*2)
    a("""
    v_lshrrev_b32 v1, 7, v0            ; chsel
    v_and_b32 v2, 127, v0              ; tau
    s_lshl_b32 s24, s3, 1
    v_add_u32 v3, s24, v1              ; channel d
    """)
    a(f"v_mul_u32_u24 v4, {KRP}, v3")
    a("v_lshl_add_u32 v4, v2, 4, v4")
    a("v_lshlrev_b32 v5, 12, v3")
    a("v_lshl_add_u32 v5, v2, 4, v5")
    a("v_lshlrev_b32 v6, 1, v3")
    a("buffer_load_dwordx4 v[16:19], v4, s[8:11], 0 offen")
    a("buffer_load_dwordx4 v[20:23], v4, s[8:11], 0 offen offset:16")
    a("buffer_load_dwordx4 v[24:27], v4, s[8:11], 0 offen offset:2048")
    a("buffer_load_dwordx4 v[28:31], v4, s[8:11], 0 offen offset:2064")
    a("buffer_load_dwordx4 v[32:35], v5, s[12:15], 0 offen")
    a("buffer_load_dwordx4 v[36:39], v5, s[12:15], 0 offen offset:2048")
    a("buffer_load_ushort v7, v6, s[20:23], 0 offen")
    a(f"v_mul_u32_u24 v8, {CH_SZ}, v1")
    a("v_lshl_add_u32 v9, v2, 4, v8")
    a("v_mov_b32 v40, 0\nv_mov_b32 v41, 0\nv_mov_b32 v42, 0\nv_mov_b32 v43, 0")
    a(f"ds_write_b128 v9, v[40:43] offset:{KC_SZ}")
    a("v_cmp_gt_u32 vcc, 27, v2")
    a("s_and_saveexec_b64 s[26:27], vcc")
    a(f"ds_write_b128 v9, v[40:43] offset:{KC_SZ+2048}")
    a("s_mov_b64 exec, s[26:27]")
    a("v_lshrrev_b32 v10, 2, v2")
    a(f"v_mul_u32_u24 v10, {CS}, v10")
    a("v_and_b32 v11, 3, v2")
    a("v_lshl_add_u32 v10, v11, 4, v10")
    a("v_add_u32 v10, v10, v8")
    a("v_cmp_gt_u32 vcc, 32, v2")
    a("s_and_saveexec_b64 s[26:27], vcc")
    a("ds_write_b128 v10, v[40:43] offset:4096")
    a("s_mov_b64 exec, s[26:27]")
    a("v_lshrrev_b32 v10, 2, v2")
    a("v_mul_u32_u24 v10, 80, v10")
    a("v_lshl_add_u32 v10, v11, 4, v10")
    a("v_add_u32 v10, v10, v8")
    a("s_waitcnt vmcnt(0)")
    a(f"ds_write_b128 v10, v[32:35] offset:{KC_SZ+31*80}")
    a(f"ds_write_b128 v10, v[36:39] offset:{KC_SZ+31*80+32*80}")
    for half in range(2):
        D=16+8*half
        E=44; D1=52; E1=60
        for k in range(7): a(f"v_alignbit_b32 v{E+k}, v{D+k+1}, v{D+k}, 16")
        for k in range(6): a(f"v_mov_b32 v{D1+k}, v{D+k+1}")
        for k in range(6): a(f"v_alignbit_b32 v{E1+k}, v{D+k+2}, v{D+k+1}, 16")
        src={0:D,4:D+2,2:D1,6:D1+2,1:E,5:E+2,3:E1,7:E1+2}
        for c in range(8):
            a(f"ds_write_b128 v9, v[{src[c]}:{src[c]+3}] offset:{c*CS+half*2048}")
    a("v_lshlrev_b32 v7, 16, v7")
    a("s_waitcnt lgkmcnt(0)")
    a("s_barrier")
    a("""
    v_and_b32 v10, 63, v0
    v_and_b32 v11, 31, v10
    v_lshrrev_b32 v12, 5, v10
    v_sub_u32 v13, 7, v11
    v_and_b32 v13, 7, v13
    """)
    a(f"v_mul_u32_u24 v13, {CS}, v13")
    a("v_lshl_add_u32 v13, v12, 4, v13")
    a("v_lshrrev_b32 v14, 3, v11")
    a("v_lshlrev_b32 v14, 4, v14")
    a("v_sub_u32 v13, v13, v14")
    a("v_add_u32 v13, 48, v13")
    a("v_add_u32 v13, v13, v8")
    a("v_mul_u32_u24 v14, 80, v11")
    a("v_lshl_add_u32 v14, v12, 4, v14")
    a(f"v_add_u32 v14, {KC_SZ}, v14")
    a("v_add_u32 v14, v14, v8")
    ACC0=64; ACC1=80
    for i in range(32): a(f"v_mov_b32 v{64+i}, 0")
    a("v_lshrrev_b32 v15, 6, v0")
    a("v_and_b32 v15, 1, v15")
    a("s_nop 0")
    a("v_readfirstlane_b32 s25, v15")
    lB=a.newlabel("cv_B"); lJ=a.newlabel("cv_J")
    a("s_nop 3")
    a("s_cmp_eq_u32 s25, 1")
    a(f"s_cbranch_scc1 {lB}")
    def mainloop(units):
        NS=3
        def issue(u):
            delta,hs=units[u]; base=96+24*(u%NS); n=0
            for q in range(2):
                a(f"ds_read_b128 v[{base+4*q}:{base+4*q+3}], v13 offset:{64*(63-delta)+32*q}"); n+=1
            for hi,h in enumerate(hs):
                for q in range(2):
                    r=base+8+8*hi+4*q
                    a(f"ds_read_b128 v[{r}:{r+3}], v14 offset:{80*(31+32*h-delta)+32*q}"); n+=1
            return n
        cnt=[]
        for u in range(min(NS-1,len(units))): cnt.append(issue(u))
        for u in range(len(units)):
            if u+NS-1<len(units): cnt.append(issue(u+NS-1))
            rem=sum(cnt[u+1:])
            a(f"s_waitcnt lgkmcnt({min(rem,15)})")
            delta,hs=units[u]; base=96+24*(u%NS)
            for q in range(2):
                for hi,h in enumerate(hs):
                    acc=ACC0 if h==0 else ACC1
                    r=base+8+8*hi+4*q
                    a(f"v_mfma_f32_32x32x16_bf16 v[{acc}:{acc+15}], v[{base+4*q}:{base+4*q+3}], v[{r}:{r+3}], v[{acc}:{acc+15}]")
    mainloop([(d,[0,1]) for d in range(16)]+[(d,[0]) for d in range(16,32)])
    a(f"s_branch {lJ}")
    a.label(lB)
    mainloop([(d,[1]) for d in range(16,64)])
    a.label(lJ)
    a("s_nop 15")
    a("s_barrier")
    a("v_lshl_add_u32 v15, v10, 4, v8")
    lB2=a.newlabel("cv_B2"); lJ2=a.newlabel("cv_J2")
    a("s_cmp_eq_u32 s25, 1")
    a(f"s_cbranch_scc1 {lB2}")
    for i in range(4): a(f"ds_write_b128 v15, v[{ACC1+4*i}:{ACC1+4*i+3}] offset:{i*1024}")
    a("s_waitcnt lgkmcnt(0)")
    a.label(lB2)
    a("s_barrier")
    a("s_cmp_eq_u32 s25, 0")
    a(f"s_cbranch_scc1 {lJ2}")
    for i in range(4): a(f"ds_read_b128 v[{96+4*i}:{96+4*i+3}], v15 offset:{i*1024}")
    a("s_waitcnt lgkmcnt(0)")
    for i in range(16): a(f"v_add_f32 v{ACC0+i}, v{ACC1+i}, v{96+i}")
    a.label(lJ2)
    a("v_lshlrev_b32 v16, 3, v12")
    a("v_sub_u32 v16, v14, v16")
    a("s_mul_i32 s26, s25, 2560")
    a("v_add_u32 v16, s26, v16")
    for rq in range(4): a(f"ds_read_b64 v[{96+2*rq}:{97+2*rq}], v16 offset:{80*31+16*rq}")
    a("v_lshlrev_b32 v17, 12, v3")
    a("v_lshl_add_u32 v17, v11, 6, v17")
    a("v_lshl_add_u32 v17, v12, 3, v17")
    a("s_lshl_b32 s26, s25, 11")
    a("v_add_u32 v17, s26, v17")
    a("s_waitcnt lgkmcnt(0)")
    for rq in range(4):
        for p in range(2):
            x=96+2*rq+p
            y0=ACC0+4*rq+2*p
            a(f"v_lshlrev_b32 v20, 16, v{x}")
            a(f"v_and_b32 v21, 0xffff0000, v{x}")
            a("v_mul_f32 v20, v20, v7")
            a("v_mul_f32 v21, v21, v7")
            a("v_cvt_pk_bf16_f32 v22, v20, v21")
            a(f"v_cvt_pk_bf16_f32 v23, v{y0}, v{y0+1}")
            a("v_lshlrev_b32 v20, 16, v22")
            a("v_and_b32 v21, 0xffff0000, v22")
            a("v_lshlrev_b32 v24, 16, v23")
            a("v_and_b32 v25, 0xffff0000, v23")
            a("v_add_f32 v20, v20, v24")
            a("v_add_f32 v21, v21, v25")
            a(f"v_cvt_pk_bf16_f32 v{26+2*(rq&1)+p}, v20, v21")
        a(f"buffer_store_dwordx2 v[{26+2*(rq&1)}:{27+2*(rq&1)}], v17, s[16:19], 0 offen offset:{16*rq} sc1")
    a("s_waitcnt vmcnt(0)")
    a("s_barrier")
    ws_srd(a, 52, CF_OFF, 4096)
    a("s_lshr_b32 s26, s3, 5")
    a("s_lshl_b32 s26, s26, 8")
    a("v_mov_b32 v20, s26")
    a("v_mov_b32 v21, 1")
    a("v_cmp_eq_u32 vcc, 0, v0")
    a("s_and_saveexec_b64 s[26:27], vcc")
    a("buffer_atomic_add v21, v20, s[52:55], 0 offen")
    a("s_mov_b64 exec, s[26:27]")
    rt_end(a,1)


def k12(name):
    a=Asm(); a.label(name)
    if RT: a("s_memrealtime s[90:91]")
    a(HEAD_A)
    a("s_cmp_ge_u32 s2, 480")
    a(f"s_cbranch_scc1 {name}_exit")
    a("s_cmp_ge_u32 s2, 256")
    a(f"s_cbranch_scc1 {name}_conv")
    a("""
    v_and_b32 v1, 63, v0
    v_lshrrev_b32 v2, 6, v0
    s_nop 0
    v_readfirstlane_b32 s22, v2
    s_nop 3
    """)
    claim_both(a)
    if RT: a("s_memrealtime s[56:57]")
    gemm1_4(a, f"{name}_g2")
    a.label(f"{name}_g2")
    gemm2_4(a, f"{name}_exit")
    a.label(f"{name}_conv")
    a("s_sub_u32 s3, s2, 256")
    conv4(a)
    a.label(f"{name}_exit")
    a("s_endpgm")
    return a.text()

def kgen5(a):
    UP=528; WREG=16*UP; CHREG=4*WREG
    KD_OFF=12288
    a(f"s_setprio {os.environ.get('KGP','2')}")
    srd(a, 8, 66, 67, 448*512)
    srd(a, 12, 68, 69, 448*512)
    srd(a, 16, 70, 71, 448*512)
    srd(a, 20, 72, 73, 448*512)
    srd(a, 24, 74, 75, 448*2)
    ws_srd(a, 44, KR_OFF, KR_SZ)
    a("""
    v_mov_b32 v130, v0
    s_lshl_b32 s28, s3, 10
    v_lshlrev_b32 v1, 1, v0
    v_add_u32 v1, s28, v1
    s_lshl_b32 s29, s3, 2
    v_mov_b32 v10, s29
    buffer_load_ushort v4, v1, s[8:11], 0 offen
    buffer_load_ushort v5, v1, s[12:15], 0 offen
    buffer_load_ushort v6, v1, s[16:19], 0 offen
    buffer_load_ushort v7, v1, s[20:23], 0 offen
    buffer_load_ushort v8, v10, s[24:27], 0 offen
    buffer_load_ushort v131, v1, s[8:11], 0 offen offset:512
    buffer_load_ushort v132, v1, s[12:15], 0 offen offset:512
    buffer_load_ushort v133, v1, s[16:19], 0 offen offset:512
    buffer_load_ushort v134, v1, s[20:23], 0 offen offset:512
    buffer_load_ushort v135, v10, s[24:27], 0 offen offset:2
    v_mov_b32 v3, 0
    s_lshl_b32 s29, s3, 1
    v_mov_b32 v2, s29                  ; channel d
    s_mov_b32 s40, 0
    """)
    a("v_and_b32 v1, 63, v0")
    a("v_lshrrev_b32 v0, 6, v0")
    a(f"v_mul_u32_u24 v14, {WREG}, v0")
    a("v_lshrrev_b32 v10, 4, v1")
    a("v_and_b32 v15, 15, v1")
    a(f"v_mul_u32_u24 v15, {UP}, v15")
    a("v_lshl_add_u32 v15, v10, 4, v15")
    a("v_add_u32 v15, v15, v14")
    a("v_lshl_add_u32 v14, v1, 2, v14")
    a("s_waitcnt vmcnt(0)")
    lloop=a.newlabel("kg_loop")
    a.label(lloop)
    a("""
    v_lshlrev_b32 v4, 16, v4
    v_lshlrev_b32 v5, 16, v5
    v_lshlrev_b32 v6, 16, v6
    v_lshlrev_b32 v7, 16, v7
    v_lshlrev_b32 v8, 16, v8
    """)
    acc_exp(a, 9, 8, 10, 11)
    bf16r(a, 9, 9)
    acc_exp(a, 12, 4, 10, 11)
    bf16r(a, 12, 12)
    a("v_mul_f32 v12, v12, v9")
    a("v_mul_f32 v13, v5, v9")
    a("v_mul_f32 v6, v6, v9")
    a("v_mul_f32 v7, v7, v9")
    a("v_add_f32 v6, v6, v6")
    a("v_add_f32 v7, v7, v7")
    a(f"v_mul_f32 v12, {hex(f2u(-1.4426950408889634))}, v12")
    a(f"v_mul_f32 v13, {hex(f2u(0.15915494309189535))}, v13")
    T=16
    def direct(d,p):
        a(f"v_mul_f32 v{T}, {hex(f2u(float(p)))}, v12")
        a(f"v_mul_f32 v{T+1}, {hex(f2u(float(p)))}, v13")
        a(f"v_exp_f32 v{T}, v{T}")
        a(f"v_fract_f32 v{T+1}, v{T+1}")
        a(f"v_cos_f32 v{d}, v{T+1}")
        a(f"v_sin_f32 v{d+1}, v{T+1}")
        a("s_nop 0")
        a(f"v_mul_f32 v{d}, v{d}, v{T}")
        a(f"v_mul_f32 v{d+1}, v{d+1}, v{T}")
    def split_write(src,row):
        a(f"v_cvt_pk_bf16_f32 v4, v{src}, v{src+1}")
        a("v_lshlrev_b32 v8, 16, v4")
        a("v_and_b32 v9, 0xffff0000, v4")
        a(f"v_pk_add_f32 v[8:9], v[{src}:{src+1}], v[8:9] neg_lo:[0,1] neg_hi:[0,1]")
        a("v_cvt_pk_bf16_f32 v5, v8, v9")
        a(f"v_add_u32 v10, {row*UP}, v14")
        a("ds_write2_b32 v10, v4, v5 offset0:0 offset1:64")
    BH=64; BL=80; AF=96; ACC=112
    V={1:20,2:22,4:24,8:26,3:28,5:30,6:32,7:34}
    direct(V[1],8); pk_cmul(a,V[2],V[1],V[1],T); pk_cmul(a,V[4],V[2],V[2],T); pk_cmul(a,V[8],V[4],V[4],T)
    pk_cmul(a,V[3],V[1],V[2],T); pk_cmul(a,V[5],V[4],V[1],T); pk_cmul(a,V[6],V[4],V[2],T); pk_cmul(a,V[7],V[4],V[3],T)
    a("v_mov_b32 v36, 1.0"); a("v_mov_b32 v37, 0")
    split_write(36,0)
    for j in range(1,9): split_write(V[j],j)
    for j in range(9,16):
        pk_cmul(a,36,V[8],V[j-8],T); split_write(36,j)
    a("s_waitcnt lgkmcnt(0)")
    for s in range(4):
        a(f"ds_read_b128 v[{BH+4*s}:{BH+4*s+3}], v15 offset:{64*s}")
        a(f"ds_read_b128 v[{BL+4*s}:{BL+4*s+3}], v15 offset:{256+64*s}")
    S={1:20,2:22,3:24,4:26,5:28,6:30,7:32}
    direct(S[1],1); pk_cmul(a,S[2],S[1],S[1],T); pk_cmul(a,S[4],S[2],S[2],T)
    pk_cmul(a,S[3],S[1],S[2],T); pk_cmul(a,S[5],S[1],S[4],T); pk_cmul(a,S[6],S[2],S[4],T); pk_cmul(a,S[7],S[3],S[4],T)
    G={1:48,2:50,4:52,8:54,16:56}
    direct(G[1],128)
    for m in (2,4,8,16): pk_cmul(a,G[m],G[m//2],G[m//2],T)
    W={0:6}
    for m in range(1,8): W[m]=32+2*m
    pk_cmul(a,W[1],6,G[1],T); pk_cmul(a,W[2],6,G[2],T); pk_cmul(a,W[3],W[1],G[2],T); pk_cmul(a,W[4],6,G[4],T)
    pk_cmul(a,W[5],W[1],G[4],T); pk_cmul(a,W[6],W[2],G[4],T); pk_cmul(a,W[7],W[3],G[4],T)
    for i in range(12): a(f"v_mov_b32 v{ACC+i}, 0")
    R=58
    rows={}
    rows[0]=[('ws',i//8,i%8) for i in range(16)]
    rows[1]=[('ws',2+i//4,2*(i%4)) for i in range(8)]+[('ws',4+i//2,4*(i%2)) for i in range(8)]
    rows[2]=[('wg',i,8) for i in range(8)]+[('wg',0,16)]+[None]*7
    for t in (2,1,0):
        a("s_waitcnt lgkmcnt(0)")
        for i,rw in enumerate(rows[t]):
            if rw is None:
                a(f"v_mov_b32 v{R}, 0"); a(f"v_mov_b32 v{R+1}, 0")
            elif rw[0]=='wg':
                pk_cmul(a,R,W[rw[1]],G[rw[2]],T,negim=True)
            elif rw[2]==0:
                a(f"v_mov_b32 v{R}, v{W[rw[1]]}")
                a(f"v_sub_f32 v{R+1}, 0, v{W[rw[1]]+1}")
            else:
                pk_cmul(a,R,W[rw[1]],S[rw[2]],T,negim=True)
            split_write(R,i)
        a("s_waitcnt lgkmcnt(0)")
        acc=ACC+4*t
        for s in range(4): a(f"ds_read_b128 v[{AF+4*s}:{AF+4*s+3}], v15 offset:{64*s}")
        for s in range(4):
            a(f"s_waitcnt lgkmcnt({3-s})")
            a(f"v_mfma_f32_16x16x32_bf16 v[{acc}:{acc+3}], v[{AF+4*s}:{AF+4*s+3}], v[{BH+4*s}:{BH+4*s+3}], v[{acc}:{acc+3}]")
            a(f"v_mfma_f32_16x16x32_bf16 v[{acc}:{acc+3}], v[{AF+4*s}:{AF+4*s+3}], v[{BL+4*s}:{BL+4*s+3}], v[{acc}:{acc+3}]")
        for s in range(4): a(f"ds_read_b128 v[{AF+4*s}:{AF+4*s+3}], v15 offset:{256+64*s}")
        for s in range(4):
            a(f"s_waitcnt lgkmcnt({3-s})")
            a(f"v_mfma_f32_16x16x32_bf16 v[{acc}:{acc+3}], v[{AF+4*s}:{AF+4*s+3}], v[{BH+4*s}:{BH+4*s+3}], v[{acc}:{acc+3}]")
    a("s_nop 15")
    a("s_barrier")
    a(f"v_mul_u32_u24 v16, {CHREG}, v3")
    a("v_and_b32 v17, 3, v0")
    a("v_mul_u32_u24 v18, 3072, v17")
    a("v_add_u32 v18, v18, v16")
    a("v_lshl_add_u32 v18, v1, 4, v18")
    for t in range(3):
        a(f"ds_write_b128 v18, v[{ACC+4*t}:{ACC+4*t+3}] offset:{t*1024}")
    a("s_waitcnt lgkmcnt(0)")
    a("s_barrier")
    skip=a.newlabel("kg_skip")
    a("v_readfirstlane_b32 s28, v17")
    a("s_nop 3")
    a("s_cmp_ge_u32 s28, 3")
    a(f"s_cbranch_scc1 {skip}")
    a("v_lshlrev_b32 v18, 10, v17")
    a("v_add_u32 v18, v18, v16")
    a("v_lshl_add_u32 v18, v1, 4, v18")
    for w in range(4):
        a(f"ds_read_b128 v[{20+4*w}:{23+4*w}], v18 offset:{w*3072}")
    a("s_waitcnt lgkmcnt(0)")
    for r in range(4):
        a(f"v_add_f32 v{20+r}, v{20+r}, v{24+r}")
        a(f"v_add_f32 v{28+r}, v{28+r}, v{32+r}")
        a(f"v_add_f32 v{20+r}, v{20+r}, v{28+r}")
    a("v_lshrrev_b32 v4, 4, v1")
    a("v_and_b32 v5, 15, v1")
    a("v_lshlrev_b32 v5, 5, v5")
    a("v_add_u32 v5, v5, v16")
    t1=a.newlabel("kg_t1"); t2=a.newlabel("kg_t2"); done=a.newlabel("kg_td")
    a("s_cmp_eq_u32 s28, 1"); a(f"s_cbranch_scc1 {t1}")
    a("s_cmp_eq_u32 s28, 2"); a(f"s_cbranch_scc1 {t2}")
    a("v_lshrrev_b32 v6, 1, v4"); a("v_lshlrev_b32 v6, 7, v6"); a("v_and_b32 v7, 1, v4"); a("v_lshl_add_u32 v6, v7, 2, v6")
    a("v_lshl_add_u32 v6, v6, 2, v5")
    for r in range(4): a(f"ds_write_b32 v6, v{20+r} offset:{KD_OFF+4*r}")
    a(f"s_branch {done}")
    a.label(t1)
    a("v_lshlrev_b32 v6, 7, v4"); a("v_add_u32 v6, 256, v6")
    a("v_lshlrev_b32 v7, 8, v4")
    a("v_cmp_gt_u32 vcc, 2, v4")
    a("s_nop 1")
    for r in range(4):
        a(f"v_add_u32 v8, {2*r}, v6")
        a(f"v_add_u32 v9, {128*(r//2)+4*(r%2)}, v7")
        a("v_cndmask_b32 v8, v9, v8, vcc")
        a("v_lshl_add_u32 v8, v8, 2, v5")
        a(f"ds_write_b32 v8, v{20+r} offset:{KD_OFF}")
    a(f"s_branch {done}")
    a.label(t2)
    a("v_lshlrev_b32 v6, 9, v4"); a("v_add_u32 v6, 1024, v6")
    for r in range(4):
        a(f"v_add_u32 v8, {128*r}, v6")
        a("v_min_u32 v8, 2176, v8")
        a("v_lshl_add_u32 v8, v8, 2, v5")
        a(f"ds_write_b32 v8, v{20+r} offset:{KD_OFF}")
    a.label(done)
    a.label(skip)
    a("s_waitcnt lgkmcnt(0)")
    a("s_barrier")
    a("v_lshl_add_u32 v18, v17, 6, v1")
    a("v_lshlrev_b32 v19, 3, v18")
    a("v_sub_u32 v19, 2047, v19")
    for e in range(8):
        a(f"v_subrev_u32 v4, {e}, v19")
        a("v_cvt_f32_u32 v4, v4")
        a("v_cvt_pk_bf16_f32 v4, v4, v4")
        a("v_lshlrev_b32 v4, 16, v4")
        a("v_cvt_u32_f32 v4, v4")
        a("v_lshl_add_u32 v4, v4, 2, v16")
        a(f"ds_read_b32 v{20+e}, v4 offset:{KD_OFF}")
    a(f"v_mul_u32_u24 v5, {KRP}, v2")
    a("v_lshl_add_u32 v5, v18, 4, v5")
    a("s_waitcnt lgkmcnt(0)")
    for e in range(4):
        a(f"v_cvt_pk_bf16_f32 v{28+e}, v{20+2*e}, v{21+2*e}")
    a("buffer_store_dwordx4 v[28:31], v5, s[44:47], 0 offen")
    a("v_mov_b32 v32, 0"); a("v_mov_b32 v33, 0"); a("v_mov_b32 v34, 0"); a("v_mov_b32 v35, 0")
    a("v_cmp_gt_u32 vcc, 8, v18")
    a("s_and_saveexec_b64 s[48:49], vcc")
    skipz=a.newlabel("kg_z")
    a(f"s_cbranch_execz {skipz}")
    a("s_mov_b32 s28, 4096")
    a("buffer_store_dwordx4 v[32:35], v5, s[44:47], s28 offen")
    a.label(skipz)
    a("s_mov_b64 exec, -1")
    ldone=a.newlabel("kg_done")
    a("s_cmp_eq_u32 s40, 1")
    a(f"s_cbranch_scc1 {ldone}")
    a("s_mov_b32 s40, 1")
    a("v_add_u32 v2, 1, v2")
    for i in range(5): a(f"v_mov_b32 v{4+i}, v{131+i}")
    a("s_barrier")
    a(f"s_branch {lloop}")
    a.label(ldone)
    a("v_mov_b32 v0, v130")
    a("s_waitcnt vmcnt(0)")
    a("s_barrier")
    if RT: a("s_memrealtime s[56:57]")


def k0b(name):
    a=Asm(); a.label(name)
    if RT: a("s_memrealtime s[90:91]")
    a(HEAD_A)
    a("s_cmp_ge_u32 s2, 32")
    a(f"s_cbranch_scc1 {name}_pf")
    a("s_mov_b32 s3, s2")
    lz=a.newlabel("k0_z")
    a("s_cmp_lg_u32 s3, 0")
    a(f"s_cbranch_scc1 {lz}")
    ws_srd(a, 52, CNT_OFF, 24576)
    a("v_lshlrev_b32 v4, 4, v0")
    a("v_mov_b32 v8, 0\nv_mov_b32 v9, 0\nv_mov_b32 v10, 0\nv_mov_b32 v11, 0")
    a("buffer_store_dwordx4 v[8:11], v4, s[52:55], 0 offen")
    a("s_mov_b32 s26, 8192")
    a("buffer_store_dwordx4 v[8:11], v4, s[52:55], s26 offen")
    a("s_mov_b32 s26, 16384")
    a("buffer_store_dwordx4 v[8:11], v4, s[52:55], s26 offen")
    a.label(lz)
    ln3(a)
    a.label(f"{name}_pf")
    a("s_cmp_ge_u32 s2, 88")
    a(f"s_cbranch_scc1 {name}_exit")
    a("s_sub_u32 s3, s2, 32")
    a("s_cmp_ge_u32 s3, 28")
    a("s_cselect_b32 s48, s82, s80")
    a("s_cselect_b32 s49, s83, s81")
    a(f"s_mov_b32 s50, {448*3584}")
    a("s_mov_b32 s51, 0x00020000")
    a("s_cselect_b32 s23, 28, 0")
    a("s_sub_u32 s3, s3, s23")
    a("s_mul_i32 s23, s3, 57344")
    a("v_lshlrev_b32 v4, 4, v0")
    for i in range(7):
        a(f"buffer_load_dwordx4 v[8:11], v4, s[48:51], s23 offen")
        if i<6: a("s_add_u32 s23, s23, 8192")
    a("s_waitcnt vmcnt(0)")
    a.label(f"{name}_exit")
    a("s_endpgm")
    return a.text()

def k1b(name):
    a=Asm(); a.label(name)
    if RT: a("s_memrealtime s[90:91]")
    a(HEAD_A)
    a("s_cmp_ge_u32 s2, 480")
    a(f"s_cbranch_scc1 {name}_exit")
    a("s_cmp_ge_u32 s2, 256")
    a(f"s_cbranch_scc1 {name}_conv")
    a("""
    v_and_b32 v1, 63, v0
    v_lshrrev_b32 v2, 6, v0
    s_nop 0
    v_readfirstlane_b32 s22, v2
    s_nop 3
    """)
    claim_both(a)
    gemm1_4(a, f"{name}_g2")
    a.label(f"{name}_g2")
    gemm2_4(a, f"{name}_exit")
    a.label(f"{name}_conv")
    a("s_sub_u32 s3, s2, 256")
    kgen5(a)
    conv4(a)
    a.label(f"{name}_exit")
    a("s_endpgm")
    return a.text()
```

```python
from asm import *
import os, struct
import numpy as np
DIS=os.environ.get('DIS','').split(',')
XN_OFF=0; XNT_OFF=0x200000; KR_OFF=0x400000; H_OFF=0x600000; ST_OFF=0xE00000
XN_SZ=2048*448*2; KRP=4224; KR_SZ=448*KRP; H_SZ=2048*1792*2
def f2u(f): return struct.unpack('<I', struct.pack('<f', f))[0]

STATS_OFF=0x1200000
G1_WGS=256; KG_WGS=224; LN_WGS=32
EXIT=[None]
KA_LDS=81920

RT=os.environ.get('RT','')
def rt_end(a, kid):
    if RT:
        a("s_waitcnt vmcnt(0) lgkmcnt(0)")
        a("s_memrealtime s[92:93]")
        a("s_mov_b64 exec, -1")
        a("s_waitcnt lgkmcnt(0)")
        a(f"s_add_u32 s96, s6, {0x1100000+kid*0x10000}")
        a("s_addc_u32 s97, s7, 0")
        a("s_mov_b32 s98, 0x10000")
        a("s_mov_b32 s99, 0x00020000")
        a("s_lshl_b32 s94, s2, 6")
        a("v_mov_b32 v4, s90\nv_mov_b32 v5, s91\nv_mov_b32 v6, s92\nv_mov_b32 v7, s93\nv_mov_b32 v8, s94")
        a("buffer_store_dwordx4 v[4:7], v8, s[96:99], 0 offen")
        a("s_nop 2")
        a("v_mov_b32 v4, s56\nv_mov_b32 v5, s57\nv_mov_b32 v6, s58\nv_mov_b32 v7, s59")
        a("buffer_store_dwordx4 v[4:7], v8, s[96:99], 0 offen offset:16")
        a("s_nop 2")
        a("v_mov_b32 v4, s60\nv_mov_b32 v5, s61\nv_mov_b32 v6, s62\nv_mov_b32 v7, s63")
        a("buffer_store_dwordx4 v[4:7], v8, s[96:99], 0 offen offset:32")
    a("s_endpgm")

def ws_srd(a, d, off, nbytes, wlo=6, whi=7):
    a(f"s_add_u32 s{d}, s{wlo}, {off}")
    a(f"s_addc_u32 s{d+1}, s{whi}, 0")
    a(f"s_mov_b32 s{d+2}, {nbytes}")
    a(f"s_mov_b32 s{d+3}, 0x00020000")

def bf16r(a, dst, src):
    a(f"v_cvt_pk_bf16_f32 v{dst}, v{src}, v{src}")
    a(f"v_lshlrev_b32 v{dst}, 16, v{dst}")

def dpp_reduce8(a, v):
    a("s_nop 1")
    a(f"v_add_f32_dpp v{v}, v{v}, v{v} quad_perm:[1,0,3,2] row_mask:0xf bank_mask:0xf")
    a("s_nop 1")
    a(f"v_add_f32_dpp v{v}, v{v}, v{v} quad_perm:[2,3,0,1] row_mask:0xf bank_mask:0xf")
    a("s_nop 1")
    a(f"v_add_f32_dpp v{v}, v{v}, v{v} row_half_mirror row_mask:0xf bank_mask:0xf")

TSA=os.environ.get('TSA','')!=''
def tsa(a, idx):
    if not TSA: return
    a(f"s_memtime s[{60+2*idx}:{61+2*idx}]")
def tsa_flush(a, n):
    if not TSA: return
    a("s_waitcnt lgkmcnt(0)")
    ws_srd(a, 56, 0x1000000, 0x100000)
    a("s_lshl_b32 s80, s2, 8")
    a("v_lshrrev_b32 v100, 6, v0")
    a("v_and_b32 v100, 3, v100")
    a("v_lshlrev_b32 v100, 6, v100")
    a("v_add_u32 v100, s80, v100")
    for i in range(n):
        a(f"v_mov_b32 v102, s{60+2*i}")
        a(f"v_mov_b32 v103, s{61+2*i}")
        a(f"buffer_store_dwordx2 v[102:103], v100, s[56:59], 0 offen offset:{8*i}")
        a("s_nop 2")
def claim_tile(a, dsrd, wbase, exit_label, wave_sgpr):
    a("s_getreg_b32 s27, hwreg(HW_REG_XCC_ID)")
    a("s_and_b32 s27, s27, 7")
    lskip=a.newlabel("cl_skip"); lp=a.newlabel("cl_loop"); ld=a.newlabel("cl_done")
    a(f"s_cmp_lg_u32 s{wave_sgpr}, 0")
    a(f"s_cbranch_scc1 {lskip}")
    a("s_mov_b32 s28, 0")
    a("s_mov_b64 s[30:31], exec")
    a("s_mov_b64 exec, 1")
    a.label(lp)
    a(f"s_add_u32 s26, s27, {wbase}")
    a("s_lshl_b32 s26, s26, 2")
    a("v_mov_b32 v4, s26")
    a("v_mov_b32 v5, 1")
    a(f"buffer_atomic_add v5, v4, s[{dsrd}:{dsrd+3}], 0 offen sc0")
    a("s_waitcnt vmcnt(0)")
    a("v_readfirstlane_b32 s26, v5")
    a("s_nop 3")
    a("s_cmp_lt_u32 s26, 28")
    a(f"s_cbranch_scc1 {ld}")
    a("s_add_u32 s27, s27, 1")
    a("s_and_b32 s27, s27, 7")
    a("s_add_u32 s28, s28, 1")
    a("s_cmp_lt_u32 s28, 8")
    a(f"s_cbranch_scc1 {lp}")
    a("s_mov_b32 s26, 0xff")
    a.label(ld)
    a("s_lshl_b32 s28, s27, 8")
    a("s_or_b32 s26, s26, s28")
    a("v_mov_b32 v4, 0")
    a("v_mov_b32 v5, s26")
    a("ds_write_b32 v4, v5")
    a("s_waitcnt lgkmcnt(0)")
    a("s_mov_b64 exec, s[30:31]")
    a.label(lskip)
    a("s_barrier")
    a("v_mov_b32 v4, 0")
    a("ds_read_b32 v5, v4")
    a("s_waitcnt lgkmcnt(0)")
    a("v_readfirstlane_b32 s26, v5")
    a("s_barrier")
    a("s_lshr_b32 s27, s26, 8")
    a("s_and_b32 s26, s26, 0xff")
    a("s_cmp_eq_u32 s26, 0xff")
    a(f"s_cbranch_scc1 {exit_label}")

def gemm1_role(a):
    NB=5; NST=14
    a(f"s_setprio {os.environ.get('G1P','0')}")
    tsa(a,0)
    ws_srd(a, 8, XN_OFF, XN_SZ)
    ws_srd(a, 16, H_OFF, H_SZ)
    srd(a, 12, 80, 81, 448*3584)
    srd(a, 44, 82, 83, 256)
    a("""
    v_and_b32 v1, 63, v0               ; lane
    v_lshrrev_b32 v2, 6, v0            ; wave 0..7
    s_nop 0
    v_readfirstlane_b32 s22, v2
    s_nop 3
    """)
    claim_tile(a, 44, 8, EXIT[0], 22)
    a("s_cmp_ge_u32 s26, 14")
    a("s_cselect_b32 s20, 1, 0")
    a("s_mul_i32 s21, s20, 14")
    a("s_sub_u32 s21, s26, s21")
    a("s_lshl_b32 s27, s27, 1")
    a("s_add_u32 s20, s20, s27")
    a("s_mov_b32 s29, s26")
    a("""
    v_lshrrev_b32 v3, 3, v1
    v_lshl_add_u32 v3, v2, 3, v3
    v_lshrrev_b32 v4, 1, v3
    v_and_b32 v4, 7, v4
    v_and_b32 v5, 7, v1
    v_xor_b32 v4, v4, v5
    s_lshl_b32 s23, s20, 7
    v_add_u32 v3, s23, v3
    v_mul_u32_u24 v3, 896, v3
    v_lshl_add_u32 v3, v4, 4, v3       ; voffA
    v_bfe_u32 v5, v1, 4, 2
    v_lshrrev_b32 v4, 4, v1
    v_lshl_add_u32 v4, v2, 2, v4
    v_mul_u32_u24 v4, 3584, v4
    v_bfe_u32 v6, v1, 2, 2
    v_xor_b32 v6, v6, v5
    v_and_b32 v7, 3, v1
    v_lshl_add_u32 v6, v6, 2, v7
    v_lshl_add_u32 v4, v6, 4, v4
    s_lshl_b32 s23, s21, 8
    v_add_u32 v4, s23, v4              ; voffB
    s_lshl_b32 s24, s22, 10            ; wave*1024
    """)
    NSL=10; NP=28
    a("s_mul_hi_u32 s30, s29, 0x24924925")
    a("s_mul_i32 s30, s30, 7")
    a("s_sub_u32 s31, s29, s30")
    for k in range(7):
        a(f"s_lshl_b32 s{32+k}, s31, 7")
        a("s_add_u32 s31, s31, 1")
        a("s_cmp_eq_u32 s31, 7")
        a("s_cselect_b32 s31, 0, s31")
    def issue(p):
        c=p//4; k=p%4; sl=p%NSL
        a(f"s_add_u32 m0, s24, {sl*8192}")
        if k in (1,2):
            if k==2: a(f"s_add_u32 s25, s{32+c}, {64*896}")
            else: a(f"s_mov_b32 s25, s{32+c}")
            a(f"buffer_load_dwordx4 v3, s[8:11], s25 offen sc1 lds")
        else:
            a(f"s_mul_i32 s25, s{32+c}, 1792")
            if k==3: a(f"s_add_u32 s25, s25, {32*3584}")
            a(f"buffer_load_dwordx4 v4, s[12:15], s25 offen lds")
        a.vm_issue(p)
    for p in range(NSL):
        if p%4 in (0,3): issue(p)
    lp=a.newlabel("g1_poll"); ld=a.newlabel("g1_pd")
    a("s_cmp_lg_u32 s22, 0")
    a(f"s_cbranch_scc1 {ld}")
    a("s_add_u32 s23, s20, 16")
    a("s_lshl_b32 s23, s23, 2")
    a("v_mov_b32 v29, s23")
    a(f"s_sleep {os.environ.get('SL0','64')}")
    a.label(lp)
    a("buffer_load_dword v30, v29, s[44:47], 0 offen sc1")
    a("s_waitcnt vmcnt(0)")
    a("v_readfirstlane_b32 s23, v30")
    a("s_nop 3")
    a(f"s_cmp_ge_u32 s23, {0 if 'ln' in DIS else 2}")
    a(f"s_cbranch_scc1 {ld}")
    a(f"s_sleep {os.environ.get('SL1','32')}")
    a(f"s_branch {lp}")
    a.label(ld)
    a("s_barrier")
    for p in range(NSL):
        if p%4 in (1,2): issue(p)
    a("""
    v_and_b32 v8, 31, v1               ; m / n
    v_lshrrev_b32 v9, 5, v1            ; g
    v_lshrrev_b32 v10, 2, v2           ; wr
    v_and_b32 v11, 3, v2               ; wc
    s_lshr_b32 s28, s22, 2             ; wr
    v_lshlrev_b32 v12, 7, v8           ; m*128
    v_bfe_u32 v13, v8, 1, 3
    v_xor_b32 v13, v13, v9
    v_lshl_add_u32 v12, v13, 4, v12
    v_bfe_u32 v14, v1, 2, 2            ; r
    v_lshl_add_u32 v15, v9, 3, v14
    v_lshlrev_b32 v15, 8, v15
    v_xor_b32 v16, v11, v14
    v_lshl_add_u32 v15, v16, 6, v15
    v_bfe_u32 v16, v1, 4, 1
    v_lshl_add_u32 v15, v16, 5, v15
    v_and_b32 v16, 3, v1
    v_lshl_add_u32 v15, v16, 3, v15
    """)
    ACC=64
    for i in range(32): a(f"v_mov_b32 v{ACC+i}, 0")
    FAs=[32,96]; FBs=[48,56]
    def reads(s):
        c=s//2; h=s%2
        FA=FAs[s&1]; FB=FBs[s&1]
        pB=4*c+(3 if h else 0)
        sl0=((4*c+1)%NSL)*8192; sl1=((4*c+2)%NSL)*8192
        a(f"s_mov_b32 s26, {sl0}")
        a(f"s_mov_b32 s27, {sl1}")
        a("s_cmp_eq_u32 s28, 0")
        a("s_cselect_b32 s26, s26, s27")
        a(f"v_xor_b32 v17, {64*h}, v12")
        a("v_add_u32 v17, s26, v17")
        a("v_xor_b32 v18, 32, v17")
        a(f"v_add_u32 v19, {(pB%NSL)*8192}, v15")
        for ks in range(2):
            for mt in range(2):
                r=FA+8*ks+4*mt
                a(f"ds_read_b128 v[{r}:{r+3}], v{17+ks} offset:{mt*4096}")
            for i in range(2):
                r=FB+4*ks+2*i
                a(f"ds_read_b64_tr_b16 v[{r}:{r+1}], v19 offset:{(16*ks+4*i)*256}")
    def needs(s):
        c=s//2
        return [4*c+3] if s%2 else [4*c,4*c+1,4*c+2]
    def wait_stage(s):
        idx=[i for i,t in enumerate(a.vm) if t in needs(s)]
        if idx: a.vm_wait(a.vm[max(idx)])
    wait_stage(0)
    a("s_barrier")
    reads(0)
    st={'nxt':NSL}
    for s in range(NST):
        FA=FAs[s&1]; FB=FBs[s&1]
        if s+1<NST: wait_stage(s+1)
        a("s_waitcnt lgkmcnt(0)")
        a("s_barrier")
        if s==0: tsa(a,1)
        if s==2: tsa(a,2)
        if s==8: tsa(a,3)
        nfree = 1 if s%2==0 else 3
        def fill():
            global_nxt=None
            for _ in range(nfree):
                if st['nxt']<NP: issue(st['nxt']); st['nxt']+=1
            if s+1<NST: reads(s+1)
        def prim():
            for ks in range(2):
                for mt in range(2):
                    acc=ACC+16*mt
                    ra=FA+8*ks+4*mt; rb=FB+4*ks
                    a(f"v_mfma_f32_32x32x16_bf16 v[{acc}:{acc+15}], v[{rb}:{rb+3}], v[{ra}:{ra+3}], v[{acc}:{acc+15}]")
        interleave(a, capture(a,prim), capture(a,fill))
    tsa(a,4)
    a("s_nop 15")
    a("s_barrier")
    tsa(a,5)
    HP=272
    a(f"v_lshl_add_u32 v20, v10, 6, v8")
    a(f"v_mul_u32_u24 v20, {HP}, v20")
    a("v_lshl_add_u32 v20, v11, 6, v20")
    a("v_lshl_add_u32 v20, v9, 3, v20")
    k=0
    for mt in range(2):
        acc=ACC+16*mt; s0=26+2*mt
        for q in range(4):
            t=48+2*(k%4); k+=1
            for e in range(4):
                r=acc+4*q+e
                a(f"v_max_f32 v{r}, 0, v{r}")
            a(f"v_cvt_pk_bf16_f32 v{t}, v{acc+4*q}, v{acc+4*q+1}")
            a(f"v_cvt_pk_bf16_f32 v{t+1}, v{acc+4*q+2}, v{acc+4*q+3}")
            a(f"ds_write_b64 v20, v[{t}:{t+1}] offset:{2048+mt*32*HP+16*q}")
    a("s_waitcnt lgkmcnt(0)")
    a("s_barrier")
    a("v_lshrrev_b32 v21, 4, v0")
    a("v_and_b32 v22, 15, v0")
    a(f"v_mul_u32_u24 v23, {HP}, v21")
    a("v_lshl_add_u32 v23, v22, 4, v23")
    for j in range(4):
        a(f"ds_read_b128 v[{32+4*j}:{35+4*j}], v23 offset:{2048+j*32*HP}")
    a("s_lshl_b32 s23, s20, 7")
    a("v_add_u32 v21, s23, v21")
    a("v_mul_u32_u24 v21, 3584, v21")
    a("v_lshl_add_u32 v21, v22, 4, v21")
    a("s_lshl_b32 s23, s21, 8")
    a("v_add_u32 v21, s23, v21")
    for j in range(4):
        a(f"s_mov_b32 s25, {j*32*3584}")
        a(f"s_waitcnt lgkmcnt({3-j})")
        a(f"buffer_store_dwordx4 v[{32+4*j}:{35+4*j}], v21, s[16:19], s25 offen")
    a("s_waitcnt vmcnt(0)")
    tsa(a,6)
    tsa_flush(a,7)
    rt_end(a,0)

def ln_role(a):
    PITCH=928
    a("s_setprio 3")
    a(f"s_sub_u32 s3, s2, {G1_WGS+KG_WGS}")
    srd(a, 8, 4, 5, XN_SZ)
    ws_srd(a, 16, XNT_OFF, XN_SZ)
    a("""
    v_lshrrev_b32 v2, 3, v0
    v_and_b32 v3, 7, v0
    s_lshl_b32 s20, s3, 6
    v_add_u32 v4, s20, v2
    v_mul_u32_u24 v1, 896, v4
    v_lshl_add_u32 v1, v3, 4, v1
    """)
    for i in range(7):
        a(f"buffer_load_dwordx4 v[{16+4*i}:{19+4*i}], v1, s[8:11], 0 offen offset:{i*128}")
    a("v_mov_b32 v5, 0x3f803f80")
    a("v_mov_b32 v6, 0")
    a("v_mov_b32 v7, 0")
    a("s_waitcnt vmcnt(0)")
    for i in range(28):
        a(f"v_dot2_f32_bf16 v{6+(i&1)}, v{16+i}, v5, v{6+(i&1)}")
    a("s_nop 3")
    a("v_add_f32 v6, v6, v7")
    dpp_reduce8(a, 6)
    a(f"v_mul_f32 v6, {hex(f2u(1.0/448))}, v6")
    a("v_mov_b32 v7, v6")
    for i in range(28):
        a(f"v_lshlrev_b32 v{44+2*i}, 16, v{16+i}")
        a(f"v_and_b32 v{45+2*i}, 0xffff0000, v{16+i}")
    a("v_mov_b32 v8, 0")
    a("v_mov_b32 v9, 0")
    for i in range(28):
        a(f"v_pk_add_f32 v[10:11], v[{44+2*i}:{45+2*i}], v[6:7] neg_lo:[0,1] neg_hi:[0,1]")
        a("v_pk_fma_f32 v[8:9], v[10:11], v[10:11], v[8:9]")
    a("v_add_f32 v8, v8, v9")
    dpp_reduce8(a, 8)
    a(f"v_mul_f32 v8, {hex(f2u(1.0/448))}, v8")
    bf16r(a, 8, 8)
    a(f"v_add_f32 v8, {hex(f2u(1e-5))}, v8")
    bf16r(a, 8, 8)
    a("v_sqrt_f32 v8, v8")
    a("s_nop 0")
    bf16r(a, 8, 8)
    a("v_rcp_f32 v12, v8")
    a("v_mov_b32 v9, v8")
    bf16r(a, 6, 6)
    a("v_mov_b32 v7, v6")
    a("v_mov_b32 v13, v12")
    for i in range(28):
        lo, hi = 44+2*i, 45+2*i
        a(f"v_pk_add_f32 v[{lo}:{hi}], v[{lo}:{hi}], v[6:7] neg_lo:[0,1] neg_hi:[0,1]")
        a(f"v_cvt_pk_bf16_f32 v10, v{lo}, v{hi}")
        a(f"v_lshlrev_b32 v{lo}, 16, v10")
        a(f"v_and_b32 v{hi}, 0xffff0000, v10")
        a(f"v_pk_mul_f32 v[10:11], v[{lo}:{hi}], v[12:13]")
        a(f"v_pk_fma_f32 v[{lo}:{hi}], v[10:11], v[8:9], v[{lo}:{hi}] neg_lo:[1,0,0] neg_hi:[1,0,0]")
        a(f"v_pk_fma_f32 v[10:11], v[{lo}:{hi}], v[12:13], v[10:11]")
        a(f"v_cvt_pk_bf16_f32 v{16+i}, v10, v11")
    a(f"v_mul_u32_u24 v9, {PITCH}, v2")
    a("v_lshl_add_u32 v9, v3, 4, v9")
    ws_srd(a, 12, XN_OFF, XN_SZ)
    srd(a, 44, 82, 83, 256)
    for i in range(7):
        a(f"buffer_store_dwordx4 v[{16+4*i}:{19+4*i}], v1, s[12:15], 0 offen offset:{i*128} sc1")
        a(f"ds_write_b128 v9, v[{16+4*i}:{19+4*i}] offset:{i*128}")
    a("s_waitcnt vmcnt(0) lgkmcnt(0)")
    a("s_barrier")
    a("s_lshr_b32 s23, s3, 1")
    a("s_add_u32 s23, s23, 16")
    a("s_lshl_b32 s23, s23, 2")
    a("v_mov_b32 v10, s23")
    a("v_mov_b32 v11, 1")
    a("v_cmp_eq_u32 vcc, 0, v0")
    a("s_and_saveexec_b64 s[26:27], vcc")
    a("buffer_atomic_add v11, v10, s[44:47], 0 offen")
    a("s_mov_b64 exec, s[26:27]")
    a("""
    v_and_b32 v10, 63, v0
    v_lshrrev_b32 v11, 6, v0          ; wave
    v_lshrrev_b32 v15, 2, v11         ; th
    v_and_b32 v11, 3, v11             ; dq
    v_lshrrev_b32 v12, 4, v10         ; gam
    v_bfe_u32 v13, v10, 2, 2          ; r
    v_and_b32 v14, 3, v10             ; c
    v_lshl_add_u32 v13, v12, 3, v13   ; 8gam + r
    v_lshl_add_u32 v13, v15, 5, v13   ; + 32 th
    """)
    a(f"v_mul_u32_u24 v13, {PITCH}, v13")
    a("v_lshl_add_u32 v13, v14, 3, v13")
    a("v_lshl_add_u32 v13, v11, 5, v13")
    a("""
    v_and_b32 v14, 15, v10
    v_lshl_add_u32 v14, v11, 4, v14
    v_lshlrev_b32 v14, 12, v14
    v_lshl_add_u32 v14, v12, 4, v14
    v_lshl_add_u32 v14, v15, 6, v14
    s_lshl_b32 s21, s3, 7
    v_add_u32 v14, s21, v14
    """)
    for it in range(7):
        a(f"ds_read_b64_tr_b16 v[{16+4*it}:{17+4*it}], v13 offset:{it*128}")
        a(f"ds_read_b64_tr_b16 v[{18+4*it}:{19+4*it}], v13 offset:{it*128+4*PITCH}")
    a("s_waitcnt lgkmcnt(0)")
    for it in range(7):
        a(f"s_mov_b32 s22, {it*64*4096}")
        a(f"buffer_store_dwordx4 v[{16+4*it}:{19+4*it}], v14, s[16:19], s22 offen")
    rt_end(a,0)

def pk_cmul(a, d, x, y, t, negim=False):
    a(f"v_pk_mul_f32 v[{t}:{t+1}], v[{x}:{x+1}], v[{y}:{y+1}] op_sel:[1,1] op_sel_hi:[1,0]")
    if not negim:
        a(f"v_pk_fma_f32 v[{d}:{d+1}], v[{x}:{x+1}], v[{y}:{y+1}], v[{t}:{t+1}] op_sel:[0,0,0] op_sel_hi:[0,1,1] neg_lo:[0,0,1] neg_hi:[0,0,0]")
    else:
        a(f"v_pk_fma_f32 v[{d}:{d+1}], v[{x}:{x+1}], v[{y}:{y+1}], v[{t}:{t+1}] op_sel:[0,0,0] op_sel_hi:[0,1,1] neg_lo:[0,0,1] neg_hi:[1,0,1]")

def acc_exp(a, dst, x, t0, t1):
    L2E=1.4426950408889634
    hi=np.float32(L2E); lo=np.float32(L2E-float(hi))
    a(f"s_mov_b32 s30, {hex(f2u(float(hi)))}")
    a(f"s_mov_b32 s31, {hex(f2u(float(lo)))}")
    a(f"v_mul_f32 v{t0}, s30, v{x}")
    a(f"v_fma_f32 v{t1}, v{x}, s30, -v{t0}")
    a(f"v_fma_f32 v{t1}, v{x}, s31, v{t1}")
    a(f"v_exp_f32 v{dst}, v{t0}")
    a(f"v_mul_f32 v{t1}, {hex(f2u(0.6931471805599453))}, v{t1}")
    a(f"v_fma_f32 v{dst}, v{dst}, v{t1}, v{dst}")

def kgen_role(a):
    UP=528; WREG=16*UP; CHREG=4*WREG
    KD_OFF=12288
    a(f"s_sub_u32 s3, s2, {G1_WGS}")
    a(f"s_setprio {os.environ.get('KGP','2')}")
    srd(a, 8, 66, 67, 448*512)
    srd(a, 12, 68, 69, 448*512)
    srd(a, 16, 70, 71, 448*512)
    srd(a, 20, 72, 73, 448*512)
    srd(a, 24, 74, 75, 448*2)
    ws_srd(a, 44, KR_OFF, KR_SZ)
    a("""
    s_lshl_b32 s28, s3, 10
    v_lshlrev_b32 v1, 1, v0
    v_add_u32 v1, s28, v1
    v_lshrrev_b32 v3, 8, v0            ; chsel
    s_lshl_b32 s29, s3, 1
    v_add_u32 v2, s29, v3              ; channel d
    v_lshlrev_b32 v10, 1, v2
    buffer_load_ushort v4, v1, s[8:11], 0 offen
    buffer_load_ushort v5, v1, s[12:15], 0 offen
    buffer_load_ushort v6, v1, s[16:19], 0 offen
    buffer_load_ushort v7, v1, s[20:23], 0 offen
    buffer_load_ushort v8, v10, s[24:27], 0 offen
    """)
    a("v_and_b32 v1, 63, v0")
    a("v_lshrrev_b32 v0, 6, v0")
    a(f"v_mul_u32_u24 v14, {WREG}, v0")
    a("v_lshrrev_b32 v10, 4, v1")
    a("v_and_b32 v15, 15, v1")
    a(f"v_mul_u32_u24 v15, {UP}, v15")
    a("v_lshl_add_u32 v15, v10, 4, v15")
    a("v_add_u32 v15, v15, v14")
    a("v_lshl_add_u32 v14, v1, 2, v14")
    a("""
    s_waitcnt vmcnt(0)
    v_lshlrev_b32 v4, 16, v4
    v_lshlrev_b32 v5, 16, v5
    v_lshlrev_b32 v6, 16, v6
    v_lshlrev_b32 v7, 16, v7
    v_lshlrev_b32 v8, 16, v8
    """)
    if RT: a("s_memrealtime s[86:87]")
    acc_exp(a, 9, 8, 10, 11)
    bf16r(a, 9, 9)
    acc_exp(a, 12, 4, 10, 11)
    bf16r(a, 12, 12)
    a("v_mul_f32 v12, v12, v9")
    a("v_mul_f32 v13, v5, v9")
    a("v_mul_f32 v6, v6, v9")
    a("v_mul_f32 v7, v7, v9")
    a("v_add_f32 v6, v6, v6")
    a("v_add_f32 v7, v7, v7")
    a(f"v_mul_f32 v12, {hex(f2u(-1.4426950408889634))}, v12")
    a(f"v_mul_f32 v13, {hex(f2u(0.15915494309189535))}, v13")
    T=16
    def direct(d,p):
        a(f"v_mul_f32 v{T}, {hex(f2u(float(p)))}, v12")
        a(f"v_mul_f32 v{T+1}, {hex(f2u(float(p)))}, v13")
        a(f"v_exp_f32 v{T}, v{T}")
        a(f"v_fract_f32 v{T+1}, v{T+1}")
        a(f"v_cos_f32 v{d}, v{T+1}")
        a(f"v_sin_f32 v{d+1}, v{T+1}")
        a("s_nop 0")
        a(f"v_mul_f32 v{d}, v{d}, v{T}")
        a(f"v_mul_f32 v{d+1}, v{d+1}, v{T}")
    def split_write(src,row):
        a(f"v_cvt_pk_bf16_f32 v4, v{src}, v{src+1}")
        a("v_lshlrev_b32 v8, 16, v4")
        a("v_and_b32 v9, 0xffff0000, v4")
        a(f"v_pk_add_f32 v[8:9], v[{src}:{src+1}], v[8:9] neg_lo:[0,1] neg_hi:[0,1]")
        a("v_cvt_pk_bf16_f32 v5, v8, v9")
        a(f"v_add_u32 v10, {row*UP}, v14")
        a("ds_write2_b32 v10, v4, v5 offset0:0 offset1:64")
    BH=64; BL=80; AF=96; ACC=112
    V={1:20,2:22,4:24,8:26,3:28,5:30,6:32,7:34}
    direct(V[1],8); pk_cmul(a,V[2],V[1],V[1],T); pk_cmul(a,V[4],V[2],V[2],T); pk_cmul(a,V[8],V[4],V[4],T)
    pk_cmul(a,V[3],V[1],V[2],T); pk_cmul(a,V[5],V[4],V[1],T); pk_cmul(a,V[6],V[4],V[2],T); pk_cmul(a,V[7],V[4],V[3],T)
    a("v_mov_b32 v36, 1.0"); a("v_mov_b32 v37, 0")
    split_write(36,0)
    for j in range(1,9): split_write(V[j],j)
    for j in range(9,16):
        pk_cmul(a,36,V[8],V[j-8],T); split_write(36,j)
    a("s_waitcnt lgkmcnt(0)")
    for s in range(4):
        a(f"ds_read_b128 v[{BH+4*s}:{BH+4*s+3}], v15 offset:{64*s}")
        a(f"ds_read_b128 v[{BL+4*s}:{BL+4*s+3}], v15 offset:{256+64*s}")
    S={1:20,2:22,3:24,4:26,5:28,6:30,7:32}
    direct(S[1],1); pk_cmul(a,S[2],S[1],S[1],T); pk_cmul(a,S[4],S[2],S[2],T)
    pk_cmul(a,S[3],S[1],S[2],T); pk_cmul(a,S[5],S[1],S[4],T); pk_cmul(a,S[6],S[2],S[4],T); pk_cmul(a,S[7],S[3],S[4],T)
    G={1:48,2:50,4:52,8:54,16:56}
    direct(G[1],128)
    for m in (2,4,8,16): pk_cmul(a,G[m],G[m//2],G[m//2],T)
    W={0:6}
    for m in range(1,8): W[m]=32+2*m
    pk_cmul(a,W[1],6,G[1],T); pk_cmul(a,W[2],6,G[2],T); pk_cmul(a,W[3],W[1],G[2],T); pk_cmul(a,W[4],6,G[4],T)
    pk_cmul(a,W[5],W[1],G[4],T); pk_cmul(a,W[6],W[2],G[4],T); pk_cmul(a,W[7],W[3],G[4],T)
    for i in range(12): a(f"v_mov_b32 v{ACC+i}, 0")
    R=58
    rows={}
    rows[0]=[('ws',i//8,i%8) for i in range(16)]
    rows[1]=[('ws',2+i//4,2*(i%4)) for i in range(8)]+[('ws',4+i//2,4*(i%2)) for i in range(8)]
    rows[2]=[('wg',i,8) for i in range(8)]+[('wg',0,16)]+[None]*7
    for t in (2,1,0):
        a("s_waitcnt lgkmcnt(0)")
        for i,rw in enumerate(rows[t]):
            if rw is None:
                a(f"v_mov_b32 v{R}, 0"); a(f"v_mov_b32 v{R+1}, 0")
            elif rw[0]=='wg':
                pk_cmul(a,R,W[rw[1]],G[rw[2]],T,negim=True)
            elif rw[2]==0:
                a(f"v_mov_b32 v{R}, v{W[rw[1]]}")
                a(f"v_sub_f32 v{R+1}, 0, v{W[rw[1]]+1}")
            else:
                pk_cmul(a,R,W[rw[1]],S[rw[2]],T,negim=True)
            split_write(R,i)
        a("s_waitcnt lgkmcnt(0)")
        acc=ACC+4*t
        for s in range(4): a(f"ds_read_b128 v[{AF+4*s}:{AF+4*s+3}], v15 offset:{64*s}")
        for s in range(4):
            a(f"s_waitcnt lgkmcnt({3-s})")
            a(f"v_mfma_f32_16x16x32_bf16 v[{acc}:{acc+3}], v[{AF+4*s}:{AF+4*s+3}], v[{BH+4*s}:{BH+4*s+3}], v[{acc}:{acc+3}]")
            a(f"v_mfma_f32_16x16x32_bf16 v[{acc}:{acc+3}], v[{AF+4*s}:{AF+4*s+3}], v[{BL+4*s}:{BL+4*s+3}], v[{acc}:{acc+3}]")
        for s in range(4): a(f"ds_read_b128 v[{AF+4*s}:{AF+4*s+3}], v15 offset:{256+64*s}")
        for s in range(4):
            a(f"s_waitcnt lgkmcnt({3-s})")
            a(f"v_mfma_f32_16x16x32_bf16 v[{acc}:{acc+3}], v[{AF+4*s}:{AF+4*s+3}], v[{BH+4*s}:{BH+4*s+3}], v[{acc}:{acc+3}]")
    if RT: a("s_memrealtime s[88:89]")
    a("s_nop 15")
    a("s_barrier")
    a(f"v_mul_u32_u24 v16, {CHREG}, v3")
    a("v_and_b32 v17, 3, v0")
    a("v_mul_u32_u24 v18, 3072, v17")
    a("v_add_u32 v18, v18, v16")
    a("v_lshl_add_u32 v18, v1, 4, v18")
    for t in range(3):
        a(f"ds_write_b128 v18, v[{ACC+4*t}:{ACC+4*t+3}] offset:{t*1024}")
    a("s_waitcnt lgkmcnt(0)")
    a("s_barrier")
    skip=a.newlabel("kg_skip")
    a("v_readfirstlane_b32 s28, v17")
    a("s_nop 3")
    a("s_cmp_ge_u32 s28, 3")
    a(f"s_cbranch_scc1 {skip}")
    a("v_lshlrev_b32 v18, 10, v17")
    a("v_add_u32 v18, v18, v16")
    a("v_lshl_add_u32 v18, v1, 4, v18")
    for w in range(4):
        a(f"ds_read_b128 v[{20+4*w}:{23+4*w}], v18 offset:{w*3072}")
    a("s_waitcnt lgkmcnt(0)")
    for r in range(4):
        a(f"v_add_f32 v{20+r}, v{20+r}, v{24+r}")
        a(f"v_add_f32 v{28+r}, v{28+r}, v{32+r}")
        a(f"v_add_f32 v{20+r}, v{20+r}, v{28+r}")
    a("v_lshrrev_b32 v4, 4, v1")
    a("v_and_b32 v5, 15, v1")
    a("v_lshlrev_b32 v5, 5, v5")
    a("v_add_u32 v5, v5, v16")
    t1=a.newlabel("kg_t1"); t2=a.newlabel("kg_t2"); done=a.newlabel("kg_td")
    a("s_cmp_eq_u32 s28, 1"); a(f"s_cbranch_scc1 {t1}")
    a("s_cmp_eq_u32 s28, 2"); a(f"s_cbranch_scc1 {t2}")
    a("v_lshrrev_b32 v6, 1, v4"); a("v_lshlrev_b32 v6, 7, v6"); a("v_and_b32 v7, 1, v4"); a("v_lshl_add_u32 v6, v7, 2, v6")
    a("v_lshl_add_u32 v6, v6, 2, v5")
    for r in range(4): a(f"ds_write_b32 v6, v{20+r} offset:{KD_OFF+4*r}")
    a(f"s_branch {done}")
    a.label(t1)
    a("v_lshlrev_b32 v6, 7, v4"); a("v_add_u32 v6, 256, v6")
    a("v_lshlrev_b32 v7, 8, v4")
    a("v_cmp_gt_u32 vcc, 2, v4")
    a("s_nop 1")
    for r in range(4):
        a(f"v_add_u32 v8, {2*r}, v6")
        a(f"v_add_u32 v9, {128*(r//2)+4*(r%2)}, v7")
        a("v_cndmask_b32 v8, v9, v8, vcc")
        a("v_lshl_add_u32 v8, v8, 2, v5")
        a(f"ds_write_b32 v8, v{20+r} offset:{KD_OFF}")
    a(f"s_branch {done}")
    a.label(t2)
    a("v_lshlrev_b32 v6, 9, v4"); a("v_add_u32 v6, 1024, v6")
    for r in range(4):
        a(f"v_add_u32 v8, {128*r}, v6")
        a("v_min_u32 v8, 2176, v8")
        a("v_lshl_add_u32 v8, v8, 2, v5")
        a(f"ds_write_b32 v8, v{20+r} offset:{KD_OFF}")
    a.label(done)
    a.label(skip)
    a("s_waitcnt lgkmcnt(0)")
    a("s_barrier")
    a("v_lshl_add_u32 v18, v17, 6, v1")
    a("v_lshlrev_b32 v19, 3, v18")
    a("v_sub_u32 v19, 2047, v19")
    for e in range(8):
        a(f"v_subrev_u32 v4, {e}, v19")
        a("v_cvt_f32_u32 v4, v4")
        a("v_cvt_pk_bf16_f32 v4, v4, v4")
        a("v_lshlrev_b32 v4, 16, v4")
        a("v_cvt_u32_f32 v4, v4")
        a("v_lshl_add_u32 v4, v4, 2, v16")
        a(f"ds_read_b32 v{20+e}, v4 offset:{KD_OFF}")
    a(f"v_mul_u32_u24 v5, {KRP}, v2")
    a("v_lshl_add_u32 v5, v18, 4, v5")
    a("s_waitcnt lgkmcnt(0)")
    for e in range(4):
        a(f"v_cvt_pk_bf16_f32 v{28+e}, v{20+2*e}, v{21+2*e}")
    a("buffer_store_dwordx4 v[28:31], v5, s[44:47], 0 offen")
    a("v_mov_b32 v32, 0"); a("v_mov_b32 v33, 0"); a("v_mov_b32 v34, 0"); a("v_mov_b32 v35, 0")
    a("v_cmp_gt_u32 vcc, 8, v18")
    a("s_and_saveexec_b64 s[48:49], vcc")
    skipz=a.newlabel("kg_z")
    a(f"s_cbranch_execz {skipz}")
    a("s_mov_b32 s28, 4096")
    a("buffer_store_dwordx4 v[32:35], v5, s[44:47], s28 offen")
    a.label(skipz)
    rt_end(a,0)

def ka(name):
    a=Asm()
    EXIT[0]=f"{name}_exit"
    a.label(name)
    if RT: a("s_memrealtime s[90:91]")
    a("""
    s_load_dwordx16 s[64:79], s[0:1], 0
    s_load_dwordx2 s[80:81], s[0:1], 64
    s_load_dwordx2 s[82:83], s[0:1], 88
    s_load_dwordx2 s[84:85], s[0:1], 72
    s_load_dwordx2 s[6:7], s[0:1], 96
    s_waitcnt lgkmcnt(0)
    s_mov_b32 s4, s64
    s_mov_b32 s5, s65
    """)
    a(f"s_cmp_ge_u32 s2, {G1_WGS+KG_WGS+LN_WGS}")
    a(f"s_cbranch_scc1 {name}_exit")
    a(f"s_cmp_ge_u32 s2, {G1_WGS+KG_WGS}")
    a(f"s_cbranch_scc1 {name}_ln")
    a(f"s_cmp_ge_u32 s2, {G1_WGS}")
    a(f"s_cbranch_scc1 {name}_kgen")
    if 'g1' in DIS: a("s_endpgm")
    gemm1_role(a)
    a.label(f"{name}_kgen")
    if 'kgen' in DIS: a("s_endpgm")
    kgen_role(a)
    a.label(f"{name}_ln")
    if 'ln' in DIS: a("s_endpgm")
    ln_role(a)
    a.label(f"{name}_exit")
    a("s_endpgm")
    return a.text()
```

```python
import sys,os
from asm import *
import k3,k4
NAME="recurrent_scan__ssm_conv_s4d__dense_activation_relu__prompt"
hdr=open(f"cdna_kernels/{NAME}.s.ref").read().split("; Override launch geometry")[0]
s=hdr
s+=f"; @launch kernel=ka_kernel grid=(312,1,1) block=(512,1,1) lds=69632\n"
s+=f"; @launch kernel=kb_kernel grid=(480,1,1) block=(256,1,1) lds=81920\n"
s+='.amdgcn_target "amdgcn-amd-amdhsa--gfx950"\n.text\n'
for n,f in (("ka_kernel",k3.k0),("kb_kernel",k4.k12)):
    s+=f".globl {n}\n.p2align 8\n.type {n},@function\n"+f(n)
s+='.section .rodata,"a"\n.p2align 6\n'
s+=kdesc("ka_kernel",128)+kdesc("kb_kernel",168)
out=sys.argv[1] if len(sys.argv)>1 else f"cdna_kernels/{NAME}.s"
open(out,"w").write(s)
print("wrote",out,len(s))
```

```python
from k3 import *
HF_OFF=CNT_OFF+12288; CF_OFF=CNT_OFF+16384

def claim_both(a):
    ws_srd(a, 52, CNT_OFF, 8192)
    a("s_getreg_b32 s27, hwreg(HW_REG_XCC_ID)")
    a("s_and_b32 s27, s27, 7")
    lskip=a.newlabel("cl_skip")
    a("s_cmp_lg_u32 s22, 0")
    a(f"s_cbranch_scc1 {lskip}")
    a("s_mov_b64 s[30:31], exec")
    a("s_mov_b64 exec, 3")
    a("s_lshl_b32 s26, s27, 8")
    a("v_lshlrev_b32 v4, 12, v0")
    a("v_add_u32 v4, s26, v4")
    a("v_mov_b32 v5, 1")
    a("buffer_atomic_add v5, v4, s[52:55], 0 offen sc0")
    a("s_waitcnt vmcnt(0)")
    a("v_readlane_b32 s88, v5, 0")
    a("v_readlane_b32 s89, v5, 1")
    a("s_mov_b32 s29, s27")
    for st,reg in ((0,88),(1,89)):
        lp=a.newlabel("cl_loop"); ld=a.newlabel("cl_done"); lno=a.newlabel("cl_no")
        a("s_mov_b32 s27, s29")
        a("s_nop 3")
        a(f"s_cmp_lt_u32 s{reg}, 28")
        a(f"s_cbranch_scc1 {ld}")
        a("s_mov_b64 exec, 0xff")
        a("v_lshlrev_b32 v4, 8, v0")
        a(f"v_add_u32 v4, {st*4096}, v4")
        a("buffer_load_dword v6, v4, s[52:55], 0 offen sc1")
        a("s_waitcnt vmcnt(0)")
        a("v_cmp_gt_u32 vcc, 28, v6")
        a("s_mov_b64 exec, 1")
        a("s_nop 3")
        a("s_mov_b32 s28, vcc_lo")
        a.label(lp)
        a("s_cmp_eq_u32 s28, 0")
        a(f"s_cbranch_scc1 {lno}")
        a("s_ff1_i32_b32 s27, s28")
        a("s_bitset0_b32 s28, s27")
        a("s_lshl_b32 s26, s27, 8")
        a(f"s_add_u32 s26, s26, {st*4096}")
        a("v_mov_b32 v4, s26")
        a("v_mov_b32 v5, 1")
        a("buffer_atomic_add v5, v4, s[52:55], 0 offen sc0")
        a("s_waitcnt vmcnt(0)")
        a(f"v_readfirstlane_b32 s{reg}, v5")
        a("s_nop 3")
        a(f"s_cmp_lt_u32 s{reg}, 28")
        a(f"s_cbranch_scc1 {ld}")
        a(f"s_branch {lp}")
        a.label(lno)
        a(f"s_mov_b32 s{reg}, 0xff")
        a.label(ld)
        a("s_lshl_b32 s28, s27, 8")
        a(f"s_or_b32 s{reg}, s{reg}, s28")
    a("s_mov_b64 exec, 1")
    a("v_mov_b32 v4, 0")
    a("v_mov_b32 v6, s88")
    a("v_mov_b32 v7, s89")
    a("ds_write_b64 v4, v[6:7]")
    a("s_waitcnt lgkmcnt(0)")
    a("s_mov_b64 exec, s[30:31]")
    a.label(lskip)
    a("s_barrier")
    a("v_mov_b32 v4, 0")
    a("ds_read_b64 v[6:7], v4")
    a("s_waitcnt lgkmcnt(0)")
    a("v_readfirstlane_b32 s88, v6")
    a("v_readfirstlane_b32 s89, v7")
    a("s_barrier")

def poll_ge(a, srdbase, off_sgpr, target, sleep):
    lp=a.newlabel("poll"); ld=a.newlabel("polld")
    a("s_cmp_lg_u32 s22, 0")
    a(f"s_cbranch_scc1 {ld}")
    a(f"v_mov_b32 v18, s{off_sgpr}")
    a.label(lp)
    a(f"buffer_load_dword v19, v18, s[{srdbase}:{srdbase+3}], 0 offen sc1")
    a("s_waitcnt vmcnt(0)")
    a("v_readfirstlane_b32 s23, v19")
    a("s_nop 3")
    a(f"s_cmp_ge_u32 s23, {target}")
    a(f"s_cbranch_scc1 {ld}")
    a(f"s_sleep {sleep}")
    a(f"s_branch {lp}")
    a.label(ld)
    a("s_barrier")

def gemm1_4(a, next_label):
    NST=14; NSL=10; NP=28
    a(f"s_setprio {os.environ.get('G1P','0')}")
    ws_srd(a, 8, XN_OFF, XN_SZ)
    ws_srd(a, 16, H_OFF, H_SZ)
    srd(a, 12, 80, 81, 448*3584)
    a("s_and_b32 s26, s88, 0xff")
    a("s_lshr_b32 s27, s88, 8")
    a("s_cmp_eq_u32 s26, 0xff")
    a(f"s_cbranch_scc1 {next_label}")
    a("s_cmp_ge_u32 s26, 14")
    a("s_cselect_b32 s20, 1, 0")
    a("s_mul_i32 s21, s20, 14")
    a("s_sub_u32 s21, s26, s21")
    a("s_lshl_b32 s27, s27, 1")
    a("s_add_u32 s20, s20, s27")
    a("s_mov_b32 s29, s26")
    a("""
    v_lshrrev_b32 v3, 3, v1
    v_lshl_add_u32 v3, v2, 4, v3
    s_lshl_b32 s23, s20, 7
    v_add_u32 v3, s23, v3
    v_mul_u32_u24 v3, 896, v3
    v_and_b32 v4, 7, v1
    v_lshrrev_b32 v5, 4, v1
    v_xor_b32 v4, v4, v5
    v_lshl_add_u32 v3, v4, 4, v3       ; voffA i=0
    v_xor_b32 v4, 64, v3               ; voffA i=1  (896 = 7*128)
    v_bfe_u32 v6, v1, 4, 2
    v_lshrrev_b32 v5, 4, v1
    v_lshl_add_u32 v5, v2, 3, v5       ; krow = 8w + l/16 (+4i)
    v_mul_u32_u24 v5, 3584, v5
    v_bfe_u32 v7, v1, 2, 2
    v_xor_b32 v6, v6, v7
    v_and_b32 v7, 3, v1
    v_lshl_add_u32 v6, v6, 2, v7
    v_lshl_add_u32 v5, v6, 4, v5
    s_lshl_b32 s23, s21, 8
    v_add_u32 v5, s23, v5              ; voffB
    s_lshl_b32 s24, s22, 11
    """)
    a("s_mul_hi_u32 s30, s29, 0x24924925")
    a("s_mul_i32 s30, s30, 7")
    a("s_sub_u32 s31, s29, s30")
    for k in range(7):
        a(f"s_lshl_b32 s{32+k}, s31, 7")
        a("s_add_u32 s31, s31, 1")
        a("s_cmp_eq_u32 s31, 7")
        a("s_cselect_b32 s31, 0, s31")
    def issue(p):
        c=p//4; k=p%4; sl=p%NSL
        if k not in (1,2): a(f"s_mul_i32 s30, s{32+c}, 1792")
        for i in range(2):
            a(f"s_add_u32 m0, s24, {sl*8192+i*1024}")
            if k in (1,2):
                a(f"s_add_u32 s25, s{32+c}, {(k-1)*64*896+i*8*896}")
                a(f"buffer_load_dwordx4 v{3+i}, s[8:11], s25 offen lds")
            else:
                a(f"s_add_u32 s25, s30, {(32*3584 if k==3 else 0)+i*4*3584}")
                a(f"buffer_load_dwordx4 v5, s[12:15], s25 offen lds")
            a.vm_issue(p)
    for p in range(NSL): issue(p)
    a("""
    v_and_b32 v8, 31, v1               ; m / n
    v_lshrrev_b32 v9, 5, v1            ; g
    v_lshrrev_b32 v10, 1, v2           ; wr
    v_and_b32 v11, 1, v2               ; wc
    s_lshr_b32 s28, s22, 1
    v_lshlrev_b32 v12, 7, v8
    v_bfe_u32 v13, v8, 1, 3
    v_xor_b32 v13, v13, v9
    v_lshl_add_u32 v12, v13, 4, v12
    v_bfe_u32 v14, v1, 2, 2            ; r
    v_lshl_add_u32 v15, v9, 3, v14
    v_lshlrev_b32 v15, 8, v15
    v_lshlrev_b32 v16, 1, v11
    v_xor_b32 v16, v16, v14
    v_lshl_add_u32 v15, v16, 6, v15
    v_bfe_u32 v16, v1, 4, 1
    v_lshl_add_u32 v15, v16, 5, v15
    v_and_b32 v16, 3, v1
    v_lshl_add_u32 v15, v16, 3, v15
    """)
    ACC=64
    for i in range(64): a(f"v_mov_b32 v{ACC+i}, 0")
    FAs=[32,128]; FBs=[48,144]
    def reads(s):
        c=s//2; h=s%2
        FA=FAs[s&1]; FB=FBs[s&1]
        pB=4*c+(3 if h else 0)
        sl0=((4*c+1)%NSL)*8192; sl1=((4*c+2)%NSL)*8192
        a(f"s_mov_b32 s26, {sl0}")
        a(f"s_mov_b32 s27, {sl1}")
        a("s_cmp_eq_u32 s28, 0")
        a("s_cselect_b32 s26, s26, s27")
        a(f"v_xor_b32 v17, {64*h}, v12")
        a("v_add_u32 v17, s26, v17")
        a("v_xor_b32 v18, 32, v17")
        a(f"v_add_u32 v19, {(pB%NSL)*8192}, v15")
        a("v_xor_b32 v20, 64, v19")
        for ks in range(2):
            for mt in range(2):
                r=FA+8*ks+4*mt
                a(f"ds_read_b128 v[{r}:{r+3}], v{17+ks} offset:{mt*4096}")
            for nt in range(2):
                for i in range(2):
                    r=FB+8*ks+4*nt+2*i
                    a(f"ds_read_b64_tr_b16 v[{r}:{r+1}], v{19+nt} offset:{(16*ks+4*i)*256}")
    def needs(s):
        c=s//2
        return [4*c+3] if s%2 else [4*c,4*c+1,4*c+2]
    def wait_stage(s):
        idx=[i for i,t in enumerate(a.vm) if t in needs(s)]
        if idx: a.vm_wait(a.vm[max(idx)])
    wait_stage(0)
    a("s_barrier")
    if RT: a("s_memrealtime s[58:59]")
    reads(0)
    st={'nxt':NSL}
    for s in range(NST):
        FA=FAs[s&1]; FB=FBs[s&1]
        if s+1<NST: wait_stage(s+1)
        a("s_waitcnt lgkmcnt(0)")
        a("s_barrier")
        nfree = 1 if s%2==0 else 3
        def fill():
            for _ in range(nfree):
                if st['nxt']<NP: issue(st['nxt']); st['nxt']+=1
            if s+1<NST: reads(s+1)
        def prim():
            for ks in range(2):
                for mt in range(2):
                    for nt in range(2):
                        acc=ACC+16*(2*mt+nt)
                        ra=FA+8*ks+4*mt; rb=FB+8*ks+4*nt
                        a(f"v_mfma_f32_32x32x16_bf16 v[{acc}:{acc+15}], v[{rb}:{rb+3}], v[{ra}:{ra+3}], v[{acc}:{acc+15}]")
        interleave(a, capture(a,prim), capture(a,fill))
    if RT: a("s_memrealtime s[60:61]")
    a("s_nop 15")
    a("s_barrier")
    HP=272
    a(f"v_lshl_add_u32 v20, v10, 6, v8")
    a(f"v_mul_u32_u24 v20, {HP}, v20")
    a("v_lshl_add_u32 v20, v11, 7, v20")
    a("v_lshl_add_u32 v20, v9, 3, v20")
    k=0
    for mt in range(2):
        for nt in range(2):
            acc=ACC+16*(2*mt+nt)
            for q in range(4):
                t=48+2*(k%4); k+=1
                for e in range(4): a(f"v_max_f32 v{acc+4*q+e}, 0, v{acc+4*q+e}")
                a(f"v_cvt_pk_bf16_f32 v{t}, v{acc+4*q}, v{acc+4*q+1}")
                a(f"v_cvt_pk_bf16_f32 v{t+1}, v{acc+4*q+2}, v{acc+4*q+3}")
                a(f"ds_write_b64 v20, v[{t}:{t+1}] offset:{mt*32*HP+nt*64+16*q}")
    a("s_waitcnt lgkmcnt(0)")
    a("s_barrier")
    a("v_lshrrev_b32 v21, 4, v0")
    a("v_and_b32 v22, 15, v0")
    a(f"v_mul_u32_u24 v23, {HP}, v21")
    a("v_lshl_add_u32 v23, v22, 4, v23")
    for j in range(8):
        a(f"ds_read_b128 v[{64+4*j}:{67+4*j}], v23 offset:{j*16*HP}")
    a("s_lshl_b32 s23, s20, 7")
    a("v_add_u32 v21, s23, v21")
    a("v_mul_u32_u24 v21, 3584, v21")
    a("v_lshl_add_u32 v21, v22, 4, v21")
    a("s_lshl_b32 s23, s21, 8")
    a("v_add_u32 v21, s23, v21")
    for j in range(8):
        a(f"s_mov_b32 s25, {j*16*3584}")
        a(f"s_waitcnt lgkmcnt({7-j})")
        a(f"buffer_store_dwordx4 v[{64+4*j}:{67+4*j}], v21, s[16:19], s25 offen sc1")
    a("s_waitcnt vmcnt(0)")
    a("s_barrier")
    ws_srd(a, 52, HF_OFF, 4096)
    a("s_lshl_b32 s23, s20, 8")
    a("s_lshl_b32 s30, s21, 2")
    a("s_add_u32 s23, s23, s30")
    a("v_mov_b32 v4, s23")
    a("v_mov_b32 v5, 1")
    a("v_cmp_eq_u32 vcc, 0, v0")
    a("s_and_saveexec_b64 s[30:31], vcc")
    a("buffer_store_dword v5, v4, s[52:55], 0 offen sc1")
    a("s_mov_b64 exec, s[30:31]")
    a("s_mov_b32 s34, s20")
    a("s_mov_b32 s35, s21")
    a.vm_clear()


def gemm2_4(a, exit_label):
    ws_srd(a, 8, H_OFF, H_SZ)
    ws_srd(a, 16, ST_OFF, XN_SZ)
    srd(a, 12, 82, 83, 1792*896)
    srd(a, 40, 64, 65, XN_SZ)
    srd(a, 44, 84, 85, XN_SZ)
    if RT: a("s_memrealtime s[62:63]")
    a("s_cmp_ge_u32 s35, 7")
    a("s_cselect_b32 s26, 1, 0")
    a("s_lshl_b32 s20, s34, 1")
    a("s_add_u32 s20, s20, s26")
    a("s_mul_i32 s26, s26, 7")
    a("s_sub_u32 s21, s35, s26")
    a("s_lshl_b32 s31, s35, 1")
    a("""
    v_lshrrev_b32 v3, 3, v1
    v_lshl_add_u32 v3, v2, 4, v3
    s_lshl_b32 s23, s20, 6
    v_add_u32 v3, s23, v3
    v_mul_u32_u24 v3, 3584, v3
    v_and_b32 v4, 7, v1
    v_lshrrev_b32 v5, 4, v1
    v_xor_b32 v4, v4, v5
    v_lshl_add_u32 v3, v4, 4, v3       ; voffA i=0
    v_xor_b32 v4, 64, v3               ; voffA i=1
    v_lshrrev_b32 v5, 3, v1
    v_lshl_add_u32 v5, v2, 4, v5
    v_mul_u32_u24 v5, 896, v5
    v_bfe_u32 v6, v1, 2, 1
    v_bfe_u32 v7, v1, 4, 1
    v_xor_b32 v6, v6, v7
    v_and_b32 v7, 3, v1
    v_lshl_add_u32 v6, v6, 2, v7
    v_lshl_add_u32 v5, v6, 4, v5
    s_lshl_b32 s23, s21, 7
    v_add_u32 v5, s23, v5              ; voffB
    s_lshl_b32 s24, s22, 11            ; wave*2048
    """)
    NST=28; NBS=int(os.environ.get('NBS','5'))
    a("s_mov_b32 s32, s31")
    a("s_mov_b32 s33, s31")
    def adv(r):
        a(f"s_add_u32 s{r}, s{r}, 1")
        a(f"s_cmp_eq_u32 s{r}, 28")
        a(f"s_cselect_b32 s{r}, 0, s{r}")
    slow=[]
    def issueA(s):
        sl=(s%NBS)*16384
        if s%2==0:
            lsl=a.newlabel("g2_slow"); lbk=a.newlabel("g2_back")
            a("s_lshr_b32 s26, s32, 1")
            a("s_bitcmp1_b32 s36, s26")
            a(f"s_cbranch_scc0 {lsl}")
            a.label(lbk)
            slow.append((lsl,lbk))
        a("s_lshl_b32 s26, s32, 7")
        for i in range(2):
            a(f"s_add_u32 m0, s24, {sl+i*1024}")
            a(f"s_add_u32 s25, s26, {i*8*3584}")
            a(f"buffer_load_dwordx4 v{3+i}, s[8:11], s25 offen lds")
            a.vm_issue(s)
        adv(32)
    def issueB(s):
        sl=(s%NBS)*16384
        a(f"s_mul_i32 s27, s33, {64*896}")
        for i in range(2):
            a(f"s_add_u32 m0, s24, {sl+8192+i*1024}")
            a(f"s_add_u32 s25, s27, {i*8*896}")
            a(f"buffer_load_dwordx4 v5, s[12:15], s25 offen lds")
            a.vm_issue(s)
        adv(33)
    def issue(s):
        issueA(s); issueB(s)
    for s in range(NBS): issueB(s)
    ws_srd(a, 52, HF_OFF, 8192)
    a("s_lshl_b32 s23, s34, 8")
    a("v_lshlrev_b32 v23, 2, v1")
    a("v_add_u32 v23, s23, v23")
    a("s_mov_b32 s36, 0")
    a("s_bitset1_b32 s36, s35")
    if RT: a("s_memrealtime s[56:57]")
    for s in range(NBS): issueA(s)
    a("""
    s_lshl_b32 s23, s20, 6
    v_add_u32 v22, s23, v1
    v_mul_u32_u24 v22, 896, v22
    v_lshl_add_u32 v22, v2, 5, v22
    s_lshl_b32 s23, s21, 7
    v_add_u32 v22, s23, v22
    buffer_load_dwordx4 v[24:27], v22, s[40:43], 0 offen
    buffer_load_dwordx4 v[28:31], v22, s[40:43], 0 offen offset:16
    """)
    a.vm_issue('x'); a.vm_issue('x')
    a("""
    v_and_b32 v8, 31, v1
    v_lshrrev_b32 v9, 5, v1
    v_lshlrev_b32 v12, 7, v8
    v_lshl_add_u32 v13, v2, 1, v9
    v_bfe_u32 v14, v8, 1, 3
    v_xor_b32 v13, v13, v14
    v_lshl_add_u32 v12, v13, 4, v12    ; vA
    v_add_u32 v13, 0x10000, v12
    v_bfe_u32 v14, v1, 2, 2            ; r
    v_lshl_add_u32 v15, v9, 3, v14
    v_lshl_add_u32 v15, v2, 4, v15
    v_lshlrev_b32 v15, 7, v15
    v_lshrrev_b32 v16, 1, v14
    v_lshl_add_u32 v15, v16, 6, v15
    v_bfe_u32 v16, v1, 4, 1
    v_lshl_add_u32 v15, v16, 5, v15
    v_and_b32 v16, 3, v1
    v_lshl_add_u32 v15, v16, 3, v15
    v_add_u32 v15, 8192, v15           ; vB0
    v_xor_b32 v16, 64, v15             ; vB1
    v_add_u32 v10, 0x10000, v15
    v_add_u32 v11, 0x10000, v16
    """)
    ACC=64
    for i in range(64): a(f"v_mov_b32 v{ACC+i}, 0")
    FAs=[32,128]; FBs=[40,136]
    a("""
    s_lshl_b32 s23, s21, 6
    v_lshlrev_b32 v17, 4, v2
    v_add_u32 v17, s23, v17
    v_lshlrev_b32 v17, 12, v17
    v_lshl_add_u32 v17, v1, 1, v17
    s_lshl_b32 s23, s20, 7
    v_add_u32 v17, s23, v17
    s_lshl_b32 s23, s21, 2
    v_mov_b32 v19, s23
    """)
    def reads(s):
        b=s%NBS
        FA=FAs[s&1]; FB=FBs[s&1]
        a(f"v_add_u32 v13, {b*16384}, v12")
        a(f"v_add_u32 v10, {b*16384}, v15")
        a(f"v_add_u32 v11, {b*16384}, v16")
        for mt in range(2):
            r=FA+4*mt
            a(f"ds_read_b128 v[{r}:{r+3}], v13 offset:{mt*4096}")
        for nt in range(2):
            for i in range(2):
                r=FB+4*nt+2*i
                a(f"ds_read_b64_tr_b16 v[{r}:{r+1}], v{10+nt} offset:{4*i*128}")
    a.vm_wait(0)
    a("s_barrier")
    if RT: a("s_memrealtime s[58:59]")
    reads(0)
    for s in range(NST):
        FA=FAs[s&1]; FB=FBs[s&1]
        if s+1<NST and a.vm_has(s+1): a.vm_wait(s+1)
        a("s_waitcnt lgkmcnt(0)")
        a("s_barrier")
        def fill():
            if s+NBS<NST: issue(s+NBS)
            if s+1<NST: reads(s+1)
        def prim():
            for mt in range(2):
                for nt in range(2):
                    acc=ACC+16*(2*mt+nt)
                    ra=FA+4*mt; rb=FB+4*nt
                    a(f"v_mfma_f32_32x32x16_bf16 v[{acc}:{acc+15}], v[{rb}:{rb+3}], v[{ra}:{ra+3}], v[{acc}:{acc+15}]")
        interleave(a, capture(a,prim), capture(a,fill))
        if s==23:
            a("s_lshl_b32 s30, s21, 8")
            a("s_add_u32 s30, s30, 4096")
            a("v_mov_b32 v18, s30")
            a("buffer_load_dword v19, v18, s[52:55], 0 offen sc1")
            a.vm_issue('cf')
        if s==26:
            lp=a.newlabel("cf_poll"); ld=a.newlabel("cf_ok")
            a.vm_wait('cf')
            a.label(lp)
            a("v_readfirstlane_b32 s23, v19")
            a("s_nop 3")
            a("s_cmp_ge_u32 s23, 32")
            a(f"s_cbranch_scc1 {ld}")
            a("s_sleep 16")
            a("buffer_load_dword v19, v18, s[52:55], 0 offen sc1")
            a("s_waitcnt vmcnt(0)")
            a(f"s_branch {lp}")
            a.label(ld)
            for j in range(16):
                a(f"s_mov_b32 s25, {j*4096}")
                a(f"buffer_load_ushort v{144+j}, v17, s[16:19], s25 offen sc1")
    if RT: a("s_memrealtime s[60:61]")
    a("s_nop 15")
    a("s_barrier")
    a(f"v_mul_u32_u24 v20, {64*RP}, v2")
    a(f"v_mul_u32_u24 v21, {RP}, v8")
    a("v_add_u32 v20, v20, v21")
    a("v_lshl_add_u32 v20, v9, 4, v20")
    for mt in range(2):
        for nt in range(2):
            acc=ACC+16*(2*mt+nt)
            for q in range(4):
                a(f"ds_write_b128 v20, v[{acc+4*q}:{acc+4*q+3}] offset:{mt*32*RP+nt*128+q*32}")
    a("s_waitcnt lgkmcnt(0)")
    a("s_barrier")
    a(f"v_mul_u32_u24 v20, {RP}, v1")
    a("v_lshl_add_u32 v20, v2, 6, v20")
    for wv in range(4):
        for j in range(4):
            r=64+16*wv+4*j
            a(f"ds_read_b128 v[{r}:{r+3}], v20 offset:{wv*64*RP+j*16}")
    a("s_waitcnt lgkmcnt(0)")
    for i in range(16):
        a(f"v_add_f32 v{64+i}, v{64+i}, v{80+i}")
        a(f"v_add_f32 v{96+i}, v{96+i}, v{112+i}")
        a(f"v_add_f32 v{64+i}, v{64+i}, v{96+i}")
    NL2E=hex(f2u(-1.4426950408889634))
    for p in range(8):
        m0,m1=64+2*p,65+2*p
        a(f"v_cvt_pk_bf16_f32 v4, v{m0}, v{m1}")
        a("v_lshlrev_b32 v5, 16, v4")
        a("v_and_b32 v6, 0xffff0000, v4")
        a(f"v_mul_f32 v7, {NL2E}, v5")
        a(f"v_mul_f32 v10, {NL2E}, v6")
        a("v_exp_f32 v7, v7")
        a("v_exp_f32 v10, v10")
        a("s_nop 0")
        a("v_add_f32 v7, 1.0, v7")
        a("v_add_f32 v10, 1.0, v10")
        a("v_rcp_f32 v7, v7")
        a("v_rcp_f32 v10, v10")
        a("s_nop 0")
        a("v_mul_f32 v5, v5, v7")
        a("v_mul_f32 v6, v6, v10")
        a("v_cvt_pk_bf16_f32 v4, v5, v6")
        a("v_lshlrev_b32 v5, 16, v4")
        a("v_and_b32 v6, 0xffff0000, v4")
        if p==0: a("s_waitcnt vmcnt(0)")
        a(f"v_lshlrev_b32 v7, 16, v{144+2*p}")
        a(f"v_lshlrev_b32 v10, 16, v{145+2*p}")
        a("v_mul_f32 v5, v5, v7")
        a("v_mul_f32 v6, v6, v10")
        a("v_cvt_pk_bf16_f32 v4, v5, v6")
        a("v_lshlrev_b32 v5, 16, v4")
        a("v_and_b32 v6, 0xffff0000, v4")
        a(f"v_lshlrev_b32 v7, 16, v{24+p}")
        a(f"v_and_b32 v10, 0xffff0000, v{24+p}")
        a("v_add_f32 v5, v5, v7")
        a("v_add_f32 v6, v6, v10")
        a(f"v_cvt_pk_bf16_f32 v{48+p}, v5, v6")
    a("buffer_store_dwordx4 v[48:51], v22, s[44:47], 0 offen")
    a("buffer_store_dwordx4 v[52:55], v22, s[44:47], 0 offen offset:16")
    a("s_waitcnt vmcnt(0)")
    rt_end(a,1)
    for lsl,lbk in slow:
        a.label(lsl)
        a("buffer_load_dword v6, v23, s[52:55], 0 offen sc1")
        a("s_waitcnt vmcnt(0)")
        a("v_cmp_ne_u32 vcc, 0, v6")
        a("s_nop 3")
        a("s_and_b32 s36, vcc_lo, 0x3fff")
        a("s_bitcmp1_b32 s36, s26")
        a(f"s_cbranch_scc1 {lbk}")
        a("s_sleep 4")
        a(f"s_branch {lsl}")


def conv4(a):
    a(f"s_setprio {os.environ.get('CVP','2')}")
    ws_srd(a, 8, KR_OFF, KR_SZ)
    ws_srd(a, 12, XNT_OFF, XN_SZ)
    ws_srd(a, 16, ST_OFF, XN_SZ)
    srd(a, 20, 76, 77, 448*2)
    a("""
    v_lshrrev_b32 v1, 7, v0            ; chsel
    v_and_b32 v2, 127, v0              ; tau
    s_lshl_b32 s24, s3, 1
    v_add_u32 v3, s24, v1              ; channel d
    """)
    a(f"v_mul_u32_u24 v4, {KRP}, v3")
    a("v_lshl_add_u32 v4, v2, 4, v4")
    a("v_lshlrev_b32 v5, 12, v3")
    a("v_lshl_add_u32 v5, v2, 4, v5")
    a("v_lshlrev_b32 v6, 1, v3")
    a("buffer_load_dwordx4 v[16:19], v4, s[8:11], 0 offen")
    a("buffer_load_dwordx4 v[20:23], v4, s[8:11], 0 offen offset:16")
    a("buffer_load_dwordx4 v[24:27], v4, s[8:11], 0 offen offset:2048")
    a("buffer_load_dwordx4 v[28:31], v4, s[8:11], 0 offen offset:2064")
    a("buffer_load_dwordx4 v[32:35], v5, s[12:15], 0 offen")
    a("buffer_load_dwordx4 v[36:39], v5, s[12:15], 0 offen offset:2048")
    a("buffer_load_ushort v7, v6, s[20:23], 0 offen")
    a(f"v_mul_u32_u24 v8, {CH_SZ}, v1")
    a("v_lshl_add_u32 v9, v2, 4, v8")
    a("v_mov_b32 v40, 0\nv_mov_b32 v41, 0\nv_mov_b32 v42, 0\nv_mov_b32 v43, 0")
    a(f"ds_write_b128 v9, v[40:43] offset:{KC_SZ}")
    a("v_cmp_gt_u32 vcc, 27, v2")
    a("s_and_saveexec_b64 s[26:27], vcc")
    a(f"ds_write_b128 v9, v[40:43] offset:{KC_SZ+2048}")
    a("s_mov_b64 exec, s[26:27]")
    a("v_lshrrev_b32 v10, 2, v2")
    a(f"v_mul_u32_u24 v10, {CS}, v10")
    a("v_and_b32 v11, 3, v2")
    a("v_lshl_add_u32 v10, v11, 4, v10")
    a("v_add_u32 v10, v10, v8")
    a("v_cmp_gt_u32 vcc, 32, v2")
    a("s_and_saveexec_b64 s[26:27], vcc")
    a("ds_write_b128 v10, v[40:43] offset:4096")
    a("s_mov_b64 exec, s[26:27]")
    a("v_lshrrev_b32 v10, 2, v2")
    a("v_mul_u32_u24 v10, 80, v10")
    a("v_lshl_add_u32 v10, v11, 4, v10")
    a("v_add_u32 v10, v10, v8")
    a("s_waitcnt vmcnt(0)")
    a(f"ds_write_b128 v10, v[32:35] offset:{KC_SZ+31*80}")
    a(f"ds_write_b128 v10, v[36:39] offset:{KC_SZ+31*80+32*80}")
    for half in range(2):
        D=16+8*half
        E=44; D1=52; E1=60
        for k in range(7): a(f"v_alignbit_b32 v{E+k}, v{D+k+1}, v{D+k}, 16")
        for k in range(6): a(f"v_mov_b32 v{D1+k}, v{D+k+1}")
        for k in range(6): a(f"v_alignbit_b32 v{E1+k}, v{D+k+2}, v{D+k+1}, 16")
        src={0:D,4:D+2,2:D1,6:D1+2,1:E,5:E+2,3:E1,7:E1+2}
        for c in range(8):
            a(f"ds_write_b128 v9, v[{src[c]}:{src[c]+3}] offset:{c*CS+half*2048}")
    a("v_lshlrev_b32 v7, 16, v7")
    a("s_waitcnt lgkmcnt(0)")
    if os.environ.get('CDLY'):
        ws_srd(a, 52, HF_OFF, 8192)
        a("v_lshrrev_b32 v15, 6, v0")
        a("s_nop 0")
        a("v_readfirstlane_b32 s22, v15")
        a("s_and_b32 s23, s3, 15")
        a("s_lshl_b32 s23, s23, 8")
        a("v_and_b32 v15, 63, v0")
        a("v_lshlrev_b32 v18, 2, v15")
        a("v_add_u32 v18, s23, v18")
        lp=a.newlabel("cd_poll"); ld=a.newlabel("cd_ok")
        a("s_cmp_lg_u32 s22, 0")
        a(f"s_cbranch_scc1 {ld}")
        a.label(lp)
        a("buffer_load_dword v19, v18, s[52:55], 0 offen sc1")
        a("s_waitcnt vmcnt(0)")
        a("v_cmp_ne_u32 vcc, 0, v19")
        a("s_nop 3")
        a("s_and_b32 s23, vcc_lo, 0x3fff")
        a("s_cmp_lg_u32 s23, 0")
        a(f"s_cbranch_scc1 {ld}")
        a("s_sleep 16")
        a(f"s_branch {lp}")
        a.label(ld)
    a("s_barrier")
    a("""
    v_and_b32 v10, 63, v0
    v_and_b32 v11, 31, v10
    v_lshrrev_b32 v12, 5, v10
    v_sub_u32 v13, 7, v11
    v_and_b32 v13, 7, v13
    """)
    a(f"v_mul_u32_u24 v13, {CS}, v13")
    a("v_lshl_add_u32 v13, v12, 4, v13")
    a("v_lshrrev_b32 v14, 3, v11")
    a("v_lshlrev_b32 v14, 4, v14")
    a("v_sub_u32 v13, v13, v14")
    a("v_add_u32 v13, 48, v13")
    a("v_add_u32 v13, v13, v8")
    a("v_mul_u32_u24 v14, 80, v11")
    a("v_lshl_add_u32 v14, v12, 4, v14")
    a(f"v_add_u32 v14, {KC_SZ}, v14")
    a("v_add_u32 v14, v14, v8")
    ACC0=64; ACC1=80
    for i in range(32): a(f"v_mov_b32 v{64+i}, 0")
    a("v_lshrrev_b32 v15, 6, v0")
    a("v_and_b32 v15, 1, v15")
    a("s_nop 0")
    a("v_readfirstlane_b32 s25, v15")
    lB=a.newlabel("cv_B"); lJ=a.newlabel("cv_J")
    a("s_nop 3")
    a("s_cmp_eq_u32 s25, 1")
    a(f"s_cbranch_scc1 {lB}")
    def mainloop(units):
        NS=3
        def issue(u):
            delta,hs=units[u]; base=96+24*(u%NS); n=0
            for q in range(2):
                a(f"ds_read_b128 v[{base+4*q}:{base+4*q+3}], v13 offset:{64*(63-delta)+32*q}"); n+=1
            for hi,h in enumerate(hs):
                for q in range(2):
                    r=base+8+8*hi+4*q
                    a(f"ds_read_b128 v[{r}:{r+3}], v14 offset:{80*(31+32*h-delta)+32*q}"); n+=1
            return n
        cnt=[]
        for u in range(min(NS-1,len(units))): cnt.append(issue(u))
        for u in range(len(units)):
            if u+NS-1<len(units): cnt.append(issue(u+NS-1))
            rem=sum(cnt[u+1:])
            a(f"s_waitcnt lgkmcnt({min(rem,15)})")
            delta,hs=units[u]; base=96+24*(u%NS)
            for q in range(2):
                for hi,h in enumerate(hs):
                    acc=ACC0 if h==0 else ACC1
                    r=base+8+8*hi+4*q
                    a(f"v_mfma_f32_32x32x16_bf16 v[{acc}:{acc+15}], v[{base+4*q}:{base+4*q+3}], v[{r}:{r+3}], v[{acc}:{acc+15}]")
    mainloop([(d,[0,1]) for d in range(16)]+[(d,[0]) for d in range(16,32)])
    a(f"s_branch {lJ}")
    a.label(lB)
    mainloop([(d,[1]) for d in range(16,64)])
    a.label(lJ)
    a("s_nop 15")
    a("s_barrier")
    a("v_lshl_add_u32 v15, v10, 4, v8")
    lB2=a.newlabel("cv_B2"); lJ2=a.newlabel("cv_J2")
    a("s_cmp_eq_u32 s25, 1")
    a(f"s_cbranch_scc1 {lB2}")
    for i in range(4): a(f"ds_write_b128 v15, v[{ACC1+4*i}:{ACC1+4*i+3}] offset:{i*1024}")
    a("s_waitcnt lgkmcnt(0)")
    a.label(lB2)
    a("s_barrier")
    a("s_cmp_eq_u32 s25, 0")
    a(f"s_cbranch_scc1 {lJ2}")
    for i in range(4): a(f"ds_read_b128 v[{96+4*i}:{96+4*i+3}], v15 offset:{i*1024}")
    a("s_waitcnt lgkmcnt(0)")
    for i in range(16): a(f"v_add_f32 v{ACC0+i}, v{ACC1+i}, v{96+i}")
    a.label(lJ2)
    a("v_lshlrev_b32 v16, 3, v12")
    a("v_sub_u32 v16, v14, v16")
    a("s_mul_i32 s26, s25, 2560")
    a("v_add_u32 v16, s26, v16")
    for rq in range(4): a(f"ds_read_b64 v[{96+2*rq}:{97+2*rq}], v16 offset:{80*31+16*rq}")
    a("v_lshlrev_b32 v17, 12, v3")
    a("v_lshl_add_u32 v17, v11, 6, v17")
    a("v_lshl_add_u32 v17, v12, 3, v17")
    a("s_lshl_b32 s26, s25, 11")
    a("v_add_u32 v17, s26, v17")
    a("s_waitcnt lgkmcnt(0)")
    for rq in range(4):
        for p in range(2):
            x=96+2*rq+p
            y0=ACC0+4*rq+2*p
            a(f"v_lshlrev_b32 v20, 16, v{x}")
            a(f"v_and_b32 v21, 0xffff0000, v{x}")
            a("v_mul_f32 v20, v20, v7")
            a("v_mul_f32 v21, v21, v7")
            a("v_cvt_pk_bf16_f32 v22, v20, v21")
            a(f"v_cvt_pk_bf16_f32 v23, v{y0}, v{y0+1}")
            a("v_lshlrev_b32 v20, 16, v22")
            a("v_and_b32 v21, 0xffff0000, v22")
            a("v_lshlrev_b32 v24, 16, v23")
            a("v_and_b32 v25, 0xffff0000, v23")
            a("v_add_f32 v20, v20, v24")
            a("v_add_f32 v21, v21, v25")
            a(f"v_cvt_pk_bf16_f32 v{26+2*(rq&1)+p}, v20, v21")
        a(f"buffer_store_dwordx2 v[{26+2*(rq&1)}:{27+2*(rq&1)}], v17, s[16:19], 0 offen offset:{16*rq} sc1")
    a("s_waitcnt vmcnt(0)")
    a("s_barrier")
    ws_srd(a, 52, CF_OFF, 4096)
    a("s_lshr_b32 s26, s3, 5")
    a("s_lshl_b32 s26, s26, 8")
    a("v_mov_b32 v20, s26")
    a("v_mov_b32 v21, 1")
    a("v_cmp_eq_u32 vcc, 0, v0")
    a("s_and_saveexec_b64 s[26:27], vcc")
    a("buffer_atomic_add v21, v20, s[52:55], 0 offen")
    a("s_mov_b64 exec, s[26:27]")
    rt_end(a,1)


def k12(name):
    a=Asm(); a.label(name)
    if RT: a("s_memrealtime s[90:91]")
    a(HEAD_A)
    a("s_cmp_ge_u32 s2, 480")
    a(f"s_cbranch_scc1 {name}_exit")
    a("s_cmp_ge_u32 s2, 256")
    a(f"s_cbranch_scc1 {name}_conv")
    a("""
    v_and_b32 v1, 63, v0
    v_lshrrev_b32 v2, 6, v0
    s_nop 0
    v_readfirstlane_b32 s22, v2
    s_nop 3
    """)
    claim_both(a)
    if RT: a("s_memrealtime s[56:57]")
    gemm1_4(a, f"{name}_exit")
    gemm2_4(a, f"{name}_exit")
    a.label(f"{name}_conv")
    a("s_sub_u32 s3, s2, 256")
    conv4(a)
    a.label(f"{name}_exit")
    a("s_endpgm")
    return a.text()

def kgen5(a):
    UP=528; WREG=16*UP; CHREG=4*WREG
    KD_OFF=12288
    a(f"s_setprio {os.environ.get('KGP','2')}")
    srd(a, 8, 66, 67, 448*512)
    srd(a, 12, 68, 69, 448*512)
    srd(a, 16, 70, 71, 448*512)
    srd(a, 20, 72, 73, 448*512)
    srd(a, 24, 74, 75, 448*2)
    ws_srd(a, 44, KR_OFF, KR_SZ)
    a("""
    v_mov_b32 v130, v0
    s_lshl_b32 s28, s3, 10
    v_lshlrev_b32 v1, 1, v0
    v_add_u32 v1, s28, v1
    s_lshl_b32 s29, s3, 2
    v_mov_b32 v10, s29
    buffer_load_ushort v4, v1, s[8:11], 0 offen
    buffer_load_ushort v5, v1, s[12:15], 0 offen
    buffer_load_ushort v6, v1, s[16:19], 0 offen
    buffer_load_ushort v7, v1, s[20:23], 0 offen
    buffer_load_ushort v8, v10, s[24:27], 0 offen
    buffer_load_ushort v131, v1, s[8:11], 0 offen offset:512
    buffer_load_ushort v132, v1, s[12:15], 0 offen offset:512
    buffer_load_ushort v133, v1, s[16:19], 0 offen offset:512
    buffer_load_ushort v134, v1, s[20:23], 0 offen offset:512
    buffer_load_ushort v135, v10, s[24:27], 0 offen offset:2
    v_mov_b32 v3, 0
    s_lshl_b32 s29, s3, 1
    v_mov_b32 v2, s29                  ; channel d
    s_mov_b32 s40, 0
    """)
    a("v_and_b32 v1, 63, v0")
    a("v_lshrrev_b32 v0, 6, v0")
    a(f"v_mul_u32_u24 v14, {WREG}, v0")
    a("v_lshrrev_b32 v10, 4, v1")
    a("v_and_b32 v15, 15, v1")
    a(f"v_mul_u32_u24 v15, {UP}, v15")
    a("v_lshl_add_u32 v15, v10, 4, v15")
    a("v_add_u32 v15, v15, v14")
    a("v_lshl_add_u32 v14, v1, 2, v14")
    a("s_waitcnt vmcnt(0)")
    lloop=a.newlabel("kg_loop")
    a.label(lloop)
    a("""
    v_lshlrev_b32 v4, 16, v4
    v_lshlrev_b32 v5, 16, v5
    v_lshlrev_b32 v6, 16, v6
    v_lshlrev_b32 v7, 16, v7
    v_lshlrev_b32 v8, 16, v8
    """)
    acc_exp(a, 9, 8, 10, 11)
    bf16r(a, 9, 9)
    acc_exp(a, 12, 4, 10, 11)
    bf16r(a, 12, 12)
    a("v_mul_f32 v12, v12, v9")
    a("v_mul_f32 v13, v5, v9")
    a("v_mul_f32 v6, v6, v9")
    a("v_mul_f32 v7, v7, v9")
    a("v_add_f32 v6, v6, v6")
    a("v_add_f32 v7, v7, v7")
    a(f"v_mul_f32 v12, {hex(f2u(-1.4426950408889634))}, v12")
    a(f"v_mul_f32 v13, {hex(f2u(0.15915494309189535))}, v13")
    T=16
    def direct(d,p):
        a(f"v_mul_f32 v{T}, {hex(f2u(float(p)))}, v12")
        a(f"v_mul_f32 v{T+1}, {hex(f2u(float(p)))}, v13")
        a(f"v_exp_f32 v{T}, v{T}")
        a(f"v_fract_f32 v{T+1}, v{T+1}")
        a(f"v_cos_f32 v{d}, v{T+1}")
        a(f"v_sin_f32 v{d+1}, v{T+1}")
        a("s_nop 0")
        a(f"v_mul_f32 v{d}, v{d}, v{T}")
        a(f"v_mul_f32 v{d+1}, v{d+1}, v{T}")
    def split_write(src,row):
        a(f"v_cvt_pk_bf16_f32 v4, v{src}, v{src+1}")
        a("v_lshlrev_b32 v8, 16, v4")
        a("v_and_b32 v9, 0xffff0000, v4")
        a(f"v_pk_add_f32 v[8:9], v[{src}:{src+1}], v[8:9] neg_lo:[0,1] neg_hi:[0,1]")
        a("v_cvt_pk_bf16_f32 v5, v8, v9")
        a(f"v_add_u32 v10, {row*UP}, v14")
        a("ds_write2_b32 v10, v4, v5 offset0:0 offset1:64")
    BH=64; BL=80; AF=96; ACC=112
    V={1:20,2:22,4:24,8:26,3:28,5:30,6:32,7:34}
    direct(V[1],8); pk_cmul(a,V[2],V[1],V[1],T); pk_cmul(a,V[4],V[2],V[2],T); pk_cmul(a,V[8],V[4],V[4],T)
    pk_cmul(a,V[3],V[1],V[2],T); pk_cmul(a,V[5],V[4],V[1],T); pk_cmul(a,V[6],V[4],V[2],T); pk_cmul(a,V[7],V[4],V[3],T)
    a("v_mov_b32 v36, 1.0"); a("v_mov_b32 v37, 0")
    split_write(36,0)
    for j in range(1,9): split_write(V[j],j)
    for j in range(9,16):
        pk_cmul(a,36,V[8],V[j-8],T); split_write(36,j)
    a("s_waitcnt lgkmcnt(0)")
    for s in range(4):
        a(f"ds_read_b128 v[{BH+4*s}:{BH+4*s+3}], v15 offset:{64*s}")
        a(f"ds_read_b128 v[{BL+4*s}:{BL+4*s+3}], v15 offset:{256+64*s}")
    S={1:20,2:22,3:24,4:26,5:28,6:30,7:32}
    direct(S[1],1); pk_cmul(a,S[2],S[1],S[1],T); pk_cmul(a,S[4],S[2],S[2],T)
    pk_cmul(a,S[3],S[1],S[2],T); pk_cmul(a,S[5],S[1],S[4],T); pk_cmul(a,S[6],S[2],S[4],T); pk_cmul(a,S[7],S[3],S[4],T)
    G={1:48,2:50,4:52,8:54,16:56}
    direct(G[1],128)
    for m in (2,4,8,16): pk_cmul(a,G[m],G[m//2],G[m//2],T)
    W={0:6}
    for m in range(1,8): W[m]=32+2*m
    pk_cmul(a,W[1],6,G[1],T); pk_cmul(a,W[2],6,G[2],T); pk_cmul(a,W[3],W[1],G[2],T); pk_cmul(a,W[4],6,G[4],T)
    pk_cmul(a,W[5],W[1],G[4],T); pk_cmul(a,W[6],W[2],G[4],T); pk_cmul(a,W[7],W[3],G[4],T)
    for i in range(12): a(f"v_mov_b32 v{ACC+i}, 0")
    R=58
    rows={}
    rows[0]=[('ws',i//8,i%8) for i in range(16)]
    rows[1]=[('ws',2+i//4,2*(i%4)) for i in range(8)]+[('ws',4+i//2,4*(i%2)) for i in range(8)]
    rows[2]=[('wg',i,8) for i in range(8)]+[('wg',0,16)]+[None]*7
    for t in (2,1,0):
        a("s_waitcnt lgkmcnt(0)")
        for i,rw in enumerate(rows[t]):
            if rw is None:
                a(f"v_mov_b32 v{R}, 0"); a(f"v_mov_b32 v{R+1}, 0")
            elif rw[0]=='wg':
                pk_cmul(a,R,W[rw[1]],G[rw[2]],T,negim=True)
            elif rw[2]==0:
                a(f"v_mov_b32 v{R}, v{W[rw[1]]}")
                a(f"v_sub_f32 v{R+1}, 0, v{W[rw[1]]+1}")
            else:
                pk_cmul(a,R,W[rw[1]],S[rw[2]],T,negim=True)
            split_write(R,i)
        a("s_waitcnt lgkmcnt(0)")
        acc=ACC+4*t
        for s in range(4): a(f"ds_read_b128 v[{AF+4*s}:{AF+4*s+3}], v15 offset:{64*s}")
        for s in range(4):
            a(f"s_waitcnt lgkmcnt({3-s})")
            a(f"v_mfma_f32_16x16x32_bf16 v[{acc}:{acc+3}], v[{AF+4*s}:{AF+4*s+3}], v[{BH+4*s}:{BH+4*s+3}], v[{acc}:{acc+3}]")
            a(f"v_mfma_f32_16x16x32_bf16 v[{acc}:{acc+3}], v[{AF+4*s}:{AF+4*s+3}], v[{BL+4*s}:{BL+4*s+3}], v[{acc}:{acc+3}]")
        for s in range(4): a(f"ds_read_b128 v[{AF+4*s}:{AF+4*s+3}], v15 offset:{256+64*s}")
        for s in range(4):
            a(f"s_waitcnt lgkmcnt({3-s})")
            a(f"v_mfma_f32_16x16x32_bf16 v[{acc}:{acc+3}], v[{AF+4*s}:{AF+4*s+3}], v[{BH+4*s}:{BH+4*s+3}], v[{acc}:{acc+3}]")
    a("s_nop 15")
    a("s_barrier")
    a(f"v_mul_u32_u24 v16, {CHREG}, v3")
    a("v_and_b32 v17, 3, v0")
    a("v_mul_u32_u24 v18, 3072, v17")
    a("v_add_u32 v18, v18, v16")
    a("v_lshl_add_u32 v18, v1, 4, v18")
    for t in range(3):
        a(f"ds_write_b128 v18, v[{ACC+4*t}:{ACC+4*t+3}] offset:{t*1024}")
    a("s_waitcnt lgkmcnt(0)")
    a("s_barrier")
    skip=a.newlabel("kg_skip")
    a("v_readfirstlane_b32 s28, v17")
    a("s_nop 3")
    a("s_cmp_ge_u32 s28, 3")
    a(f"s_cbranch_scc1 {skip}")
    a("v_lshlrev_b32 v18, 10, v17")
    a("v_add_u32 v18, v18, v16")
    a("v_lshl_add_u32 v18, v1, 4, v18")
    for w in range(4):
        a(f"ds_read_b128 v[{20+4*w}:{23+4*w}], v18 offset:{w*3072}")
    a("s_waitcnt lgkmcnt(0)")
    for r in range(4):
        a(f"v_add_f32 v{20+r}, v{20+r}, v{24+r}")
        a(f"v_add_f32 v{28+r}, v{28+r}, v{32+r}")
        a(f"v_add_f32 v{20+r}, v{20+r}, v{28+r}")
    a("v_lshrrev_b32 v4, 4, v1")
    a("v_and_b32 v5, 15, v1")
    a("v_lshlrev_b32 v5, 5, v5")
    a("v_add_u32 v5, v5, v16")
    t1=a.newlabel("kg_t1"); t2=a.newlabel("kg_t2"); done=a.newlabel("kg_td")
    a("s_cmp_eq_u32 s28, 1"); a(f"s_cbranch_scc1 {t1}")
    a("s_cmp_eq_u32 s28, 2"); a(f"s_cbranch_scc1 {t2}")
    a("v_lshrrev_b32 v6, 1, v4"); a("v_lshlrev_b32 v6, 7, v6"); a("v_and_b32 v7, 1, v4"); a("v_lshl_add_u32 v6, v7, 2, v6")
    a("v_lshl_add_u32 v6, v6, 2, v5")
    for r in range(4): a(f"ds_write_b32 v6, v{20+r} offset:{KD_OFF+4*r}")
    a(f"s_branch {done}")
    a.label(t1)
    a("v_lshlrev_b32 v6, 7, v4"); a("v_add_u32 v6, 256, v6")
    a("v_lshlrev_b32 v7, 8, v4")
    a("v_cmp_gt_u32 vcc, 2, v4")
    a("s_nop 1")
    for r in range(4):
        a(f"v_add_u32 v8, {2*r}, v6")
        a(f"v_add_u32 v9, {128*(r//2)+4*(r%2)}, v7")
        a("v_cndmask_b32 v8, v9, v8, vcc")
        a("v_lshl_add_u32 v8, v8, 2, v5")
        a(f"ds_write_b32 v8, v{20+r} offset:{KD_OFF}")
    a(f"s_branch {done}")
    a.label(t2)
    a("v_lshlrev_b32 v6, 9, v4"); a("v_add_u32 v6, 1024, v6")
    for r in range(4):
        a(f"v_add_u32 v8, {128*r}, v6")
        a("v_min_u32 v8, 2176, v8")
        a("v_lshl_add_u32 v8, v8, 2, v5")
        a(f"ds_write_b32 v8, v{20+r} offset:{KD_OFF}")
    a.label(done)
    a.label(skip)
    a("s_waitcnt lgkmcnt(0)")
    a("s_barrier")
    a("v_lshl_add_u32 v18, v17, 6, v1")
    a("v_lshlrev_b32 v19, 3, v18")
    a("v_sub_u32 v19, 2047, v19")
    for e in range(8):
        a(f"v_subrev_u32 v4, {e}, v19")
        a("v_cvt_f32_u32 v4, v4")
        a("v_cvt_pk_bf16_f32 v4, v4, v4")
        a("v_lshlrev_b32 v4, 16, v4")
        a("v_cvt_u32_f32 v4, v4")
        a("v_lshl_add_u32 v4, v4, 2, v16")
        a(f"ds_read_b32 v{20+e}, v4 offset:{KD_OFF}")
    a(f"v_mul_u32_u24 v5, {KRP}, v2")
    a("v_lshl_add_u32 v5, v18, 4, v5")
    a("s_waitcnt lgkmcnt(0)")
    for e in range(4):
        a(f"v_cvt_pk_bf16_f32 v{28+e}, v{20+2*e}, v{21+2*e}")
    a("buffer_store_dwordx4 v[28:31], v5, s[44:47], 0 offen")
    a("v_mov_b32 v32, 0"); a("v_mov_b32 v33, 0"); a("v_mov_b32 v34, 0"); a("v_mov_b32 v35, 0")
    a("v_cmp_gt_u32 vcc, 8, v18")
    a("s_and_saveexec_b64 s[48:49], vcc")
    skipz=a.newlabel("kg_z")
    a(f"s_cbranch_execz {skipz}")
    a("s_mov_b32 s28, 4096")
    a("buffer_store_dwordx4 v[32:35], v5, s[44:47], s28 offen")
    a.label(skipz)
    a("s_mov_b64 exec, -1")
    ldone=a.newlabel("kg_done")
    a("s_cmp_eq_u32 s40, 1")
    a(f"s_cbranch_scc1 {ldone}")
    a("s_mov_b32 s40, 1")
    a("v_add_u32 v2, 1, v2")
    for i in range(5): a(f"v_mov_b32 v{4+i}, v{131+i}")
    a("s_barrier")
    a(f"s_branch {lloop}")
    a.label(ldone)
    a("v_mov_b32 v0, v130")
    a("s_waitcnt vmcnt(0)")
    a("s_barrier")
    if RT: a("s_memrealtime s[56:57]")


def k0b(name):
    a=Asm(); a.label(name)
    if RT: a("s_memrealtime s[90:91]")
    a(HEAD_A)
    a("s_cmp_ge_u32 s2, 32")
    a(f"s_cbranch_scc1 {name}_pf")
    a("s_mov_b32 s3, s2")
    lz=a.newlabel("k0_z")
    a("s_cmp_lg_u32 s3, 0")
    a(f"s_cbranch_scc1 {lz}")
    ws_srd(a, 52, CNT_OFF, 24576)
    a("v_lshlrev_b32 v4, 4, v0")
    a("v_mov_b32 v8, 0\nv_mov_b32 v9, 0\nv_mov_b32 v10, 0\nv_mov_b32 v11, 0")
    a("buffer_store_dwordx4 v[8:11], v4, s[52:55], 0 offen")
    a("s_mov_b32 s26, 8192")
    a("buffer_store_dwordx4 v[8:11], v4, s[52:55], s26 offen")
    a("s_mov_b32 s26, 16384")
    a("buffer_store_dwordx4 v[8:11], v4, s[52:55], s26 offen")
    a.label(lz)
    ln3(a)
    a.label(f"{name}_pf")
    a("s_cmp_ge_u32 s2, 88")
    a(f"s_cbranch_scc1 {name}_exit")
    a("s_sub_u32 s3, s2, 32")
    a("s_cmp_ge_u32 s3, 28")
    a("s_cselect_b32 s48, s82, s80")
    a("s_cselect_b32 s49, s83, s81")
    a(f"s_mov_b32 s50, {448*3584}")
    a("s_mov_b32 s51, 0x00020000")
    a("s_cselect_b32 s23, 28, 0")
    a("s_sub_u32 s3, s3, s23")
    a("s_mul_i32 s23, s3, 57344")
    a("v_lshlrev_b32 v4, 4, v0")
    for i in range(7):
        a(f"buffer_load_dwordx4 v[8:11], v4, s[48:51], s23 offen")
        if i<6: a("s_add_u32 s23, s23, 8192")
    a("s_waitcnt vmcnt(0)")
    a.label(f"{name}_exit")
    a("s_endpgm")
    return a.text()

def k1b(name):
    a=Asm(); a.label(name)
    if RT: a("s_memrealtime s[90:91]")
    a(HEAD_A)
    a("s_cmp_ge_u32 s2, 480")
    a(f"s_cbranch_scc1 {name}_exit")
    a("s_cmp_ge_u32 s2, 256")
    a(f"s_cbranch_scc1 {name}_conv")
    a("""
    v_and_b32 v1, 63, v0
    v_lshrrev_b32 v2, 6, v0
    s_nop 0
    v_readfirstlane_b32 s22, v2
    s_nop 3
    """)
    claim_both(a)
    gemm1_4(a, f"{name}_g2")
    a.label(f"{name}_g2")
    gemm2_4(a, f"{name}_exit")
    a.label(f"{name}_conv")
    a("s_sub_u32 s3, s2, 256")
    kgen5(a)
    conv4(a)
    a.label(f"{name}_exit")
    a("s_endpgm")
    return a.text()

def conv5(a):
    ws_srd(a, 8, KR_OFF, KR_SZ)
    ws_srd(a, 12, XNT_OFF, XN_SZ)
    ws_srd(a, 16, ST_OFF, XN_SZ)
    srd(a, 20, 76, 77, 448*2)
    a("""
    v_lshrrev_b32 v1, 7, v0            ; chsel
    v_and_b32 v2, 127, v0              ; tau
    s_lshl_b32 s24, s3, 1
    v_add_u32 v3, s24, v1              ; channel d
    """)
    a(f"v_mul_u32_u24 v4, {KRP}, v3")
    a("v_lshl_add_u32 v4, v2, 4, v4")
    a("v_lshlrev_b32 v5, 12, v3")
    a("v_lshl_add_u32 v5, v2, 4, v5")
    a("v_lshlrev_b32 v6, 1, v3")
    a("buffer_load_dwordx4 v[16:19], v4, s[8:11], 0 offen")
    a("buffer_load_dwordx4 v[20:23], v4, s[8:11], 0 offen offset:16")
    a("buffer_load_dwordx4 v[24:27], v4, s[8:11], 0 offen offset:2048")
    a("buffer_load_dwordx4 v[28:31], v4, s[8:11], 0 offen offset:2064")
    a("buffer_load_dwordx4 v[32:35], v5, s[12:15], 0 offen")
    a("buffer_load_dwordx4 v[36:39], v5, s[12:15], 0 offen offset:2048")
    a("buffer_load_ushort v7, v6, s[20:23], 0 offen")
    a(f"v_mul_u32_u24 v8, {CH_SZ}, v1")
    a("v_lshl_add_u32 v9, v2, 4, v8")
    a("v_mov_b32 v40, 0\nv_mov_b32 v41, 0\nv_mov_b32 v42, 0\nv_mov_b32 v43, 0")
    a(f"ds_write_b128 v9, v[40:43] offset:{KC_SZ}")
    a("v_cmp_gt_u32 vcc, 27, v2")
    a("s_and_saveexec_b64 s[26:27], vcc")
    a(f"ds_write_b128 v9, v[40:43] offset:{KC_SZ+2048}")
    a("s_mov_b64 exec, s[26:27]")
    a("v_lshrrev_b32 v10, 2, v2")
    a(f"v_mul_u32_u24 v10, {CS}, v10")
    a("v_and_b32 v11, 3, v2")
    a("v_lshl_add_u32 v10, v11, 4, v10")
    a("v_add_u32 v10, v10, v8")
    a("v_cmp_gt_u32 vcc, 32, v2")
    a("s_and_saveexec_b64 s[26:27], vcc")
    a("ds_write_b128 v10, v[40:43] offset:4096")
    a("s_mov_b64 exec, s[26:27]")
    a("v_lshrrev_b32 v10, 2, v2")
    a("v_mul_u32_u24 v10, 80, v10")
    a("v_lshl_add_u32 v10, v11, 4, v10")
    a("v_add_u32 v10, v10, v8")
    a("s_waitcnt vmcnt(0)")
    a(f"ds_write_b128 v10, v[32:35] offset:{KC_SZ+31*80}")
    a(f"ds_write_b128 v10, v[36:39] offset:{KC_SZ+31*80+32*80}")
    for half in range(2):
        D=16+8*half
        E=44; D1=52; E1=60
        for k in range(7): a(f"v_alignbit_b32 v{E+k}, v{D+k+1}, v{D+k}, 16")
        for k in range(6): a(f"v_mov_b32 v{D1+k}, v{D+k+1}")
        for k in range(6): a(f"v_alignbit_b32 v{E1+k}, v{D+k+2}, v{D+k+1}, 16")
        src={0:D,4:D+2,2:D1,6:D1+2,1:E,5:E+2,3:E1,7:E1+2}
        for c in range(8):
            a(f"ds_write_b128 v9, v[{src[c]}:{src[c]+3}] offset:{c*CS+half*2048}")
    a("v_lshlrev_b32 v7, 16, v7")
    a("s_waitcnt lgkmcnt(0)")
    a("s_barrier")
    a("""
    v_and_b32 v10, 63, v0
    v_and_b32 v11, 31, v10
    v_lshrrev_b32 v12, 5, v10
    v_sub_u32 v13, 7, v11
    v_and_b32 v13, 7, v13
    """)
    a(f"v_mul_u32_u24 v13, {CS}, v13")
    a("v_lshl_add_u32 v13, v12, 4, v13")
    a("v_lshrrev_b32 v14, 3, v11")
    a("v_lshlrev_b32 v14, 4, v14")
    a("v_sub_u32 v13, v13, v14")
    a("v_add_u32 v13, 48, v13")
    a("v_add_u32 v13, v13, v8")
    a("v_mul_u32_u24 v14, 80, v11")
    a("v_lshl_add_u32 v14, v12, 4, v14")
    a(f"v_add_u32 v14, {KC_SZ}, v14")
    a("v_add_u32 v14, v14, v8")
    ACC0=64; ACC1=80
    for i in range(32): a(f"v_mov_b32 v{64+i}, 0")
    a("v_lshrrev_b32 v15, 6, v0")
    a("v_and_b32 v15, 1, v15")
    a("s_nop 0")
    a("v_readfirstlane_b32 s25, v15")
    lB=a.newlabel("cv_B"); lJ=a.newlabel("cv_J")
    a("s_nop 3")
    a("s_cmp_eq_u32 s25, 1")
    a(f"s_cbranch_scc1 {lB}")
    def mainloop(units):
        NS=3
        def issue(u):
            delta,hs=units[u]; base=96+24*(u%NS); n=0
            for q in range(2):
                a(f"ds_read_b128 v[{base+4*q}:{base+4*q+3}], v13 offset:{64*(63-delta)+32*q}"); n+=1
            for hi,h in enumerate(hs):
                for q in range(2):
                    r=base+8+8*hi+4*q
                    a(f"ds_read_b128 v[{r}:{r+3}], v14 offset:{80*(31+32*h-delta)+32*q}"); n+=1
            return n
        cnt=[]
        for u in range(min(NS-1,len(units))): cnt.append(issue(u))
        for u in range(len(units)):
            if u+NS-1<len(units): cnt.append(issue(u+NS-1))
            rem=sum(cnt[u+1:])
            a(f"s_waitcnt lgkmcnt({min(rem,15)})")
            delta,hs=units[u]; base=96+24*(u%NS)
            for q in range(2):
                for hi,h in enumerate(hs):
                    acc=ACC0 if h==0 else ACC1
                    r=base+8+8*hi+4*q
                    a(f"v_mfma_f32_32x32x16_bf16 v[{acc}:{acc+15}], v[{base+4*q}:{base+4*q+3}], v[{r}:{r+3}], v[{acc}:{acc+15}]")
    mainloop([(d,[0,1]) for d in range(16)]+[(d,[0]) for d in range(16,32)])
    a(f"s_branch {lJ}")
    a.label(lB)
    mainloop([(d,[1]) for d in range(16,64)])
    a.label(lJ)
    a("s_nop 15")
    a("s_barrier")
    a("v_lshl_add_u32 v15, v10, 4, v8")
    lB2=a.newlabel("cv_B2"); lJ2=a.newlabel("cv_J2")
    a("s_cmp_eq_u32 s25, 1")
    a(f"s_cbranch_scc1 {lB2}")
    for i in range(4): a(f"ds_write_b128 v15, v[{ACC1+4*i}:{ACC1+4*i+3}] offset:{i*1024}")
    a("s_waitcnt lgkmcnt(0)")
    a.label(lB2)
    a("s_barrier")
    a("s_cmp_eq_u32 s25, 0")
    a(f"s_cbranch_scc1 {lJ2}")
    for i in range(4): a(f"ds_read_b128 v[{96+4*i}:{96+4*i+3}], v15 offset:{i*1024}")
    a("s_waitcnt lgkmcnt(0)")
    for i in range(16): a(f"v_add_f32 v{ACC0+i}, v{ACC1+i}, v{96+i}")
    a.label(lJ2)
    a("v_lshlrev_b32 v16, 3, v12")
    a("v_sub_u32 v16, v14, v16")
    a("s_mul_i32 s26, s25, 2560")
    a("v_add_u32 v16, s26, v16")
    for rq in range(4): a(f"ds_read_b64 v[{96+2*rq}:{97+2*rq}], v16 offset:{80*31+16*rq}")
    a("v_lshlrev_b32 v17, 12, v3")
    a("v_lshl_add_u32 v17, v11, 6, v17")
    a("v_lshl_add_u32 v17, v12, 3, v17")
    a("s_lshl_b32 s26, s25, 11")
    a("v_add_u32 v17, s26, v17")
    a("s_waitcnt lgkmcnt(0)")
    for rq in range(4):
        for p in range(2):
            x=96+2*rq+p
            y0=ACC0+4*rq+2*p
            a(f"v_lshlrev_b32 v20, 16, v{x}")
            a(f"v_and_b32 v21, 0xffff0000, v{x}")
            a("v_mul_f32 v20, v20, v7")
            a("v_mul_f32 v21, v21, v7")
            a("v_cvt_pk_bf16_f32 v22, v20, v21")
            a(f"v_cvt_pk_bf16_f32 v23, v{y0}, v{y0+1}")
            a("v_lshlrev_b32 v20, 16, v22")
            a("v_and_b32 v21, 0xffff0000, v22")
            a("v_lshlrev_b32 v24, 16, v23")
            a("v_and_b32 v25, 0xffff0000, v23")
            a("v_add_f32 v20, v20, v24")
            a("v_add_f32 v21, v21, v25")
            a(f"v_cvt_pk_bf16_f32 v{26+2*(rq&1)+p}, v20, v21")
        a(f"buffer_store_dwordx2 v[{26+2*(rq&1)}:{27+2*(rq&1)}], v17, s[16:19], 0 offen offset:{16*rq} sc1")
    a("s_waitcnt vmcnt(0)")
    a("s_barrier")
    ws_srd(a, 52, CF_OFF, 4096)
    a("s_lshr_b32 s26, s3, 5")
    a("s_lshl_b32 s26, s26, 8")
    a("v_mov_b32 v20, s26")
    a("v_mov_b32 v21, 1")
    a("v_cmp_eq_u32 vcc, 0, v0")
    a("s_and_saveexec_b64 s[26:27], vcc")
    a("buffer_atomic_add v21, v20, s[52:55], 0 offen")
    a("s_mov_b64 exec, s[26:27]")
    a.vm_clear()


def k12s(name):
    a=Asm(); a.label(name)
    if RT: a("s_memrealtime s[90:91]")
    a(HEAD_A)
    a("s_cmp_ge_u32 s2, 256")
    a(f"s_cbranch_scc1 {name}_exit")
    a("""
    v_and_b32 v1, 63, v0
    v_lshrrev_b32 v2, 6, v0
    s_nop 0
    v_readfirstlane_b32 s22, v2
    s_nop 3
    """)
    claim_both(a)
    gemm1_4(a, f"{name}_exit")
    a("s_lshr_b32 s3, s88, 8")
    a("s_mul_i32 s3, s3, 28")
    a("s_and_b32 s26, s88, 0xff")
    a("s_add_u32 s3, s3, s26")
    conv5(a)
    a("""
    v_and_b32 v1, 63, v0
    v_lshrrev_b32 v2, 6, v0
    s_nop 0
    v_readfirstlane_b32 s22, v2
    s_nop 3
    s_barrier
    """)
    gemm2_4(a, f"{name}_exit")
    a.label(f"{name}_exit")
    a("s_endpgm")
    return a.text()
```

```python
from k3 import *
HF_OFF=CNT_OFF+12288; CF_OFF=CNT_OFF+16384

def claim_both(a):
    ws_srd(a, 52, CNT_OFF, 8192)
    a("s_getreg_b32 s27, hwreg(HW_REG_XCC_ID)")
    a("s_and_b32 s27, s27, 7")
    lskip=a.newlabel("cl_skip")
    a("s_cmp_lg_u32 s22, 0")
    a(f"s_cbranch_scc1 {lskip}")
    a("s_mov_b64 s[30:31], exec")
    a("s_mov_b64 exec, 3")
    a("s_lshl_b32 s26, s27, 8")
    a("v_lshlrev_b32 v4, 12, v0")
    a("v_add_u32 v4, s26, v4")
    a("v_mov_b32 v5, 1")
    a("buffer_atomic_add v5, v4, s[52:55], 0 offen sc0")
    a("s_waitcnt vmcnt(0)")
    a("v_readlane_b32 s88, v5, 0")
    a("v_readlane_b32 s89, v5, 1")
    a("s_mov_b32 s29, s27")
    for st,reg in ((0,88),(1,89)):
        lp=a.newlabel("cl_loop"); ld=a.newlabel("cl_done"); lno=a.newlabel("cl_no")
        a("s_mov_b32 s27, s29")
        a("s_nop 3")
        a(f"s_cmp_lt_u32 s{reg}, 28")
        a(f"s_cbranch_scc1 {ld}")
        a("s_mov_b64 exec, 0xff")
        a("v_lshlrev_b32 v4, 8, v0")
        a(f"v_add_u32 v4, {st*4096}, v4")
        a("buffer_load_dword v6, v4, s[52:55], 0 offen sc1")
        a("s_waitcnt vmcnt(0)")
        a("v_cmp_gt_u32 vcc, 28, v6")
        a("s_mov_b64 exec, 1")
        a("s_nop 3")
        a("s_mov_b32 s28, vcc_lo")
        a.label(lp)
        a("s_cmp_eq_u32 s28, 0")
        a(f"s_cbranch_scc1 {lno}")
        a("s_ff1_i32_b32 s27, s28")
        a("s_bitset0_b32 s28, s27")
        a("s_lshl_b32 s26, s27, 8")
        a(f"s_add_u32 s26, s26, {st*4096}")
        a("v_mov_b32 v4, s26")
        a("v_mov_b32 v5, 1")
        a("buffer_atomic_add v5, v4, s[52:55], 0 offen sc0")
        a("s_waitcnt vmcnt(0)")
        a(f"v_readfirstlane_b32 s{reg}, v5")
        a("s_nop 3")
        a(f"s_cmp_lt_u32 s{reg}, 28")
        a(f"s_cbranch_scc1 {ld}")
        a(f"s_branch {lp}")
        a.label(lno)
        a(f"s_mov_b32 s{reg}, 0xff")
        a.label(ld)
        a("s_lshl_b32 s28, s27, 8")
        a(f"s_or_b32 s{reg}, s{reg}, s28")
    a("s_mov_b64 exec, 1")
    a("v_mov_b32 v4, 0")
    a("v_mov_b32 v6, s88")
    a("v_mov_b32 v7, s89")
    a("ds_write_b64 v4, v[6:7]")
    a("s_waitcnt lgkmcnt(0)")
    a("s_mov_b64 exec, s[30:31]")
    a.label(lskip)
    a("s_barrier")
    a("v_mov_b32 v4, 0")
    a("ds_read_b64 v[6:7], v4")
    a("s_waitcnt lgkmcnt(0)")
    a("v_readfirstlane_b32 s88, v6")
    a("v_readfirstlane_b32 s89, v7")
    a("s_barrier")

def poll_ge(a, srdbase, off_sgpr, target, sleep):
    lp=a.newlabel("poll"); ld=a.newlabel("polld")
    a("s_cmp_lg_u32 s22, 0")
    a(f"s_cbranch_scc1 {ld}")
    a(f"v_mov_b32 v18, s{off_sgpr}")
    a.label(lp)
    a(f"buffer_load_dword v19, v18, s[{srdbase}:{srdbase+3}], 0 offen sc1")
    a("s_waitcnt vmcnt(0)")
    a("v_readfirstlane_b32 s23, v19")
    a("s_nop 3")
    a(f"s_cmp_ge_u32 s23, {target}")
    a(f"s_cbranch_scc1 {ld}")
    a(f"s_sleep {sleep}")
    a(f"s_branch {lp}")
    a.label(ld)
    a("s_barrier")

def gemm1_4(a, next_label):
    NST=14; NSL=10; NP=28
    a(f"s_setprio {os.environ.get('G1P','0')}")
    ws_srd(a, 8, XN_OFF, XN_SZ)
    ws_srd(a, 16, H_OFF, H_SZ)
    srd(a, 12, 80, 81, 448*3584)
    a("s_and_b32 s26, s88, 0xff")
    a("s_lshr_b32 s27, s88, 8")
    a("s_cmp_eq_u32 s26, 0xff")
    a(f"s_cbranch_scc1 {next_label}")
    a("s_cmp_ge_u32 s26, 14")
    a("s_cselect_b32 s20, 1, 0")
    a("s_mul_i32 s21, s20, 14")
    a("s_sub_u32 s21, s26, s21")
    a("s_lshl_b32 s27, s27, 1")
    a("s_add_u32 s20, s20, s27")
    a("s_mov_b32 s29, s26")
    a("""
    v_lshrrev_b32 v3, 3, v1
    v_lshl_add_u32 v3, v2, 4, v3
    s_lshl_b32 s23, s20, 7
    v_add_u32 v3, s23, v3
    v_mul_u32_u24 v3, 896, v3
    v_and_b32 v4, 7, v1
    v_lshrrev_b32 v5, 4, v1
    v_xor_b32 v4, v4, v5
    v_lshl_add_u32 v3, v4, 4, v3       ; voffA i=0
    v_xor_b32 v4, 64, v3               ; voffA i=1  (896 = 7*128)
    v_bfe_u32 v6, v1, 4, 2
    v_lshrrev_b32 v5, 4, v1
    v_lshl_add_u32 v5, v2, 3, v5       ; krow = 8w + l/16 (+4i)
    v_mul_u32_u24 v5, 3584, v5
    v_bfe_u32 v7, v1, 2, 2
    v_xor_b32 v6, v6, v7
    v_and_b32 v7, 3, v1
    v_lshl_add_u32 v6, v6, 2, v7
    v_lshl_add_u32 v5, v6, 4, v5
    s_lshl_b32 s23, s21, 8
    v_add_u32 v5, s23, v5              ; voffB
    s_lshl_b32 s24, s22, 11
    """)
    a("s_mul_hi_u32 s30, s29, 0x24924925")
    a("s_mul_i32 s30, s30, 7")
    a("s_sub_u32 s31, s29, s30")
    for k in range(7):
        a(f"s_lshl_b32 s{32+k}, s31, 7")
        a("s_add_u32 s31, s31, 1")
        a("s_cmp_eq_u32 s31, 7")
        a("s_cselect_b32 s31, 0, s31")
    def issue(p):
        c=p//4; k=p%4; sl=p%NSL
        if k not in (1,2): a(f"s_mul_i32 s30, s{32+c}, 1792")
        for i in range(2):
            a(f"s_add_u32 m0, s24, {sl*8192+i*1024}")
            if k in (1,2):
                a(f"s_add_u32 s25, s{32+c}, {(k-1)*64*896+i*8*896}")
                a(f"buffer_load_dwordx4 v{3+i}, s[8:11], s25 offen lds")
            else:
                a(f"s_add_u32 s25, s30, {(32*3584 if k==3 else 0)+i*4*3584}")
                a(f"buffer_load_dwordx4 v5, s[12:15], s25 offen lds")
            a.vm_issue(p)
    for p in range(NSL): issue(p)
    a("""
    v_and_b32 v8, 31, v1               ; m / n
    v_lshrrev_b32 v9, 5, v1            ; g
    v_lshrrev_b32 v10, 1, v2           ; wr
    v_and_b32 v11, 1, v2               ; wc
    s_lshr_b32 s28, s22, 1
    v_lshlrev_b32 v12, 7, v8
    v_bfe_u32 v13, v8, 1, 3
    v_xor_b32 v13, v13, v9
    v_lshl_add_u32 v12, v13, 4, v12
    v_bfe_u32 v14, v1, 2, 2            ; r
    v_lshl_add_u32 v15, v9, 3, v14
    v_lshlrev_b32 v15, 8, v15
    v_lshlrev_b32 v16, 1, v11
    v_xor_b32 v16, v16, v14
    v_lshl_add_u32 v15, v16, 6, v15
    v_bfe_u32 v16, v1, 4, 1
    v_lshl_add_u32 v15, v16, 5, v15
    v_and_b32 v16, 3, v1
    v_lshl_add_u32 v15, v16, 3, v15
    """)
    ACC=64
    for i in range(64): a(f"v_mov_b32 v{ACC+i}, 0")
    FAs=[32,128]; FBs=[48,144]
    def reads(s):
        c=s//2; h=s%2
        FA=FAs[s&1]; FB=FBs[s&1]
        pB=4*c+(3 if h else 0)
        sl0=((4*c+1)%NSL)*8192; sl1=((4*c+2)%NSL)*8192
        a(f"s_mov_b32 s26, {sl0}")
        a(f"s_mov_b32 s27, {sl1}")
        a("s_cmp_eq_u32 s28, 0")
        a("s_cselect_b32 s26, s26, s27")
        a(f"v_xor_b32 v17, {64*h}, v12")
        a("v_add_u32 v17, s26, v17")
        a("v_xor_b32 v18, 32, v17")
        a(f"v_add_u32 v19, {(pB%NSL)*8192}, v15")
        a("v_xor_b32 v20, 64, v19")
        for ks in range(2):
            for mt in range(2):
                r=FA+8*ks+4*mt
                a(f"ds_read_b128 v[{r}:{r+3}], v{17+ks} offset:{mt*4096}")
            for nt in range(2):
                for i in range(2):
                    r=FB+8*ks+4*nt+2*i
                    a(f"ds_read_b64_tr_b16 v[{r}:{r+1}], v{19+nt} offset:{(16*ks+4*i)*256}")
    def needs(s):
        c=s//2
        return [4*c+3] if s%2 else [4*c,4*c+1,4*c+2]
    def wait_stage(s):
        idx=[i for i,t in enumerate(a.vm) if t in needs(s)]
        if idx: a.vm_wait(a.vm[max(idx)])
    wait_stage(0)
    a("s_barrier")
    if RT: a("s_memrealtime s[58:59]")
    reads(0)
    st={'nxt':NSL}
    for s in range(NST):
        FA=FAs[s&1]; FB=FBs[s&1]
        if s+1<NST: wait_stage(s+1)
        a("s_waitcnt lgkmcnt(0)")
        a("s_barrier")
        nfree = 1 if s%2==0 else 3
        def fill():
            for _ in range(nfree):
                if st['nxt']<NP: issue(st['nxt']); st['nxt']+=1
            if s+1<NST: reads(s+1)
        def prim():
            for ks in range(2):
                for mt in range(2):
                    for nt in range(2):
                        acc=ACC+16*(2*mt+nt)
                        ra=FA+8*ks+4*mt; rb=FB+8*ks+4*nt
                        a(f"v_mfma_f32_32x32x16_bf16 v[{acc}:{acc+15}], v[{rb}:{rb+3}], v[{ra}:{ra+3}], v[{acc}:{acc+15}]")
        interleave(a, capture(a,prim), capture(a,fill))
    if RT: a("s_memrealtime s[60:61]")
    a("s_nop 15")
    a("s_barrier")
    HP=272
    a(f"v_lshl_add_u32 v20, v10, 6, v8")
    a(f"v_mul_u32_u24 v20, {HP}, v20")
    a("v_lshl_add_u32 v20, v11, 7, v20")
    a("v_lshl_add_u32 v20, v9, 3, v20")
    k=0
    for mt in range(2):
        for nt in range(2):
            acc=ACC+16*(2*mt+nt)
            for q in range(4):
                t=48+2*(k%4); k+=1
                for e in range(4): a(f"v_max_f32 v{acc+4*q+e}, 0, v{acc+4*q+e}")
                a(f"v_cvt_pk_bf16_f32 v{t}, v{acc+4*q}, v{acc+4*q+1}")
                a(f"v_cvt_pk_bf16_f32 v{t+1}, v{acc+4*q+2}, v{acc+4*q+3}")
                a(f"ds_write_b64 v20, v[{t}:{t+1}] offset:{mt*32*HP+nt*64+16*q}")
    a("s_waitcnt lgkmcnt(0)")
    a("s_barrier")
    a("v_lshrrev_b32 v21, 4, v0")
    a("v_and_b32 v22, 15, v0")
    a(f"v_mul_u32_u24 v23, {HP}, v21")
    a("v_lshl_add_u32 v23, v22, 4, v23")
    for j in range(8):
        a(f"ds_read_b128 v[{64+4*j}:{67+4*j}], v23 offset:{j*16*HP}")
    a("s_lshl_b32 s23, s20, 7")
    a("v_add_u32 v21, s23, v21")
    a("v_mul_u32_u24 v21, 3584, v21")
    a("v_lshl_add_u32 v21, v22, 4, v21")
    a("s_lshl_b32 s23, s21, 8")
    a("v_add_u32 v21, s23, v21")
    for j in range(8):
        a(f"s_mov_b32 s25, {j*16*3584}")
        a(f"s_waitcnt lgkmcnt({7-j})")
        a(f"buffer_store_dwordx4 v[{64+4*j}:{67+4*j}], v21, s[16:19], s25 offen sc1")
    a("s_waitcnt vmcnt(0)")
    a("s_barrier")
    ws_srd(a, 52, HF_OFF, 4096)
    a("s_lshl_b32 s23, s20, 8")
    a("s_lshl_b32 s30, s21, 2")
    a("s_add_u32 s23, s23, s30")
    a("v_mov_b32 v4, s23")
    a("v_mov_b32 v5, 1")
    a("v_cmp_eq_u32 vcc, 0, v0")
    a("s_and_saveexec_b64 s[30:31], vcc")
    a("buffer_store_dword v5, v4, s[52:55], 0 offen sc1")
    a("s_mov_b64 exec, s[30:31]")
    a("s_mov_b32 s34, s20")
    a("s_mov_b32 s35, s21")
    a.vm_clear()


def gemm2_4(a, exit_label):
    ws_srd(a, 8, H_OFF, H_SZ)
    ws_srd(a, 16, ST_OFF, XN_SZ)
    srd(a, 12, 82, 83, 1792*896)
    srd(a, 40, 64, 65, XN_SZ)
    srd(a, 44, 84, 85, XN_SZ)
    if RT: a("s_memrealtime s[62:63]")
    a("s_cmp_ge_u32 s35, 7")
    a("s_cselect_b32 s26, 1, 0")
    a("s_lshl_b32 s20, s34, 1")
    a("s_add_u32 s20, s20, s26")
    a("s_mul_i32 s26, s26, 7")
    a("s_sub_u32 s21, s35, s26")
    a("s_lshl_b32 s31, s35, 1")
    a("""
    v_lshrrev_b32 v3, 3, v1
    v_lshl_add_u32 v3, v2, 4, v3
    s_lshl_b32 s23, s20, 6
    v_add_u32 v3, s23, v3
    v_mul_u32_u24 v3, 3584, v3
    v_and_b32 v4, 7, v1
    v_lshrrev_b32 v5, 4, v1
    v_xor_b32 v4, v4, v5
    v_lshl_add_u32 v3, v4, 4, v3       ; voffA i=0
    v_xor_b32 v4, 64, v3               ; voffA i=1
    v_lshrrev_b32 v5, 3, v1
    v_lshl_add_u32 v5, v2, 4, v5
    v_mul_u32_u24 v5, 896, v5
    v_bfe_u32 v6, v1, 2, 1
    v_bfe_u32 v7, v1, 4, 1
    v_xor_b32 v6, v6, v7
    v_and_b32 v7, 3, v1
    v_lshl_add_u32 v6, v6, 2, v7
    v_lshl_add_u32 v5, v6, 4, v5
    s_lshl_b32 s23, s21, 7
    v_add_u32 v5, s23, v5              ; voffB
    s_lshl_b32 s24, s22, 11            ; wave*2048
    """)
    NST=28; NBS=int(os.environ.get('NBS','5'))
    a("s_mov_b32 s32, s31")
    a("s_mov_b32 s33, s31")
    def adv(r):
        a(f"s_add_u32 s{r}, s{r}, 1")
        a(f"s_cmp_eq_u32 s{r}, 28")
        a(f"s_cselect_b32 s{r}, 0, s{r}")
    slow=[]
    def issueA(s):
        sl=(s%NBS)*16384
        if s%2==0:
            lsl=a.newlabel("g2_slow"); lbk=a.newlabel("g2_back")
            a("s_lshr_b32 s26, s32, 1")
            a("s_bitcmp1_b32 s36, s26")
            a(f"s_cbranch_scc0 {lsl}")
            a.label(lbk)
            slow.append((lsl,lbk))
        a("s_lshl_b32 s26, s32, 7")
        for i in range(2):
            a(f"s_add_u32 m0, s24, {sl+i*1024}")
            a(f"s_add_u32 s25, s26, {i*8*3584}")
            a(f"buffer_load_dwordx4 v{3+i}, s[8:11], s25 offen lds")
            a.vm_issue(s)
        adv(32)
    def issueB(s):
        sl=(s%NBS)*16384
        a(f"s_mul_i32 s27, s33, {64*896}")
        for i in range(2):
            a(f"s_add_u32 m0, s24, {sl+8192+i*1024}")
            a(f"s_add_u32 s25, s27, {i*8*896}")
            a(f"buffer_load_dwordx4 v5, s[12:15], s25 offen lds")
            a.vm_issue(s)
        adv(33)
    def issue(s):
        issueA(s); issueB(s)
    for s in range(NBS): issueB(s)
    ws_srd(a, 52, HF_OFF, 8192)
    a("s_lshl_b32 s23, s34, 8")
    a("v_lshlrev_b32 v23, 2, v1")
    a("v_add_u32 v23, s23, v23")
    a("s_mov_b32 s36, 0")
    a("s_mov_b32 s39, 0")
    a("s_bitset1_b32 s36, s35")
    if RT: a("s_memrealtime s[56:57]")
    for s in range(NBS): issueA(s)
    a("""
    s_lshl_b32 s23, s20, 6
    v_add_u32 v22, s23, v1
    v_mul_u32_u24 v22, 896, v22
    v_lshl_add_u32 v22, v2, 5, v22
    s_lshl_b32 s23, s21, 7
    v_add_u32 v22, s23, v22
    buffer_load_dwordx4 v[24:27], v22, s[40:43], 0 offen
    buffer_load_dwordx4 v[28:31], v22, s[40:43], 0 offen offset:16
    """)
    a.vm_issue('x'); a.vm_issue('x')
    a("""
    v_and_b32 v8, 31, v1
    v_lshrrev_b32 v9, 5, v1
    v_lshlrev_b32 v12, 7, v8
    v_lshl_add_u32 v13, v2, 1, v9
    v_bfe_u32 v14, v8, 1, 3
    v_xor_b32 v13, v13, v14
    v_lshl_add_u32 v12, v13, 4, v12    ; vA
    v_add_u32 v13, 0x10000, v12
    v_bfe_u32 v14, v1, 2, 2            ; r
    v_lshl_add_u32 v15, v9, 3, v14
    v_lshl_add_u32 v15, v2, 4, v15
    v_lshlrev_b32 v15, 7, v15
    v_lshrrev_b32 v16, 1, v14
    v_lshl_add_u32 v15, v16, 6, v15
    v_bfe_u32 v16, v1, 4, 1
    v_lshl_add_u32 v15, v16, 5, v15
    v_and_b32 v16, 3, v1
    v_lshl_add_u32 v15, v16, 3, v15
    v_add_u32 v15, 8192, v15           ; vB0
    v_xor_b32 v16, 64, v15             ; vB1
    v_add_u32 v10, 0x10000, v15
    v_add_u32 v11, 0x10000, v16
    """)
    ACC=64
    for i in range(64): a(f"v_mov_b32 v{ACC+i}, 0")
    FAs=[32,128]; FBs=[40,136]
    a("""
    s_lshl_b32 s23, s21, 6
    v_lshlrev_b32 v17, 4, v2
    v_add_u32 v17, s23, v17
    v_lshlrev_b32 v17, 12, v17
    v_lshl_add_u32 v17, v1, 1, v17
    s_lshl_b32 s23, s20, 7
    v_add_u32 v17, s23, v17
    s_lshl_b32 s23, s21, 2
    v_mov_b32 v19, s23
    """)
    def reads(s):
        b=s%NBS
        FA=FAs[s&1]; FB=FBs[s&1]
        a(f"v_add_u32 v13, {b*16384}, v12")
        a(f"v_add_u32 v10, {b*16384}, v15")
        a(f"v_add_u32 v11, {b*16384}, v16")
        for mt in range(2):
            r=FA+4*mt
            a(f"ds_read_b128 v[{r}:{r+3}], v13 offset:{mt*4096}")
        for nt in range(2):
            for i in range(2):
                r=FB+4*nt+2*i
                a(f"ds_read_b64_tr_b16 v[{r}:{r+1}], v{10+nt} offset:{4*i*128}")
    a.vm_wait(0)
    a("s_barrier")
    if RT: a("s_memrealtime s[58:59]")
    reads(0)
    for s in range(NST):
        FA=FAs[s&1]; FB=FBs[s&1]
        if s+1<NST and a.vm_has(s+1): a.vm_wait(s+1)
        a("s_waitcnt lgkmcnt(0)")
        a("s_barrier")
        def fill():
            if s+NBS<NST: issue(s+NBS)
            if s+1<NST: reads(s+1)
        def prim():
            for mt in range(2):
                for nt in range(2):
                    acc=ACC+16*(2*mt+nt)
                    ra=FA+4*mt; rb=FB+4*nt
                    a(f"v_mfma_f32_32x32x16_bf16 v[{acc}:{acc+15}], v[{rb}:{rb+3}], v[{ra}:{ra+3}], v[{acc}:{acc+15}]")
        interleave(a, capture(a,prim), capture(a,fill))
        if s==23:
            a("s_lshl_b32 s30, s21, 8")
            a("s_add_u32 s30, s30, 4096")
            a("v_mov_b32 v18, s30")
            a("buffer_load_dword v19, v18, s[52:55], 0 offen sc1")
            a.vm_issue('cf')
        if s==26:
            lp=a.newlabel("cf_poll"); ld=a.newlabel("cf_ok")
            a.vm_wait('cf')
            a("s_mov_b32 s38, 0")
            a.label(lp)
            a("v_readfirstlane_b32 s23, v19")
            a("s_nop 3")
            a("s_cmp_ge_u32 s23, 32")
            a(f"s_cbranch_scc1 {ld}")
            a("s_add_u32 s38, s38, 1")
            a("s_cmp_ge_u32 s38, 0x80000")
            a(f"s_cbranch_scc1 {ld}")
            a("s_sleep 16")
            a("buffer_load_dword v19, v18, s[52:55], 0 offen sc1")
            a("s_waitcnt vmcnt(0)")
            a(f"s_branch {lp}")
            a.label(ld)
            for j in range(16):
                a(f"s_mov_b32 s25, {j*4096}")
                a(f"buffer_load_ushort v{144+j}, v17, s[16:19], s25 offen sc1")
    if RT: a("s_memrealtime s[60:61]")
    a("s_nop 15")
    a("s_barrier")
    a(f"v_mul_u32_u24 v20, {64*RP}, v2")
    a(f"v_mul_u32_u24 v21, {RP}, v8")
    a("v_add_u32 v20, v20, v21")
    a("v_lshl_add_u32 v20, v9, 4, v20")
    for mt in range(2):
        for nt in range(2):
            acc=ACC+16*(2*mt+nt)
            for q in range(4):
                a(f"ds_write_b128 v20, v[{acc+4*q}:{acc+4*q+3}] offset:{mt*32*RP+nt*128+q*32}")
    a("s_waitcnt lgkmcnt(0)")
    a("s_barrier")
    a(f"v_mul_u32_u24 v20, {RP}, v1")
    a("v_lshl_add_u32 v20, v2, 6, v20")
    for wv in range(4):
        for j in range(4):
            r=64+16*wv+4*j
            a(f"ds_read_b128 v[{r}:{r+3}], v20 offset:{wv*64*RP+j*16}")
    a("s_waitcnt lgkmcnt(0)")
    for i in range(16):
        a(f"v_add_f32 v{64+i}, v{64+i}, v{80+i}")
        a(f"v_add_f32 v{96+i}, v{96+i}, v{112+i}")
        a(f"v_add_f32 v{64+i}, v{64+i}, v{96+i}")
    NL2E=hex(f2u(-1.4426950408889634))
    for p in range(8):
        m0,m1=64+2*p,65+2*p
        a(f"v_cvt_pk_bf16_f32 v4, v{m0}, v{m1}")
        a("v_lshlrev_b32 v5, 16, v4")
        a("v_and_b32 v6, 0xffff0000, v4")
        a(f"v_mul_f32 v7, {NL2E}, v5")
        a(f"v_mul_f32 v10, {NL2E}, v6")
        a("v_exp_f32 v7, v7")
        a("v_exp_f32 v10, v10")
        a("s_nop 0")
        a("v_add_f32 v7, 1.0, v7")
        a("v_add_f32 v10, 1.0, v10")
        a("v_rcp_f32 v7, v7")
        a("v_rcp_f32 v10, v10")
        a("s_nop 0")
        a("v_mul_f32 v5, v5, v7")
        a("v_mul_f32 v6, v6, v10")
        a("v_cvt_pk_bf16_f32 v4, v5, v6")
        a("v_lshlrev_b32 v5, 16, v4")
        a("v_and_b32 v6, 0xffff0000, v4")
        if p==0: a("s_waitcnt vmcnt(0)")
        a(f"v_lshlrev_b32 v7, 16, v{144+2*p}")
        a(f"v_lshlrev_b32 v10, 16, v{145+2*p}")
        a("v_mul_f32 v5, v5, v7")
        a("v_mul_f32 v6, v6, v10")
        a("v_cvt_pk_bf16_f32 v4, v5, v6")
        a("v_lshlrev_b32 v5, 16, v4")
        a("v_and_b32 v6, 0xffff0000, v4")
        a(f"v_lshlrev_b32 v7, 16, v{24+p}")
        a(f"v_and_b32 v10, 0xffff0000, v{24+p}")
        a("v_add_f32 v5, v5, v7")
        a("v_add_f32 v6, v6, v10")
        a(f"v_cvt_pk_bf16_f32 v{48+p}, v5, v6")
    a("buffer_store_dwordx4 v[48:51], v22, s[44:47], 0 offen")
    a("buffer_store_dwordx4 v[52:55], v22, s[44:47], 0 offen offset:16")
    a("s_waitcnt vmcnt(0)")
    rt_end(a,1)
    for lsl,lbk in slow:
        a.label(lsl)
        a("buffer_load_dword v6, v23, s[52:55], 0 offen sc1")
        a("s_waitcnt vmcnt(0)")
        a("v_cmp_ne_u32 vcc, 0, v6")
        a("s_nop 3")
        a("s_and_b32 s36, vcc_lo, 0x3fff")
        a("s_bitcmp1_b32 s36, s26")
        a(f"s_cbranch_scc1 {lbk}")
        a("s_add_u32 s39, s39, 1")
        a("s_cmp_ge_u32 s39, 0x100000")
        a(f"s_cbranch_scc1 {lbk}")
        a("s_sleep 4")
        a(f"s_branch {lsl}")


def conv4(a):
    a(f"s_setprio {os.environ.get('CVP','2')}")
    ws_srd(a, 8, KR_OFF, KR_SZ)
    ws_srd(a, 12, XNT_OFF, XN_SZ)
    ws_srd(a, 16, ST_OFF, XN_SZ)
    srd(a, 20, 76, 77, 448*2)
    a("""
    v_lshrrev_b32 v1, 7, v0            ; chsel
    v_and_b32 v2, 127, v0              ; tau
    s_lshl_b32 s24, s3, 1
    v_add_u32 v3, s24, v1              ; channel d
    """)
    a(f"v_mul_u32_u24 v4, {KRP}, v3")
    a("v_lshl_add_u32 v4, v2, 4, v4")
    a("v_lshlrev_b32 v5, 12, v3")
    a("v_lshl_add_u32 v5, v2, 4, v5")
    a("v_lshlrev_b32 v6, 1, v3")
    a("buffer_load_dwordx4 v[16:19], v4, s[8:11], 0 offen")
    a("buffer_load_dwordx4 v[20:23], v4, s[8:11], 0 offen offset:16")
    a("buffer_load_dwordx4 v[24:27], v4, s[8:11], 0 offen offset:2048")
    a("buffer_load_dwordx4 v[28:31], v4, s[8:11], 0 offen offset:2064")
    a("buffer_load_dwordx4 v[32:35], v5, s[12:15], 0 offen")
    a("buffer_load_dwordx4 v[36:39], v5, s[12:15], 0 offen offset:2048")
    a("buffer_load_ushort v7, v6, s[20:23], 0 offen")
    a(f"v_mul_u32_u24 v8, {CH_SZ}, v1")
    a("v_lshl_add_u32 v9, v2, 4, v8")
    a("v_mov_b32 v40, 0\nv_mov_b32 v41, 0\nv_mov_b32 v42, 0\nv_mov_b32 v43, 0")
    a(f"ds_write_b128 v9, v[40:43] offset:{KC_SZ}")
    a("v_cmp_gt_u32 vcc, 27, v2")
    a("s_and_saveexec_b64 s[26:27], vcc")
    a(f"ds_write_b128 v9, v[40:43] offset:{KC_SZ+2048}")
    a("s_mov_b64 exec, s[26:27]")
    a("v_lshrrev_b32 v10, 2, v2")
    a(f"v_mul_u32_u24 v10, {CS}, v10")
    a("v_and_b32 v11, 3, v2")
    a("v_lshl_add_u32 v10, v11, 4, v10")
    a("v_add_u32 v10, v10, v8")
    a("v_cmp_gt_u32 vcc, 32, v2")
    a("s_and_saveexec_b64 s[26:27], vcc")
    a("ds_write_b128 v10, v[40:43] offset:4096")
    a("s_mov_b64 exec, s[26:27]")
    a("v_lshrrev_b32 v10, 2, v2")
    a("v_mul_u32_u24 v10, 80, v10")
    a("v_lshl_add_u32 v10, v11, 4, v10")
    a("v_add_u32 v10, v10, v8")
    a("s_waitcnt vmcnt(0)")
    a(f"ds_write_b128 v10, v[32:35] offset:{KC_SZ+31*80}")
    a(f"ds_write_b128 v10, v[36:39] offset:{KC_SZ+31*80+32*80}")
    for half in range(2):
        D=16+8*half
        E=44; D1=52; E1=60
        for k in range(7): a(f"v_alignbit_b32 v{E+k}, v{D+k+1}, v{D+k}, 16")
        for k in range(6): a(f"v_mov_b32 v{D1+k}, v{D+k+1}")
        for k in range(6): a(f"v_alignbit_b32 v{E1+k}, v{D+k+2}, v{D+k+1}, 16")
        src={0:D,4:D+2,2:D1,6:D1+2,1:E,5:E+2,3:E1,7:E1+2}
        for c in range(8):
            a(f"ds_write_b128 v9, v[{src[c]}:{src[c]+3}] offset:{c*CS+half*2048}")
    a("v_lshlrev_b32 v7, 16, v7")
    a("s_waitcnt lgkmcnt(0)")
    if os.environ.get('CDLY'):
        ws_srd(a, 52, HF_OFF, 8192)
        a("v_lshrrev_b32 v15, 6, v0")
        a("s_nop 0")
        a("v_readfirstlane_b32 s22, v15")
        a("s_and_b32 s23, s3, 15")
        a("s_lshl_b32 s23, s23, 8")
        a("v_and_b32 v15, 63, v0")
        a("v_lshlrev_b32 v18, 2, v15")
        a("v_add_u32 v18, s23, v18")
        lp=a.newlabel("cd_poll"); ld=a.newlabel("cd_ok")
        a("s_cmp_lg_u32 s22, 0")
        a(f"s_cbranch_scc1 {ld}")
        a.label(lp)
        a("buffer_load_dword v19, v18, s[52:55], 0 offen sc1")
        a("s_waitcnt vmcnt(0)")
        a("v_cmp_ne_u32 vcc, 0, v19")
        a("s_nop 3")
        a("s_and_b32 s23, vcc_lo, 0x3fff")
        a("s_cmp_lg_u32 s23, 0")
        a(f"s_cbranch_scc1 {ld}")
        a("s_sleep 16")
        a(f"s_branch {lp}")
        a.label(ld)
    a("s_barrier")
    a("""
    v_and_b32 v10, 63, v0
    v_and_b32 v11, 31, v10
    v_lshrrev_b32 v12, 5, v10
    v_sub_u32 v13, 7, v11
    v_and_b32 v13, 7, v13
    """)
    a(f"v_mul_u32_u24 v13, {CS}, v13")
    a("v_lshl_add_u32 v13, v12, 4, v13")
    a("v_lshrrev_b32 v14, 3, v11")
    a("v_lshlrev_b32 v14, 4, v14")
    a("v_sub_u32 v13, v13, v14")
    a("v_add_u32 v13, 48, v13")
    a("v_add_u32 v13, v13, v8")
    a("v_mul_u32_u24 v14, 80, v11")
    a("v_lshl_add_u32 v14, v12, 4, v14")
    a(f"v_add_u32 v14, {KC_SZ}, v14")
    a("v_add_u32 v14, v14, v8")
    ACC0=64; ACC1=80
    for i in range(32): a(f"v_mov_b32 v{64+i}, 0")
    a("v_lshrrev_b32 v15, 6, v0")
    a("v_and_b32 v15, 1, v15")
    a("s_nop 0")
    a("v_readfirstlane_b32 s25, v15")
    a("s_nop 3")
    a("s_mul_i32 s26, s25, 1024")
    a("s_mul_i32 s27, s25, 1280")
    a("v_subrev_u32 v18, s26, v13")
    a("v_subrev_u32 v19, s27, v14")
    def issue(u):
        base=96+32*(u%2)
        for q in range(2):
            a(f"ds_read_b128 v[{base+4*q}:{base+4*q+3}], v18 offset:{64*(63-u)+32*q}")
            a(f"ds_read_b128 v[{base+16+4*q}:{base+16+4*q+3}], v19 offset:{80*(31-u)+32*q}")
        for q in range(2):
            a(f"ds_read_b128 v[{base+8+4*q}:{base+8+4*q+3}], v18 offset:{64*(31-u)+32*q}")
            a(f"ds_read_b128 v[{base+24+4*q}:{base+24+4*q+3}], v19 offset:{80*(63-u)+32*q}")
    issue(0)
    for u in range(16):
        base=96+32*(u%2)
        if u+1<16:
            issue(u+1)
            a("s_waitcnt lgkmcnt(8)")
        else:
            a("s_waitcnt lgkmcnt(0)")
        for q in range(2):
            A0=base+4*q; A1=base+8+4*q; B0=base+16+4*q; B1=base+24+4*q
            a(f"v_mfma_f32_32x32x16_bf16 v[{ACC0}:{ACC0+15}], v[{A0}:{A0+3}], v[{B0}:{B0+3}], v[{ACC0}:{ACC0+15}]")
            a(f"v_mfma_f32_32x32x16_bf16 v[{ACC1}:{ACC1+15}], v[{A1}:{A1+3}], v[{B0}:{B0+3}], v[{ACC1}:{ACC1+15}]")
            a(f"v_mfma_f32_32x32x16_bf16 v[{ACC1}:{ACC1+15}], v[{A0}:{A0+3}], v[{B1}:{B1+3}], v[{ACC1}:{ACC1+15}]")
    a("s_nop 15")
    a("s_barrier")
    a("v_lshl_add_u32 v15, v10, 4, v8")
    a("s_lshl_b32 s26, s25, 12")
    a("v_add_u32 v18, s26, v15")
    a("s_xor_b32 s26, s26, 4096")
    a("v_add_u32 v19, s26, v15")
    lB2=a.newlabel("cv_B2"); lJ2=a.newlabel("cv_J2")
    a("s_cmp_eq_u32 s25, 1")
    a(f"s_cbranch_scc1 {lB2}")
    for i2 in range(4): a(f"ds_write_b128 v18, v[{ACC1+4*i2}:{ACC1+4*i2+3}] offset:{i2*1024}")
    a(f"s_branch {lJ2}")
    a.label(lB2)
    for i2 in range(4): a(f"ds_write_b128 v18, v[{ACC0+4*i2}:{ACC0+4*i2+3}] offset:{i2*1024}")
    for i2 in range(16): a(f"v_mov_b32 v{ACC0+i2}, v{ACC1+i2}")
    a.label(lJ2)
    a("s_waitcnt lgkmcnt(0)")
    a("s_barrier")
    for i2 in range(4): a(f"ds_read_b128 v[{96+4*i2}:{96+4*i2+3}], v19 offset:{i2*1024}")
    a("s_waitcnt lgkmcnt(0)")
    for i2 in range(16): a(f"v_add_f32 v{ACC0+i2}, v{ACC0+i2}, v{96+i2}")
    a("v_lshlrev_b32 v16, 3, v12")
    a("v_sub_u32 v16, v14, v16")
    a("s_mul_i32 s26, s25, 2560")
    a("v_add_u32 v16, s26, v16")
    for rq in range(4): a(f"ds_read_b64 v[{96+2*rq}:{97+2*rq}], v16 offset:{80*31+16*rq}")
    a("v_lshlrev_b32 v17, 12, v3")
    a("v_lshl_add_u32 v17, v11, 6, v17")
    a("v_lshl_add_u32 v17, v12, 3, v17")
    a("s_lshl_b32 s26, s25, 11")
    a("v_add_u32 v17, s26, v17")
    a("s_waitcnt lgkmcnt(0)")
    for rq in range(4):
        for p in range(2):
            x=96+2*rq+p
            y0=ACC0+4*rq+2*p
            a(f"v_lshlrev_b32 v20, 16, v{x}")
            a(f"v_and_b32 v21, 0xffff0000, v{x}")
            a("v_mul_f32 v20, v20, v7")
            a("v_mul_f32 v21, v21, v7")
            a("v_cvt_pk_bf16_f32 v22, v20, v21")
            a(f"v_cvt_pk_bf16_f32 v23, v{y0}, v{y0+1}")
            a("v_lshlrev_b32 v20, 16, v22")
            a("v_and_b32 v21, 0xffff0000, v22")
            a("v_lshlrev_b32 v24, 16, v23")
            a("v_and_b32 v25, 0xffff0000, v23")
            a("v_add_f32 v20, v20, v24")
            a("v_add_f32 v21, v21, v25")
            a(f"v_cvt_pk_bf16_f32 v{26+2*(rq&1)+p}, v20, v21")
        a(f"buffer_store_dwordx2 v[{26+2*(rq&1)}:{27+2*(rq&1)}], v17, s[16:19], 0 offen offset:{16*rq} sc1")
    a("s_waitcnt vmcnt(0)")
    a("s_barrier")
    ws_srd(a, 52, CF_OFF, 4096)
    a("s_lshr_b32 s26, s3, 5")
    a("s_lshl_b32 s26, s26, 8")
    a("v_mov_b32 v20, s26")
    a("v_mov_b32 v21, 1")
    a("v_cmp_eq_u32 vcc, 0, v0")
    a("s_and_saveexec_b64 s[26:27], vcc")
    a("buffer_atomic_add v21, v20, s[52:55], 0 offen")
    a("s_mov_b64 exec, s[26:27]")
    rt_end(a,1)


def k12(name):
    a=Asm(); a.label(name)
    if RT: a("s_memrealtime s[90:91]")
    a(HEAD_A)
    a("s_cmp_ge_u32 s2, 480")
    a(f"s_cbranch_scc1 {name}_exit")
    a("s_cmp_ge_u32 s2, 256")
    a(f"s_cbranch_scc1 {name}_conv")
    a("""
    v_and_b32 v1, 63, v0
    v_lshrrev_b32 v2, 6, v0
    s_nop 0
    v_readfirstlane_b32 s22, v2
    s_nop 3
    """)
    claim_both(a)
    if RT: a("s_memrealtime s[56:57]")
    gemm1_4(a, f"{name}_exit")
    gemm2_4(a, f"{name}_exit")
    a.label(f"{name}_conv")
    a("s_sub_u32 s3, s2, 256")
    conv4(a)
    a.label(f"{name}_exit")
    a("s_endpgm")
    return a.text()

def kgen5(a):
    UP=528; WREG=16*UP; CHREG=4*WREG
    KD_OFF=12288
    a(f"s_setprio {os.environ.get('KGP','2')}")
    srd(a, 8, 66, 67, 448*512)
    srd(a, 12, 68, 69, 448*512)
    srd(a, 16, 70, 71, 448*512)
    srd(a, 20, 72, 73, 448*512)
    srd(a, 24, 74, 75, 448*2)
    ws_srd(a, 44, KR_OFF, KR_SZ)
    a("""
    v_mov_b32 v130, v0
    s_lshl_b32 s28, s3, 10
    v_lshlrev_b32 v1, 1, v0
    v_add_u32 v1, s28, v1
    s_lshl_b32 s29, s3, 2
    v_mov_b32 v10, s29
    buffer_load_ushort v4, v1, s[8:11], 0 offen
    buffer_load_ushort v5, v1, s[12:15], 0 offen
    buffer_load_ushort v6, v1, s[16:19], 0 offen
    buffer_load_ushort v7, v1, s[20:23], 0 offen
    buffer_load_ushort v8, v10, s[24:27], 0 offen
    buffer_load_ushort v131, v1, s[8:11], 0 offen offset:512
    buffer_load_ushort v132, v1, s[12:15], 0 offen offset:512
    buffer_load_ushort v133, v1, s[16:19], 0 offen offset:512
    buffer_load_ushort v134, v1, s[20:23], 0 offen offset:512
    buffer_load_ushort v135, v10, s[24:27], 0 offen offset:2
    v_mov_b32 v3, 0
    s_lshl_b32 s29, s3, 1
    v_mov_b32 v2, s29                  ; channel d
    s_mov_b32 s40, 0
    """)
    a("v_and_b32 v1, 63, v0")
    a("v_lshrrev_b32 v0, 6, v0")
    a(f"v_mul_u32_u24 v14, {WREG}, v0")
    a("v_lshrrev_b32 v10, 4, v1")
    a("v_and_b32 v15, 15, v1")
    a(f"v_mul_u32_u24 v15, {UP}, v15")
    a("v_lshl_add_u32 v15, v10, 4, v15")
    a("v_add_u32 v15, v15, v14")
    a("v_lshl_add_u32 v14, v1, 2, v14")
    a("s_waitcnt vmcnt(0)")
    lloop=a.newlabel("kg_loop")
    a.label(lloop)
    a("""
    v_lshlrev_b32 v4, 16, v4
    v_lshlrev_b32 v5, 16, v5
    v_lshlrev_b32 v6, 16, v6
    v_lshlrev_b32 v7, 16, v7
    v_lshlrev_b32 v8, 16, v8
    """)
    acc_exp(a, 9, 8, 10, 11)
    bf16r(a, 9, 9)
    acc_exp(a, 12, 4, 10, 11)
    bf16r(a, 12, 12)
    a("v_mul_f32 v12, v12, v9")
    a("v_mul_f32 v13, v5, v9")
    a("v_mul_f32 v6, v6, v9")
    a("v_mul_f32 v7, v7, v9")
    a("v_add_f32 v6, v6, v6")
    a("v_add_f32 v7, v7, v7")
    a(f"v_mul_f32 v12, {hex(f2u(-1.4426950408889634))}, v12")
    a(f"v_mul_f32 v13, {hex(f2u(0.15915494309189535))}, v13")
    T=16
    def direct(d,p):
        a(f"v_mul_f32 v{T}, {hex(f2u(float(p)))}, v12")
        a(f"v_mul_f32 v{T+1}, {hex(f2u(float(p)))}, v13")
        a(f"v_exp_f32 v{T}, v{T}")
        a(f"v_fract_f32 v{T+1}, v{T+1}")
        a(f"v_cos_f32 v{d}, v{T+1}")
        a(f"v_sin_f32 v{d+1}, v{T+1}")
        a("s_nop 0")
        a(f"v_mul_f32 v{d}, v{d}, v{T}")
        a(f"v_mul_f32 v{d+1}, v{d+1}, v{T}")
    def split_write(src,row):
        a(f"v_cvt_pk_bf16_f32 v4, v{src}, v{src+1}")
        a("v_lshlrev_b32 v8, 16, v4")
        a("v_and_b32 v9, 0xffff0000, v4")
        a(f"v_pk_add_f32 v[8:9], v[{src}:{src+1}], v[8:9] neg_lo:[0,1] neg_hi:[0,1]")
        a("v_cvt_pk_bf16_f32 v5, v8, v9")
        a(f"v_add_u32 v10, {row*UP}, v14")
        a("ds_write2_b32 v10, v4, v5 offset0:0 offset1:64")
    BH=64; BL=80; AF=96; ACC=112
    V={1:20,2:22,4:24,8:26,3:28,5:30,6:32,7:34}
    direct(V[1],8); pk_cmul(a,V[2],V[1],V[1],T); pk_cmul(a,V[4],V[2],V[2],T); pk_cmul(a,V[8],V[4],V[4],T)
    pk_cmul(a,V[3],V[1],V[2],T); pk_cmul(a,V[5],V[4],V[1],T); pk_cmul(a,V[6],V[4],V[2],T); pk_cmul(a,V[7],V[4],V[3],T)
    a("v_mov_b32 v36, 1.0"); a("v_mov_b32 v37, 0")
    split_write(36,0)
    for j in range(1,9): split_write(V[j],j)
    for j in range(9,16):
        pk_cmul(a,36,V[8],V[j-8],T); split_write(36,j)
    a("s_waitcnt lgkmcnt(0)")
    for s in range(4):
        a(f"ds_read_b128 v[{BH+4*s}:{BH+4*s+3}], v15 offset:{64*s}")
        a(f"ds_read_b128 v[{BL+4*s}:{BL+4*s+3}], v15 offset:{256+64*s}")
    S={1:20,2:22,3:24,4:26,5:28,6:30,7:32}
    direct(S[1],1); pk_cmul(a,S[2],S[1],S[1],T); pk_cmul(a,S[4],S[2],S[2],T)
    pk_cmul(a,S[3],S[1],S[2],T); pk_cmul(a,S[5],S[1],S[4],T); pk_cmul(a,S[6],S[2],S[4],T); pk_cmul(a,S[7],S[3],S[4],T)
    G={1:48,2:50,4:52,8:54,16:56}
    direct(G[1],128)
    for m in (2,4,8,16): pk_cmul(a,G[m],G[m//2],G[m//2],T)
    W={0:6}
    for m in range(1,8): W[m]=32+2*m
    pk_cmul(a,W[1],6,G[1],T); pk_cmul(a,W[2],6,G[2],T); pk_cmul(a,W[3],W[1],G[2],T); pk_cmul(a,W[4],6,G[4],T)
    pk_cmul(a,W[5],W[1],G[4],T); pk_cmul(a,W[6],W[2],G[4],T); pk_cmul(a,W[7],W[3],G[4],T)
    for i in range(12): a(f"v_mov_b32 v{ACC+i}, 0")
    R=58
    rows={}
    rows[0]=[('ws',i//8,i%8) for i in range(16)]
    rows[1]=[('ws',2+i//4,2*(i%4)) for i in range(8)]+[('ws',4+i//2,4*(i%2)) for i in range(8)]
    rows[2]=[('wg',i,8) for i in range(8)]+[('wg',0,16)]+[None]*7
    for t in (2,1,0):
        a("s_waitcnt lgkmcnt(0)")
        for i,rw in enumerate(rows[t]):
            if rw is None:
                a(f"v_mov_b32 v{R}, 0"); a(f"v_mov_b32 v{R+1}, 0")
            elif rw[0]=='wg':
                pk_cmul(a,R,W[rw[1]],G[rw[2]],T,negim=True)
            elif rw[2]==0:
                a(f"v_mov_b32 v{R}, v{W[rw[1]]}")
                a(f"v_sub_f32 v{R+1}, 0, v{W[rw[1]]+1}")
            else:
                pk_cmul(a,R,W[rw[1]],S[rw[2]],T,negim=True)
            split_write(R,i)
        a("s_waitcnt lgkmcnt(0)")
        acc=ACC+4*t
        for s in range(4): a(f"ds_read_b128 v[{AF+4*s}:{AF+4*s+3}], v15 offset:{64*s}")
        for s in range(4):
            a(f"s_waitcnt lgkmcnt({3-s})")
            a(f"v_mfma_f32_16x16x32_bf16 v[{acc}:{acc+3}], v[{AF+4*s}:{AF+4*s+3}], v[{BH+4*s}:{BH+4*s+3}], v[{acc}:{acc+3}]")
            a(f"v_mfma_f32_16x16x32_bf16 v[{acc}:{acc+3}], v[{AF+4*s}:{AF+4*s+3}], v[{BL+4*s}:{BL+4*s+3}], v[{acc}:{acc+3}]")
        for s in range(4): a(f"ds_read_b128 v[{AF+4*s}:{AF+4*s+3}], v15 offset:{256+64*s}")
        for s in range(4):
            a(f"s_waitcnt lgkmcnt({3-s})")
            a(f"v_mfma_f32_16x16x32_bf16 v[{acc}:{acc+3}], v[{AF+4*s}:{AF+4*s+3}], v[{BH+4*s}:{BH+4*s+3}], v[{acc}:{acc+3}]")
    a("s_nop 15")
    a("s_barrier")
    a(f"v_mul_u32_u24 v16, {CHREG}, v3")
    a("v_and_b32 v17, 3, v0")
    a("v_mul_u32_u24 v18, 3072, v17")
    a("v_add_u32 v18, v18, v16")
    a("v_lshl_add_u32 v18, v1, 4, v18")
    for t in range(3):
        a(f"ds_write_b128 v18, v[{ACC+4*t}:{ACC+4*t+3}] offset:{t*1024}")
    a("s_waitcnt lgkmcnt(0)")
    a("s_barrier")
    skip=a.newlabel("kg_skip")
    a("v_readfirstlane_b32 s28, v17")
    a("s_nop 3")
    a("s_cmp_ge_u32 s28, 3")
    a(f"s_cbranch_scc1 {skip}")
    a("v_lshlrev_b32 v18, 10, v17")
    a("v_add_u32 v18, v18, v16")
    a("v_lshl_add_u32 v18, v1, 4, v18")
    for w in range(4):
        a(f"ds_read_b128 v[{20+4*w}:{23+4*w}], v18 offset:{w*3072}")
    a("s_waitcnt lgkmcnt(0)")
    for r in range(4):
        a(f"v_add_f32 v{20+r}, v{20+r}, v{24+r}")
        a(f"v_add_f32 v{28+r}, v{28+r}, v{32+r}")
        a(f"v_add_f32 v{20+r}, v{20+r}, v{28+r}")
    a("v_lshrrev_b32 v4, 4, v1")
    a("v_and_b32 v5, 15, v1")
    a("v_lshlrev_b32 v5, 5, v5")
    a("v_add_u32 v5, v5, v16")
    t1=a.newlabel("kg_t1"); t2=a.newlabel("kg_t2"); done=a.newlabel("kg_td")
    a("s_cmp_eq_u32 s28, 1"); a(f"s_cbranch_scc1 {t1}")
    a("s_cmp_eq_u32 s28, 2"); a(f"s_cbranch_scc1 {t2}")
    a("v_lshrrev_b32 v6, 1, v4"); a("v_lshlrev_b32 v6, 7, v6"); a("v_and_b32 v7, 1, v4"); a("v_lshl_add_u32 v6, v7, 2, v6")
    a("v_lshl_add_u32 v6, v6, 2, v5")
    for r in range(4): a(f"ds_write_b32 v6, v{20+r} offset:{KD_OFF+4*r}")
    a(f"s_branch {done}")
    a.label(t1)
    a("v_lshlrev_b32 v6, 7, v4"); a("v_add_u32 v6, 256, v6")
    a("v_lshlrev_b32 v7, 8, v4")
    a("v_cmp_gt_u32 vcc, 2, v4")
    a("s_nop 1")
    for r in range(4):
        a(f"v_add_u32 v8, {2*r}, v6")
        a(f"v_add_u32 v9, {128*(r//2)+4*(r%2)}, v7")
        a("v_cndmask_b32 v8, v9, v8, vcc")
        a("v_lshl_add_u32 v8, v8, 2, v5")
        a(f"ds_write_b32 v8, v{20+r} offset:{KD_OFF}")
    a(f"s_branch {done}")
    a.label(t2)
    a("v_lshlrev_b32 v6, 9, v4"); a("v_add_u32 v6, 1024, v6")
    for r in range(4):
        a(f"v_add_u32 v8, {128*r}, v6")
        a("v_min_u32 v8, 2176, v8")
        a("v_lshl_add_u32 v8, v8, 2, v5")
        a(f"ds_write_b32 v8, v{20+r} offset:{KD_OFF}")
    a.label(done)
    a.label(skip)
    a("s_waitcnt lgkmcnt(0)")
    a("s_barrier")
    a("v_lshl_add_u32 v18, v17, 6, v1")
    a("v_lshlrev_b32 v19, 3, v18")
    a("v_sub_u32 v19, 2047, v19")
    for e in range(8):
        a(f"v_subrev_u32 v4, {e}, v19")
        a("v_cvt_f32_u32 v4, v4")
        a("v_cvt_pk_bf16_f32 v4, v4, v4")
        a("v_lshlrev_b32 v4, 16, v4")
        a("v_cvt_u32_f32 v4, v4")
        a("v_lshl_add_u32 v4, v4, 2, v16")
        a(f"ds_read_b32 v{20+e}, v4 offset:{KD_OFF}")
    a(f"v_mul_u32_u24 v5, {KRP}, v2")
    a("v_lshl_add_u32 v5, v18, 4, v5")
    a("s_waitcnt lgkmcnt(0)")
    for e in range(4):
        a(f"v_cvt_pk_bf16_f32 v{28+e}, v{20+2*e}, v{21+2*e}")
    a("buffer_store_dwordx4 v[28:31], v5, s[44:47], 0 offen")
    a("v_mov_b32 v32, 0"); a("v_mov_b32 v33, 0"); a("v_mov_b32 v34, 0"); a("v_mov_b32 v35, 0")
    a("v_cmp_gt_u32 vcc, 8, v18")
    a("s_and_saveexec_b64 s[48:49], vcc")
    skipz=a.newlabel("kg_z")
    a(f"s_cbranch_execz {skipz}")
    a("s_mov_b32 s28, 4096")
    a("buffer_store_dwordx4 v[32:35], v5, s[44:47], s28 offen")
    a.label(skipz)
    a("s_mov_b64 exec, -1")
    ldone=a.newlabel("kg_done")
    a("s_cmp_eq_u32 s40, 1")
    a(f"s_cbranch_scc1 {ldone}")
    a("s_mov_b32 s40, 1")
    a("v_add_u32 v2, 1, v2")
    for i in range(5): a(f"v_mov_b32 v{4+i}, v{131+i}")
    a("s_barrier")
    a(f"s_branch {lloop}")
    a.label(ldone)
    a("v_mov_b32 v0, v130")
    a("s_waitcnt vmcnt(0)")
    a("s_barrier")
    if RT: a("s_memrealtime s[56:57]")


def k0b(name):
    a=Asm(); a.label(name)
    if RT: a("s_memrealtime s[90:91]")
    a(HEAD_A)
    a("s_cmp_ge_u32 s2, 32")
    a(f"s_cbranch_scc1 {name}_pf")
    a("s_mov_b32 s3, s2")
    lz=a.newlabel("k0_z")
    a("s_cmp_lg_u32 s3, 0")
    a(f"s_cbranch_scc1 {lz}")
    ws_srd(a, 52, CNT_OFF, 24576)
    a("v_lshlrev_b32 v4, 4, v0")
    a("v_mov_b32 v8, 0\nv_mov_b32 v9, 0\nv_mov_b32 v10, 0\nv_mov_b32 v11, 0")
    a("buffer_store_dwordx4 v[8:11], v4, s[52:55], 0 offen")
    a("s_mov_b32 s26, 8192")
    a("buffer_store_dwordx4 v[8:11], v4, s[52:55], s26 offen")
    a("s_mov_b32 s26, 16384")
    a("buffer_store_dwordx4 v[8:11], v4, s[52:55], s26 offen")
    a.label(lz)
    ln3(a)
    a.label(f"{name}_pf")
    a("s_cmp_ge_u32 s2, 88")
    a(f"s_cbranch_scc1 {name}_exit")
    a("s_sub_u32 s3, s2, 32")
    a("s_cmp_ge_u32 s3, 28")
    a("s_cselect_b32 s48, s82, s80")
    a("s_cselect_b32 s49, s83, s81")
    a(f"s_mov_b32 s50, {448*3584}")
    a("s_mov_b32 s51, 0x00020000")
    a("s_cselect_b32 s23, 28, 0")
    a("s_sub_u32 s3, s3, s23")
    a("s_mul_i32 s23, s3, 57344")
    a("v_lshlrev_b32 v4, 4, v0")
    for i in range(7):
        a(f"buffer_load_dwordx4 v[8:11], v4, s[48:51], s23 offen")
        if i<6: a("s_add_u32 s23, s23, 8192")
    a("s_waitcnt vmcnt(0)")
    a.label(f"{name}_exit")
    a("s_endpgm")
    return a.text()

def k1b(name):
    a=Asm(); a.label(name)
    if RT: a("s_memrealtime s[90:91]")
    a(HEAD_A)
    a("s_cmp_ge_u32 s2, 480")
    a(f"s_cbranch_scc1 {name}_exit")
    a("s_cmp_ge_u32 s2, 256")
    a(f"s_cbranch_scc1 {name}_conv")
    a("""
    v_and_b32 v1, 63, v0
    v_lshrrev_b32 v2, 6, v0
    s_nop 0
    v_readfirstlane_b32 s22, v2
    s_nop 3
    """)
    claim_both(a)
    gemm1_4(a, f"{name}_g2")
    a.label(f"{name}_g2")
    gemm2_4(a, f"{name}_exit")
    a.label(f"{name}_conv")
    a("s_sub_u32 s3, s2, 256")
    kgen5(a)
    conv4(a)
    a.label(f"{name}_exit")
    a("s_endpgm")
    return a.text()

def conv5(a):
    ws_srd(a, 8, KR_OFF, KR_SZ)
    ws_srd(a, 12, XNT_OFF, XN_SZ)
    ws_srd(a, 16, ST_OFF, XN_SZ)
    srd(a, 20, 76, 77, 448*2)
    a("""
    v_lshrrev_b32 v1, 7, v0            ; chsel
    v_and_b32 v2, 127, v0              ; tau
    s_lshl_b32 s24, s3, 1
    v_add_u32 v3, s24, v1              ; channel d
    """)
    a(f"v_mul_u32_u24 v4, {KRP}, v3")
    a("v_lshl_add_u32 v4, v2, 4, v4")
    a("v_lshlrev_b32 v5, 12, v3")
    a("v_lshl_add_u32 v5, v2, 4, v5")
    a("v_lshlrev_b32 v6, 1, v3")
    a("buffer_load_dwordx4 v[16:19], v4, s[8:11], 0 offen")
    a("buffer_load_dwordx4 v[20:23], v4, s[8:11], 0 offen offset:16")
    a("buffer_load_dwordx4 v[24:27], v4, s[8:11], 0 offen offset:2048")
    a("buffer_load_dwordx4 v[28:31], v4, s[8:11], 0 offen offset:2064")
    a("buffer_load_dwordx4 v[32:35], v5, s[12:15], 0 offen")
    a("buffer_load_dwordx4 v[36:39], v5, s[12:15], 0 offen offset:2048")
    a("buffer_load_ushort v7, v6, s[20:23], 0 offen")
    a(f"v_mul_u32_u24 v8, {CH_SZ}, v1")
    a("v_lshl_add_u32 v9, v2, 4, v8")
    a("v_mov_b32 v40, 0\nv_mov_b32 v41, 0\nv_mov_b32 v42, 0\nv_mov_b32 v43, 0")
    a(f"ds_write_b128 v9, v[40:43] offset:{KC_SZ}")
    a("v_cmp_gt_u32 vcc, 27, v2")
    a("s_and_saveexec_b64 s[26:27], vcc")
    a(f"ds_write_b128 v9, v[40:43] offset:{KC_SZ+2048}")
    a("s_mov_b64 exec, s[26:27]")
    a("v_lshrrev_b32 v10, 2, v2")
    a(f"v_mul_u32_u24 v10, {CS}, v10")
    a("v_and_b32 v11, 3, v2")
    a("v_lshl_add_u32 v10, v11, 4, v10")
    a("v_add_u32 v10, v10, v8")
    a("v_cmp_gt_u32 vcc, 32, v2")
    a("s_and_saveexec_b64 s[26:27], vcc")
    a("ds_write_b128 v10, v[40:43] offset:4096")
    a("s_mov_b64 exec, s[26:27]")
    a("v_lshrrev_b32 v10, 2, v2")
    a("v_mul_u32_u24 v10, 80, v10")
    a("v_lshl_add_u32 v10, v11, 4, v10")
    a("v_add_u32 v10, v10, v8")
    a("s_waitcnt vmcnt(0)")
    a(f"ds_write_b128 v10, v[32:35] offset:{KC_SZ+31*80}")
    a(f"ds_write_b128 v10, v[36:39] offset:{KC_SZ+31*80+32*80}")
    for half in range(2):
        D=16+8*half
        E=44; D1=52; E1=60
        for k in range(7): a(f"v_alignbit_b32 v{E+k}, v{D+k+1}, v{D+k}, 16")
        for k in range(6): a(f"v_mov_b32 v{D1+k}, v{D+k+1}")
        for k in range(6): a(f"v_alignbit_b32 v{E1+k}, v{D+k+2}, v{D+k+1}, 16")
        src={0:D,4:D+2,2:D1,6:D1+2,1:E,5:E+2,3:E1,7:E1+2}
        for c in range(8):
            a(f"ds_write_b128 v9, v[{src[c]}:{src[c]+3}] offset:{c*CS+half*2048}")
    a("v_lshlrev_b32 v7, 16, v7")
    a("s_waitcnt lgkmcnt(0)")
    a("s_barrier")
    a("""
    v_and_b32 v10, 63, v0
    v_and_b32 v11, 31, v10
    v_lshrrev_b32 v12, 5, v10
    v_sub_u32 v13, 7, v11
    v_and_b32 v13, 7, v13
    """)
    a(f"v_mul_u32_u24 v13, {CS}, v13")
    a("v_lshl_add_u32 v13, v12, 4, v13")
    a("v_lshrrev_b32 v14, 3, v11")
    a("v_lshlrev_b32 v14, 4, v14")
    a("v_sub_u32 v13, v13, v14")
    a("v_add_u32 v13, 48, v13")
    a("v_add_u32 v13, v13, v8")
    a("v_mul_u32_u24 v14, 80, v11")
    a("v_lshl_add_u32 v14, v12, 4, v14")
    a(f"v_add_u32 v14, {KC_SZ}, v14")
    a("v_add_u32 v14, v14, v8")
    ACC0=64; ACC1=80
    for i in range(32): a(f"v_mov_b32 v{64+i}, 0")
    a("v_lshrrev_b32 v15, 6, v0")
    a("v_and_b32 v15, 1, v15")
    a("s_nop 0")
    a("v_readfirstlane_b32 s25, v15")
    lB=a.newlabel("cv_B"); lJ=a.newlabel("cv_J")
    a("s_nop 3")
    a("s_cmp_eq_u32 s25, 1")
    a(f"s_cbranch_scc1 {lB}")
    def mainloop(units):
        NS=3
        def issue(u):
            delta,hs=units[u]; base=96+24*(u%NS); n=0
            for q in range(2):
                a(f"ds_read_b128 v[{base+4*q}:{base+4*q+3}], v13 offset:{64*(63-delta)+32*q}"); n+=1
            for hi,h in enumerate(hs):
                for q in range(2):
                    r=base+8+8*hi+4*q
                    a(f"ds_read_b128 v[{r}:{r+3}], v14 offset:{80*(31+32*h-delta)+32*q}"); n+=1
            return n
        cnt=[]
        for u in range(min(NS-1,len(units))): cnt.append(issue(u))
        for u in range(len(units)):
            if u+NS-1<len(units): cnt.append(issue(u+NS-1))
            rem=sum(cnt[u+1:])
            a(f"s_waitcnt lgkmcnt({min(rem,15)})")
            delta,hs=units[u]; base=96+24*(u%NS)
            for q in range(2):
                for hi,h in enumerate(hs):
                    acc=ACC0 if h==0 else ACC1
                    r=base+8+8*hi+4*q
                    a(f"v_mfma_f32_32x32x16_bf16 v[{acc}:{acc+15}], v[{base+4*q}:{base+4*q+3}], v[{r}:{r+3}], v[{acc}:{acc+15}]")
    mainloop([(d,[0,1]) for d in range(16)]+[(d,[0]) for d in range(16,32)])
    a(f"s_branch {lJ}")
    a.label(lB)
    mainloop([(d,[1]) for d in range(16,64)])
    a.label(lJ)
    a("s_nop 15")
    a("s_barrier")
    a("v_lshl_add_u32 v15, v10, 4, v8")
    lB2=a.newlabel("cv_B2"); lJ2=a.newlabel("cv_J2")
    a("s_cmp_eq_u32 s25, 1")
    a(f"s_cbranch_scc1 {lB2}")
    for i in range(4): a(f"ds_write_b128 v15, v[{ACC1+4*i}:{ACC1+4*i+3}] offset:{i*1024}")
    a("s_waitcnt lgkmcnt(0)")
    a.label(lB2)
    a("s_barrier")
    a("s_cmp_eq_u32 s25, 0")
    a(f"s_cbranch_scc1 {lJ2}")
    for i in range(4): a(f"ds_read_b128 v[{96+4*i}:{96+4*i+3}], v15 offset:{i*1024}")
    a("s_waitcnt lgkmcnt(0)")
    for i in range(16): a(f"v_add_f32 v{ACC0+i}, v{ACC1+i}, v{96+i}")
    a.label(lJ2)
    a("v_lshlrev_b32 v16, 3, v12")
    a("v_sub_u32 v16, v14, v16")
    a("s_mul_i32 s26, s25, 2560")
    a("v_add_u32 v16, s26, v16")
    for rq in range(4): a(f"ds_read_b64 v[{96+2*rq}:{97+2*rq}], v16 offset:{80*31+16*rq}")
    a("v_lshlrev_b32 v17, 12, v3")
    a("v_lshl_add_u32 v17, v11, 6, v17")
    a("v_lshl_add_u32 v17, v12, 3, v17")
    a("s_lshl_b32 s26, s25, 11")
    a("v_add_u32 v17, s26, v17")
    a("s_waitcnt lgkmcnt(0)")
    for rq in range(4):
        for p in range(2):
            x=96+2*rq+p
            y0=ACC0+4*rq+2*p
            a(f"v_lshlrev_b32 v20, 16, v{x}")
            a(f"v_and_b32 v21, 0xffff0000, v{x}")
            a("v_mul_f32 v20, v20, v7")
            a("v_mul_f32 v21, v21, v7")
            a("v_cvt_pk_bf16_f32 v22, v20, v21")
            a(f"v_cvt_pk_bf16_f32 v23, v{y0}, v{y0+1}")
            a("v_lshlrev_b32 v20, 16, v22")
            a("v_and_b32 v21, 0xffff0000, v22")
            a("v_lshlrev_b32 v24, 16, v23")
            a("v_and_b32 v25, 0xffff0000, v23")
            a("v_add_f32 v20, v20, v24")
            a("v_add_f32 v21, v21, v25")
            a(f"v_cvt_pk_bf16_f32 v{26+2*(rq&1)+p}, v20, v21")
        a(f"buffer_store_dwordx2 v[{26+2*(rq&1)}:{27+2*(rq&1)}], v17, s[16:19], 0 offen offset:{16*rq} sc1")
    a("s_waitcnt vmcnt(0)")
    a("s_barrier")
    ws_srd(a, 52, CF_OFF, 4096)
    a("s_lshr_b32 s26, s3, 5")
    a("s_lshl_b32 s26, s26, 8")
    a("v_mov_b32 v20, s26")
    a("v_mov_b32 v21, 1")
    a("v_cmp_eq_u32 vcc, 0, v0")
    a("s_and_saveexec_b64 s[26:27], vcc")
    a("buffer_atomic_add v21, v20, s[52:55], 0 offen")
    a("s_mov_b64 exec, s[26:27]")
    a.vm_clear()


def k12s(name):
    a=Asm(); a.label(name)
    if RT: a("s_memrealtime s[90:91]")
    a(HEAD_A)
    a("s_cmp_ge_u32 s2, 256")
    a(f"s_cbranch_scc1 {name}_exit")
    a("""
    v_and_b32 v1, 63, v0
    v_lshrrev_b32 v2, 6, v0
    s_nop 0
    v_readfirstlane_b32 s22, v2
    s_nop 3
    """)
    claim_both(a)
    gemm1_4(a, f"{name}_exit")
    a("s_lshr_b32 s3, s88, 8")
    a("s_mul_i32 s3, s3, 28")
    a("s_and_b32 s26, s88, 0xff")
    a("s_add_u32 s3, s3, s26")
    conv5(a)
    a("""
    v_and_b32 v1, 63, v0
    v_lshrrev_b32 v2, 6, v0
    s_nop 0
    v_readfirstlane_b32 s22, v2
    s_nop 3
    s_barrier
    """)
    gemm2_4(a, f"{name}_exit")
    a.label(f"{name}_exit")
    a("s_endpgm")
    return a.text()
```

```python
from asm import *
import ka as KA, kb as KB
from ka import *
from kb import CS,KC_SZ,XB_SZ,CH_SZ,RP

HEAD_A="""
    s_load_dwordx16 s[64:79], s[0:1], 0
    s_load_dwordx8 s[80:87], s[0:1], 64
    s_load_dwordx2 s[6:7], s[0:1], 96
    s_waitcnt lgkmcnt(0)
    s_mov_b32 s4, s64
    s_mov_b32 s5, s65
"""

CNT_OFF=0x1200000
def claim3(a, kern, exit_label, wave_sgpr):
    ws_srd(a, 52, CNT_OFF+kern*4096, 4096)
    a("s_getreg_b32 s27, hwreg(HW_REG_XCC_ID)")
    a("s_and_b32 s27, s27, 7")
    lskip=a.newlabel("cl_skip"); lp=a.newlabel("cl_loop"); ld=a.newlabel("cl_done"); lnx=a.newlabel("cl_nx"); lno=a.newlabel("cl_no")
    a(f"s_cmp_lg_u32 s{wave_sgpr}, 0")
    a(f"s_cbranch_scc1 {lskip}")
    a("s_mov_b64 s[30:31], exec")
    a("s_mov_b64 exec, 1")
    a("s_lshl_b32 s26, s27, 8")
    a("v_mov_b32 v4, s26")
    a("v_mov_b32 v5, 1")
    a("buffer_atomic_add v5, v4, s[52:55], 0 offen sc0")
    a("s_waitcnt vmcnt(0)")
    a("v_readfirstlane_b32 s26, v5")
    a("s_nop 3")
    a("s_cmp_lt_u32 s26, 28")
    a(f"s_cbranch_scc1 {ld}")
    a("s_mov_b64 exec, 0xff")
    a("v_lshlrev_b32 v4, 8, v0")
    a("buffer_load_dword v6, v4, s[52:55], 0 offen sc1")
    a("s_waitcnt vmcnt(0)")
    a("v_cmp_gt_u32 vcc, 28, v6")
    a("s_mov_b64 exec, 1")
    a("s_nop 3")
    a("s_mov_b32 s28, vcc_lo")
    a.label(lp)
    a("s_cmp_eq_u32 s28, 0")
    a(f"s_cbranch_scc1 {lno}")
    a("s_ff1_i32_b32 s27, s28")
    a("s_bitset0_b32 s28, s27")
    a("s_lshl_b32 s26, s27, 8")
    a("v_mov_b32 v4, s26")
    a("v_mov_b32 v5, 1")
    a("buffer_atomic_add v5, v4, s[52:55], 0 offen sc0")
    a("s_waitcnt vmcnt(0)")
    a("v_readfirstlane_b32 s26, v5")
    a("s_nop 3")
    a("s_cmp_lt_u32 s26, 28")
    a(f"s_cbranch_scc1 {ld}")
    a(f"s_branch {lp}")
    a.label(lno)
    a("s_mov_b32 s26, 0xff")
    a.label(ld)
    a("s_lshl_b32 s28, s27, 8")
    a("s_or_b32 s26, s26, s28")
    a("v_mov_b32 v4, 0")
    a("v_mov_b32 v5, s26")
    a("ds_write_b32 v4, v5")
    a("s_waitcnt lgkmcnt(0)")
    a("s_mov_b64 exec, s[30:31]")
    a.label(lskip)
    a("s_barrier")
    a("v_mov_b32 v4, 0")
    a("ds_read_b32 v5, v4")
    a("s_waitcnt lgkmcnt(0)")
    a("v_readfirstlane_b32 s26, v5")
    a("s_barrier")
    a("s_lshr_b32 s27, s26, 8")
    a("s_and_b32 s26, s26, 0xff")
    a("s_cmp_eq_u32 s26, 0xff")
    a(f"s_cbranch_scc1 {exit_label}")

def gemm1_256(a, exit_label):
    NST=14; NSL=10; NP=28
    a(f"s_setprio {os.environ.get('G1P','0')}")
    ws_srd(a, 8, XN_OFF, XN_SZ)
    ws_srd(a, 16, H_OFF, H_SZ)
    srd(a, 12, 80, 81, 448*3584)
    srd(a, 44, 86, 87, 256)
    a("""
    v_and_b32 v1, 63, v0
    v_lshrrev_b32 v2, 6, v0
    s_nop 0
    v_readfirstlane_b32 s22, v2
    s_nop 3
    """)
    claim3(a, 0, exit_label, 22)
    if RT: a("s_memrealtime s[56:57]")
    a("s_cmp_ge_u32 s26, 14")
    a("s_cselect_b32 s20, 1, 0")
    a("s_mul_i32 s21, s20, 14")
    a("s_sub_u32 s21, s26, s21")
    a("s_lshl_b32 s27, s27, 1")
    a("s_add_u32 s20, s20, s27")
    a("s_mov_b32 s29, s26")
    a("""
    v_lshrrev_b32 v3, 3, v1
    v_lshl_add_u32 v3, v2, 4, v3
    s_lshl_b32 s23, s20, 7
    v_add_u32 v3, s23, v3
    v_mul_u32_u24 v3, 896, v3
    v_and_b32 v4, 7, v1
    v_lshrrev_b32 v5, 4, v1
    v_xor_b32 v4, v4, v5
    v_lshl_add_u32 v3, v4, 4, v3       ; voffA i=0
    v_xor_b32 v4, 64, v3               ; voffA i=1  (896 = 7*128)
    v_bfe_u32 v6, v1, 4, 2
    v_lshrrev_b32 v5, 4, v1
    v_lshl_add_u32 v5, v2, 3, v5       ; krow = 8w + l/16 (+4i)
    v_mul_u32_u24 v5, 3584, v5
    v_bfe_u32 v7, v1, 2, 2
    v_xor_b32 v6, v6, v7
    v_and_b32 v7, 3, v1
    v_lshl_add_u32 v6, v6, 2, v7
    v_lshl_add_u32 v5, v6, 4, v5
    s_lshl_b32 s23, s21, 8
    v_add_u32 v5, s23, v5              ; voffB
    s_lshl_b32 s24, s22, 11
    """)
    a("s_mul_hi_u32 s30, s29, 0x24924925")
    a("s_mul_i32 s30, s30, 7")
    a("s_sub_u32 s31, s29, s30")
    for k in range(7):
        a(f"s_lshl_b32 s{32+k}, s31, 7")
        a("s_add_u32 s31, s31, 1")
        a("s_cmp_eq_u32 s31, 7")
        a("s_cselect_b32 s31, 0, s31")
    def issue(p):
        c=p//4; k=p%4; sl=p%NSL
        if k not in (1,2): a(f"s_mul_i32 s30, s{32+c}, 1792")
        for i in range(2):
            a(f"s_add_u32 m0, s24, {sl*8192+i*1024}")
            if k in (1,2):
                a(f"s_add_u32 s25, s{32+c}, {(k-1)*64*896+i*8*896}")
                a(f"buffer_load_dwordx4 v{3+i}, s[8:11], s25 offen lds")
            else:
                a(f"s_add_u32 s25, s30, {(32*3584 if k==3 else 0)+i*4*3584}")
                a(f"buffer_load_dwordx4 v5, s[12:15], s25 offen lds")
            a.vm_issue(p)
    for p in range(NSL): issue(p)
    a("""
    v_and_b32 v8, 31, v1               ; m / n
    v_lshrrev_b32 v9, 5, v1            ; g
    v_lshrrev_b32 v10, 1, v2           ; wr
    v_and_b32 v11, 1, v2               ; wc
    s_lshr_b32 s28, s22, 1
    v_lshlrev_b32 v12, 7, v8
    v_bfe_u32 v13, v8, 1, 3
    v_xor_b32 v13, v13, v9
    v_lshl_add_u32 v12, v13, 4, v12
    v_bfe_u32 v14, v1, 2, 2            ; r
    v_lshl_add_u32 v15, v9, 3, v14
    v_lshlrev_b32 v15, 8, v15
    v_lshlrev_b32 v16, 1, v11
    v_xor_b32 v16, v16, v14
    v_lshl_add_u32 v15, v16, 6, v15
    v_bfe_u32 v16, v1, 4, 1
    v_lshl_add_u32 v15, v16, 5, v15
    v_and_b32 v16, 3, v1
    v_lshl_add_u32 v15, v16, 3, v15
    """)
    ACC=64
    for i in range(64): a(f"v_mov_b32 v{ACC+i}, 0")
    FAs=[32,128]; FBs=[48,144]
    def reads(s):
        c=s//2; h=s%2
        FA=FAs[s&1]; FB=FBs[s&1]
        pB=4*c+(3 if h else 0)
        sl0=((4*c+1)%NSL)*8192; sl1=((4*c+2)%NSL)*8192
        a(f"s_mov_b32 s26, {sl0}")
        a(f"s_mov_b32 s27, {sl1}")
        a("s_cmp_eq_u32 s28, 0")
        a("s_cselect_b32 s26, s26, s27")
        a(f"v_xor_b32 v17, {64*h}, v12")
        a("v_add_u32 v17, s26, v17")
        a("v_xor_b32 v18, 32, v17")
        a(f"v_add_u32 v19, {(pB%NSL)*8192}, v15")
        a("v_xor_b32 v20, 64, v19")
        for ks in range(2):
            for mt in range(2):
                r=FA+8*ks+4*mt
                a(f"ds_read_b128 v[{r}:{r+3}], v{17+ks} offset:{mt*4096}")
            for nt in range(2):
                for i in range(2):
                    r=FB+8*ks+4*nt+2*i
                    a(f"ds_read_b64_tr_b16 v[{r}:{r+1}], v{19+nt} offset:{(16*ks+4*i)*256}")
    def needs(s):
        c=s//2
        return [4*c+3] if s%2 else [4*c,4*c+1,4*c+2]
    def wait_stage(s):
        idx=[i for i,t in enumerate(a.vm) if t in needs(s)]
        if idx: a.vm_wait(a.vm[max(idx)])
    wait_stage(0)
    a("s_barrier")
    if RT: a("s_memrealtime s[58:59]")
    reads(0)
    st={'nxt':NSL}
    for s in range(NST):
        FA=FAs[s&1]; FB=FBs[s&1]
        if s+1<NST: wait_stage(s+1)
        a("s_waitcnt lgkmcnt(0)")
        a("s_barrier")
        nfree = 1 if s%2==0 else 3
        def fill():
            for _ in range(nfree):
                if st['nxt']<NP: issue(st['nxt']); st['nxt']+=1
            if s+1<NST: reads(s+1)
        def prim():
            for ks in range(2):
                for mt in range(2):
                    for nt in range(2):
                        acc=ACC+16*(2*mt+nt)
                        ra=FA+8*ks+4*mt; rb=FB+8*ks+4*nt
                        a(f"v_mfma_f32_32x32x16_bf16 v[{acc}:{acc+15}], v[{rb}:{rb+3}], v[{ra}:{ra+3}], v[{acc}:{acc+15}]")
        interleave(a, capture(a,prim), capture(a,fill))
    if RT: a("s_memrealtime s[60:61]")
    a("s_nop 15")
    a("s_barrier")
    HP=272
    a(f"v_lshl_add_u32 v20, v10, 6, v8")
    a(f"v_mul_u32_u24 v20, {HP}, v20")
    a("v_lshl_add_u32 v20, v11, 7, v20")
    a("v_lshl_add_u32 v20, v9, 3, v20")
    k=0
    for mt in range(2):
        for nt in range(2):
            acc=ACC+16*(2*mt+nt)
            for q in range(4):
                t=48+2*(k%4); k+=1
                for e in range(4): a(f"v_max_f32 v{acc+4*q+e}, 0, v{acc+4*q+e}")
                a(f"v_cvt_pk_bf16_f32 v{t}, v{acc+4*q}, v{acc+4*q+1}")
                a(f"v_cvt_pk_bf16_f32 v{t+1}, v{acc+4*q+2}, v{acc+4*q+3}")
                a(f"ds_write_b64 v20, v[{t}:{t+1}] offset:{mt*32*HP+nt*64+16*q}")
    a("s_waitcnt lgkmcnt(0)")
    a("s_barrier")
    a("v_lshrrev_b32 v21, 4, v0")
    a("v_and_b32 v22, 15, v0")
    a(f"v_mul_u32_u24 v23, {HP}, v21")
    a("v_lshl_add_u32 v23, v22, 4, v23")
    for j in range(8):
        a(f"ds_read_b128 v[{64+4*j}:{67+4*j}], v23 offset:{j*16*HP}")
    a("s_lshl_b32 s23, s20, 7")
    a("v_add_u32 v21, s23, v21")
    a("v_mul_u32_u24 v21, 3584, v21")
    a("v_lshl_add_u32 v21, v22, 4, v21")
    a("s_lshl_b32 s23, s21, 8")
    a("v_add_u32 v21, s23, v21")
    for j in range(8):
        a(f"s_mov_b32 s25, {j*16*3584}")
        a(f"s_waitcnt lgkmcnt({7-j})")
        a(f"buffer_store_dwordx4 v[{64+4*j}:{67+4*j}], v21, s[16:19], s25 offen")
    rt_end(a,1)

def conv3(a):
    a(f"s_setprio {os.environ.get('CVP','2')}")
    ws_srd(a, 8, KR_OFF, KR_SZ)
    ws_srd(a, 12, XNT_OFF, XN_SZ)
    ws_srd(a, 16, ST_OFF, XN_SZ)
    srd(a, 20, 76, 77, 448*2)
    a("""
    v_lshrrev_b32 v1, 7, v0            ; chsel
    v_and_b32 v2, 127, v0              ; tau
    s_lshl_b32 s24, s3, 1
    v_add_u32 v3, s24, v1              ; channel d
    """)
    a(f"v_mul_u32_u24 v4, {KRP}, v3")
    a("v_lshl_add_u32 v4, v2, 4, v4")
    a("v_lshlrev_b32 v5, 12, v3")
    a("v_lshl_add_u32 v5, v2, 4, v5")
    a("v_lshlrev_b32 v6, 1, v3")
    a("buffer_load_dwordx4 v[16:19], v4, s[8:11], 0 offen")
    a("buffer_load_dwordx4 v[20:23], v4, s[8:11], 0 offen offset:16")
    a("buffer_load_dwordx4 v[24:27], v4, s[8:11], 0 offen offset:2048")
    a("buffer_load_dwordx4 v[28:31], v4, s[8:11], 0 offen offset:2064")
    a("buffer_load_dwordx4 v[32:35], v5, s[12:15], 0 offen")
    a("buffer_load_dwordx4 v[36:39], v5, s[12:15], 0 offen offset:2048")
    a("buffer_load_ushort v7, v6, s[20:23], 0 offen")
    a(f"v_mul_u32_u24 v8, {CH_SZ}, v1")
    a("v_lshl_add_u32 v9, v2, 4, v8")
    a("v_mov_b32 v40, 0\nv_mov_b32 v41, 0\nv_mov_b32 v42, 0\nv_mov_b32 v43, 0")
    a(f"ds_write_b128 v9, v[40:43] offset:{KC_SZ}")
    a("v_cmp_gt_u32 vcc, 27, v2")
    a("s_and_saveexec_b64 s[26:27], vcc")
    a(f"ds_write_b128 v9, v[40:43] offset:{KC_SZ+2048}")
    a("s_mov_b64 exec, s[26:27]")
    a("v_lshrrev_b32 v10, 2, v2")
    a(f"v_mul_u32_u24 v10, {CS}, v10")
    a("v_and_b32 v11, 3, v2")
    a("v_lshl_add_u32 v10, v11, 4, v10")
    a("v_add_u32 v10, v10, v8")
    a("v_cmp_gt_u32 vcc, 32, v2")
    a("s_and_saveexec_b64 s[26:27], vcc")
    a("ds_write_b128 v10, v[40:43] offset:4096")
    a("s_mov_b64 exec, s[26:27]")
    a("v_lshrrev_b32 v10, 2, v2")
    a("v_mul_u32_u24 v10, 80, v10")
    a("v_lshl_add_u32 v10, v11, 4, v10")
    a("v_add_u32 v10, v10, v8")
    a("s_waitcnt vmcnt(0)")
    a(f"ds_write_b128 v10, v[32:35] offset:{KC_SZ+31*80}")
    a(f"ds_write_b128 v10, v[36:39] offset:{KC_SZ+31*80+32*80}")
    for half in range(2):
        D=16+8*half
        E=44; D1=52; E1=60
        for k in range(7): a(f"v_alignbit_b32 v{E+k}, v{D+k+1}, v{D+k}, 16")
        for k in range(6): a(f"v_mov_b32 v{D1+k}, v{D+k+1}")
        for k in range(6): a(f"v_alignbit_b32 v{E1+k}, v{D+k+2}, v{D+k+1}, 16")
        src={0:D,4:D+2,2:D1,6:D1+2,1:E,5:E+2,3:E1,7:E1+2}
        for c in range(8):
            a(f"ds_write_b128 v9, v[{src[c]}:{src[c]+3}] offset:{c*CS+half*2048}")
    a("v_lshlrev_b32 v7, 16, v7")
    a("s_waitcnt lgkmcnt(0)")
    a("s_barrier")
    a("""
    v_and_b32 v10, 63, v0
    v_and_b32 v11, 31, v10
    v_lshrrev_b32 v12, 5, v10
    v_sub_u32 v13, 7, v11
    v_and_b32 v13, 7, v13
    """)
    a(f"v_mul_u32_u24 v13, {CS}, v13")
    a("v_lshl_add_u32 v13, v12, 4, v13")
    a("v_lshrrev_b32 v14, 3, v11")
    a("v_lshlrev_b32 v14, 4, v14")
    a("v_sub_u32 v13, v13, v14")
    a("v_add_u32 v13, 48, v13")
    a("v_add_u32 v13, v13, v8")
    a("v_mul_u32_u24 v14, 80, v11")
    a("v_lshl_add_u32 v14, v12, 4, v14")
    a(f"v_add_u32 v14, {KC_SZ}, v14")
    a("v_add_u32 v14, v14, v8")
    ACC0=64; ACC1=80
    for i in range(32): a(f"v_mov_b32 v{64+i}, 0")
    a("v_lshrrev_b32 v15, 6, v0")
    a("v_and_b32 v15, 1, v15")
    a("s_nop 0")
    a("v_readfirstlane_b32 s25, v15")
    lB=a.newlabel("cv_B"); lJ=a.newlabel("cv_J")
    a("s_nop 3")
    a("s_cmp_eq_u32 s25, 1")
    a(f"s_cbranch_scc1 {lB}")
    def mainloop(units):
        NS=3
        def issue(u):
            delta,hs=units[u]; base=96+24*(u%NS); n=0
            for q in range(2):
                a(f"ds_read_b128 v[{base+4*q}:{base+4*q+3}], v13 offset:{64*(63-delta)+32*q}"); n+=1
            for hi,h in enumerate(hs):
                for q in range(2):
                    r=base+8+8*hi+4*q
                    a(f"ds_read_b128 v[{r}:{r+3}], v14 offset:{80*(31+32*h-delta)+32*q}"); n+=1
            return n
        cnt=[]
        for u in range(min(NS-1,len(units))): cnt.append(issue(u))
        for u in range(len(units)):
            if u+NS-1<len(units): cnt.append(issue(u+NS-1))
            rem=sum(cnt[u+1:])
            a(f"s_waitcnt lgkmcnt({min(rem,15)})")
            delta,hs=units[u]; base=96+24*(u%NS)
            for q in range(2):
                for hi,h in enumerate(hs):
                    acc=ACC0 if h==0 else ACC1
                    r=base+8+8*hi+4*q
                    a(f"v_mfma_f32_32x32x16_bf16 v[{acc}:{acc+15}], v[{base+4*q}:{base+4*q+3}], v[{r}:{r+3}], v[{acc}:{acc+15}]")
    mainloop([(d,[0,1]) for d in range(16)]+[(d,[0]) for d in range(16,32)])
    a(f"s_branch {lJ}")
    a.label(lB)
    mainloop([(d,[1]) for d in range(16,64)])
    a.label(lJ)
    a("s_nop 15")
    a("s_barrier")
    a("v_lshl_add_u32 v15, v10, 4, v8")
    lB2=a.newlabel("cv_B2"); lJ2=a.newlabel("cv_J2")
    a("s_cmp_eq_u32 s25, 1")
    a(f"s_cbranch_scc1 {lB2}")
    for i in range(4): a(f"ds_write_b128 v15, v[{ACC1+4*i}:{ACC1+4*i+3}] offset:{i*1024}")
    a("s_waitcnt lgkmcnt(0)")
    a.label(lB2)
    a("s_barrier")
    a("s_cmp_eq_u32 s25, 0")
    a(f"s_cbranch_scc1 {lJ2}")
    for i in range(4): a(f"ds_read_b128 v[{96+4*i}:{96+4*i+3}], v15 offset:{i*1024}")
    a("s_waitcnt lgkmcnt(0)")
    for i in range(16): a(f"v_add_f32 v{ACC0+i}, v{ACC1+i}, v{96+i}")
    a.label(lJ2)
    a("v_lshlrev_b32 v16, 3, v12")
    a("v_sub_u32 v16, v14, v16")
    a("s_mul_i32 s26, s25, 2560")
    a("v_add_u32 v16, s26, v16")
    for rq in range(4): a(f"ds_read_b64 v[{96+2*rq}:{97+2*rq}], v16 offset:{80*31+16*rq}")
    a("v_lshlrev_b32 v17, 12, v3")
    a("v_lshl_add_u32 v17, v11, 6, v17")
    a("v_lshl_add_u32 v17, v12, 3, v17")
    a("s_lshl_b32 s26, s25, 11")
    a("v_add_u32 v17, s26, v17")
    a("s_waitcnt lgkmcnt(0)")
    for rq in range(4):
        for p in range(2):
            x=96+2*rq+p
            y0=ACC0+4*rq+2*p
            a(f"v_lshlrev_b32 v20, 16, v{x}")
            a(f"v_and_b32 v21, 0xffff0000, v{x}")
            a("v_mul_f32 v20, v20, v7")
            a("v_mul_f32 v21, v21, v7")
            a("v_cvt_pk_bf16_f32 v22, v20, v21")
            a(f"v_cvt_pk_bf16_f32 v23, v{y0}, v{y0+1}")
            a("v_lshlrev_b32 v20, 16, v22")
            a("v_and_b32 v21, 0xffff0000, v22")
            a("v_lshlrev_b32 v24, 16, v23")
            a("v_and_b32 v25, 0xffff0000, v23")
            a("v_add_f32 v20, v20, v24")
            a("v_add_f32 v21, v21, v25")
            a(f"v_cvt_pk_bf16_f32 v{26+2*(rq&1)+p}, v20, v21")
        a(f"buffer_store_dwordx2 v[{26+2*(rq&1)}:{27+2*(rq&1)}], v17, s[16:19], 0 offen offset:{16*rq}")
    if not os.environ.get('NOPF2'):
        ws_srd(a, 52, CNT_OFF+2*4096, 4096)
        srd(a, 48, 82, 83, 1792*896)
        a("s_getreg_b32 s27, hwreg(HW_REG_XCC_ID)")
        a("s_and_b32 s27, s27, 7")
        a("s_lshl_b32 s27, s27, 8")
        a("v_lshrrev_b32 v4, 6, v0")
        a("v_mov_b32 v4, s27")
        a("v_mov_b32 v5, 1")
        a("s_mov_b64 s[30:31], exec")
        a("s_mov_b64 exec, 1")
        a("buffer_atomic_add v5, v4, s[52:55], 0 offen sc0")
        a("s_waitcnt vmcnt(0)")
        a("s_mov_b64 exec, s[30:31]")
        a("v_readfirstlane_b32 s26, v5")
        a("v_and_b32 v6, 63, v0")
        a("v_lshlrev_b32 v6, 4, v6")
        a("s_mul_i32 s26, s26, 14336")
        for i2 in range(14):
            a("buffer_load_dwordx4 v[160:163], v6, s[48:51], s26 offen")
            if i2<13: a("s_add_u32 s26, s26, 1024")
    rt_end(a,1)


def gemm2_3(a, exit_label):
    ws_srd(a, 8, H_OFF, H_SZ)
    ws_srd(a, 16, ST_OFF, XN_SZ)
    srd(a, 12, 82, 83, 1792*896)
    srd(a, 40, 64, 65, XN_SZ)
    srd(a, 44, 84, 85, XN_SZ)
    srd(a, 48, 86, 87, 256)
    a("""
    v_and_b32 v1, 63, v0
    v_lshrrev_b32 v2, 6, v0
    s_nop 0
    v_readfirstlane_b32 s22, v2
    s_nop 3
    """)
    claim3(a, 1, exit_label, 22)
    if RT: a("s_memrealtime s[56:57]")
    a("s_mul_hi_u32 s20, s26, 0x24924925")
    a("s_mul_i32 s21, s20, 7")
    a("s_sub_u32 s21, s26, s21")
    a("s_lshl_b32 s27, s27, 2")
    a("s_add_u32 s20, s20, s27")
    a("s_mov_b32 s31, s26")
    a("""
    v_lshrrev_b32 v3, 3, v1
    v_lshl_add_u32 v3, v2, 4, v3
    s_lshl_b32 s23, s20, 6
    v_add_u32 v3, s23, v3
    v_mul_u32_u24 v3, 3584, v3
    v_and_b32 v4, 7, v1
    v_lshrrev_b32 v5, 4, v1
    v_xor_b32 v4, v4, v5
    v_lshl_add_u32 v3, v4, 4, v3       ; voffA i=0
    v_xor_b32 v4, 64, v3               ; voffA i=1
    v_lshrrev_b32 v5, 3, v1
    v_lshl_add_u32 v5, v2, 4, v5
    v_mul_u32_u24 v5, 896, v5
    v_bfe_u32 v6, v1, 2, 1
    v_bfe_u32 v7, v1, 4, 1
    v_xor_b32 v6, v6, v7
    v_and_b32 v7, 3, v1
    v_lshl_add_u32 v6, v6, 2, v7
    v_lshl_add_u32 v5, v6, 4, v5
    s_lshl_b32 s23, s21, 7
    v_add_u32 v5, s23, v5              ; voffB
    s_lshl_b32 s24, s22, 11            ; wave*2048
    """)
    NST=28; NBS=int(os.environ.get("NBS","9"))
    def issue(s):
        sl=(s%NBS)*16384
        a("s_lshl_b32 s26, s31, 7")
        a(f"s_mul_i32 s27, s31, {64*896}")
        for i in range(2):
            a(f"s_add_u32 m0, s24, {sl+i*1024}")
            a(f"s_add_u32 s25, s26, {i*8*3584}")
            a(f"buffer_load_dwordx4 v{3+i}, s[8:11], s25 offen lds")
            a.vm_issue(s)
        for i in range(2):
            a(f"s_add_u32 m0, s24, {sl+8192+i*1024}")
            a(f"s_add_u32 s25, s27, {i*8*896}")
            a(f"buffer_load_dwordx4 v5, s[12:15], s25 offen lds")
            a.vm_issue(s)
        a("s_add_u32 s31, s31, 1")
        a("s_cmp_eq_u32 s31, 28")
        a("s_cselect_b32 s31, 0, s31")
    for s in range(NBS): issue(s)
    a("""
    s_lshl_b32 s23, s20, 6
    v_add_u32 v22, s23, v1
    v_mul_u32_u24 v22, 896, v22
    v_lshl_add_u32 v22, v2, 5, v22
    s_lshl_b32 s23, s21, 7
    v_add_u32 v22, s23, v22
    buffer_load_dwordx4 v[24:27], v22, s[40:43], 0 offen
    buffer_load_dwordx4 v[28:31], v22, s[40:43], 0 offen offset:16
    """)
    a.vm_issue('x'); a.vm_issue('x')
    a("""
    v_and_b32 v8, 31, v1
    v_lshrrev_b32 v9, 5, v1
    v_lshlrev_b32 v12, 7, v8
    v_lshl_add_u32 v13, v2, 1, v9
    v_bfe_u32 v14, v8, 1, 3
    v_xor_b32 v13, v13, v14
    v_lshl_add_u32 v12, v13, 4, v12    ; vA
    v_add_u32 v13, 0x10000, v12
    v_bfe_u32 v14, v1, 2, 2            ; r
    v_lshl_add_u32 v15, v9, 3, v14
    v_lshl_add_u32 v15, v2, 4, v15
    v_lshlrev_b32 v15, 7, v15
    v_lshrrev_b32 v16, 1, v14
    v_lshl_add_u32 v15, v16, 6, v15
    v_bfe_u32 v16, v1, 4, 1
    v_lshl_add_u32 v15, v16, 5, v15
    v_and_b32 v16, 3, v1
    v_lshl_add_u32 v15, v16, 3, v15
    v_add_u32 v15, 8192, v15           ; vB0
    v_xor_b32 v16, 64, v15             ; vB1
    v_add_u32 v10, 0x10000, v15
    v_add_u32 v11, 0x10000, v16
    """)
    ACC=64
    for i in range(64): a(f"v_mov_b32 v{ACC+i}, 0")
    FAs=[32,128]; FBs=[40,136]
    a("""
    s_lshl_b32 s23, s21, 6
    v_lshlrev_b32 v17, 4, v2
    v_add_u32 v17, s23, v17
    v_lshlrev_b32 v17, 12, v17
    v_lshl_add_u32 v17, v1, 1, v17
    s_lshl_b32 s23, s20, 7
    v_add_u32 v17, s23, v17
    s_lshl_b32 s23, s21, 2
    v_mov_b32 v19, s23
    """)
    for j in range(16):
        a(f"s_mov_b32 s25, {j*4096}")
        a(f"buffer_load_ushort v{144+j}, v17, s[16:19], s25 offen")
        a.vm_issue('x')
    def reads(s):
        b=s%NBS
        FA=FAs[s&1]; FB=FBs[s&1]
        a(f"v_add_u32 v13, {b*16384}, v12")
        a(f"v_add_u32 v10, {b*16384}, v15")
        a(f"v_add_u32 v11, {b*16384}, v16")
        for mt in range(2):
            r=FA+4*mt
            a(f"ds_read_b128 v[{r}:{r+3}], v13 offset:{mt*4096}")
        for nt in range(2):
            for i in range(2):
                r=FB+4*nt+2*i
                a(f"ds_read_b64_tr_b16 v[{r}:{r+1}], v{10+nt} offset:{4*i*128}")
    a.vm_wait(0)
    a("s_barrier")
    if RT: a("s_memrealtime s[58:59]")
    reads(0)
    for s in range(NST):
        FA=FAs[s&1]; FB=FBs[s&1]
        if s+1<NST and a.vm_has(s+1): a.vm_wait(s+1)
        a("s_waitcnt lgkmcnt(0)")
        a("s_barrier")
        def fill():
            if s+NBS<NST: issue(s+NBS)
            if s+1<NST: reads(s+1)
        def prim():
            for mt in range(2):
                for nt in range(2):
                    acc=ACC+16*(2*mt+nt)
                    ra=FA+4*mt; rb=FB+4*nt
                    a(f"v_mfma_f32_32x32x16_bf16 v[{acc}:{acc+15}], v[{rb}:{rb+3}], v[{ra}:{ra+3}], v[{acc}:{acc+15}]")
        interleave(a, capture(a,prim), capture(a,fill))
    if RT: a("s_memrealtime s[60:61]")
    a("s_nop 15")
    a("s_barrier")
    a(f"v_mul_u32_u24 v20, {64*RP}, v2")
    a(f"v_mul_u32_u24 v21, {RP}, v8")
    a("v_add_u32 v20, v20, v21")
    a("v_lshl_add_u32 v20, v9, 4, v20")
    for mt in range(2):
        for nt in range(2):
            acc=ACC+16*(2*mt+nt)
            for q in range(4):
                a(f"ds_write_b128 v20, v[{acc+4*q}:{acc+4*q+3}] offset:{mt*32*RP+nt*128+q*32}")
    a("s_waitcnt lgkmcnt(0)")
    a("s_barrier")
    a(f"v_mul_u32_u24 v20, {RP}, v1")
    a("v_lshl_add_u32 v20, v2, 6, v20")
    for wv in range(4):
        for j in range(4):
            r=64+16*wv+4*j
            a(f"ds_read_b128 v[{r}:{r+3}], v20 offset:{wv*64*RP+j*16}")
    a("s_waitcnt lgkmcnt(0)")
    for i in range(16):
        a(f"v_add_f32 v{64+i}, v{64+i}, v{80+i}")
        a(f"v_add_f32 v{96+i}, v{96+i}, v{112+i}")
        a(f"v_add_f32 v{64+i}, v{64+i}, v{96+i}")
    NL2E=hex(f2u(-1.4426950408889634))
    for p in range(8):
        m0,m1=64+2*p,65+2*p
        a(f"v_cvt_pk_bf16_f32 v4, v{m0}, v{m1}")
        a("v_lshlrev_b32 v5, 16, v4")
        a("v_and_b32 v6, 0xffff0000, v4")
        a(f"v_mul_f32 v7, {NL2E}, v5")
        a(f"v_mul_f32 v10, {NL2E}, v6")
        a("v_exp_f32 v7, v7")
        a("v_exp_f32 v10, v10")
        a("s_nop 0")
        a("v_add_f32 v7, 1.0, v7")
        a("v_add_f32 v10, 1.0, v10")
        a("v_rcp_f32 v7, v7")
        a("v_rcp_f32 v10, v10")
        a("s_nop 0")
        a("v_mul_f32 v5, v5, v7")
        a("v_mul_f32 v6, v6, v10")
        a("v_cvt_pk_bf16_f32 v4, v5, v6")
        a("v_lshlrev_b32 v5, 16, v4")
        a("v_and_b32 v6, 0xffff0000, v4")
        if p==0: a("s_waitcnt vmcnt(0)")
        a(f"v_lshlrev_b32 v7, 16, v{144+2*p}")
        a(f"v_lshlrev_b32 v10, 16, v{145+2*p}")
        a("v_mul_f32 v5, v5, v7")
        a("v_mul_f32 v6, v6, v10")
        a("v_cvt_pk_bf16_f32 v4, v5, v6")
        a("v_lshlrev_b32 v5, 16, v4")
        a("v_and_b32 v6, 0xffff0000, v4")
        a(f"v_lshlrev_b32 v7, 16, v{24+p}")
        a(f"v_and_b32 v10, 0xffff0000, v{24+p}")
        a("v_add_f32 v5, v5, v7")
        a("v_add_f32 v6, v6, v10")
        a(f"v_cvt_pk_bf16_f32 v{48+p}, v5, v6")
    a("buffer_store_dwordx4 v[48:51], v22, s[44:47], 0 offen")
    a("buffer_store_dwordx4 v[52:55], v22, s[44:47], 0 offen offset:16")
    a("s_waitcnt vmcnt(0)")
    rt_end(a,2)


def ln3(a):
    PITCH=928
    a("s_setprio 3")
    srd(a, 8, 4, 5, XN_SZ)
    ws_srd(a, 16, XNT_OFF, XN_SZ)
    a("""
    v_lshrrev_b32 v2, 3, v0
    v_and_b32 v3, 7, v0
    s_lshl_b32 s20, s3, 6
    v_add_u32 v4, s20, v2
    v_mul_u32_u24 v1, 896, v4
    v_lshl_add_u32 v1, v3, 4, v1
    """)
    for i in range(7):
        a(f"buffer_load_dwordx4 v[{16+4*i}:{19+4*i}], v1, s[8:11], 0 offen offset:{i*128}")
    a("v_mov_b32 v5, 0x3f803f80")
    a("v_mov_b32 v6, 0")
    a("v_mov_b32 v7, 0")
    a("s_waitcnt vmcnt(0)")
    for i in range(28):
        a(f"v_dot2_f32_bf16 v{6+(i&1)}, v{16+i}, v5, v{6+(i&1)}")
    a("s_nop 3")
    a("v_add_f32 v6, v6, v7")
    dpp_reduce8(a, 6)
    a(f"v_mul_f32 v6, {hex(f2u(1.0/448))}, v6")
    a("v_mov_b32 v7, v6")
    for i in range(28):
        a(f"v_lshlrev_b32 v{44+2*i}, 16, v{16+i}")
        a(f"v_and_b32 v{45+2*i}, 0xffff0000, v{16+i}")
    a("v_mov_b32 v8, 0")
    a("v_mov_b32 v9, 0")
    for i in range(28):
        a(f"v_pk_add_f32 v[10:11], v[{44+2*i}:{45+2*i}], v[6:7] neg_lo:[0,1] neg_hi:[0,1]")
        a("v_pk_fma_f32 v[8:9], v[10:11], v[10:11], v[8:9]")
    a("v_add_f32 v8, v8, v9")
    dpp_reduce8(a, 8)
    a(f"v_mul_f32 v8, {hex(f2u(1.0/448))}, v8")
    bf16r(a, 8, 8)
    a(f"v_add_f32 v8, {hex(f2u(1e-5))}, v8")
    bf16r(a, 8, 8)
    a("v_sqrt_f32 v8, v8")
    a("s_nop 0")
    bf16r(a, 8, 8)
    a("v_rcp_f32 v12, v8")
    a("v_mov_b32 v9, v8")
    bf16r(a, 6, 6)
    a("v_mov_b32 v7, v6")
    a("v_mov_b32 v13, v12")
    for i in range(28):
        lo, hi = 44+2*i, 45+2*i
        a(f"v_pk_add_f32 v[{lo}:{hi}], v[{lo}:{hi}], v[6:7] neg_lo:[0,1] neg_hi:[0,1]")
        a(f"v_cvt_pk_bf16_f32 v10, v{lo}, v{hi}")
        a(f"v_lshlrev_b32 v{lo}, 16, v10")
        a(f"v_and_b32 v{hi}, 0xffff0000, v10")
        a(f"v_pk_mul_f32 v[10:11], v[{lo}:{hi}], v[12:13]")
        a(f"v_pk_fma_f32 v[{lo}:{hi}], v[10:11], v[8:9], v[{lo}:{hi}] neg_lo:[1,0,0] neg_hi:[1,0,0]")
        a(f"v_pk_fma_f32 v[10:11], v[{lo}:{hi}], v[12:13], v[10:11]")
        a(f"v_cvt_pk_bf16_f32 v{16+i}, v10, v11")
    a(f"v_mul_u32_u24 v9, {PITCH}, v2")
    a("v_lshl_add_u32 v9, v3, 4, v9")
    ws_srd(a, 12, XN_OFF, XN_SZ)
    for i in range(7):
        a(f"buffer_store_dwordx4 v[{16+4*i}:{19+4*i}], v1, s[12:15], 0 offen offset:{i*128}")
        a(f"ds_write_b128 v9, v[{16+4*i}:{19+4*i}] offset:{i*128}")
    a("s_waitcnt lgkmcnt(0)")
    a("s_barrier")
    a("""
    v_and_b32 v10, 63, v0
    v_lshrrev_b32 v11, 6, v0          ; wave
    v_lshrrev_b32 v15, 2, v11         ; th
    v_and_b32 v11, 3, v11             ; dq
    v_lshrrev_b32 v12, 4, v10         ; gam
    v_bfe_u32 v13, v10, 2, 2          ; r
    v_and_b32 v14, 3, v10             ; c
    v_lshl_add_u32 v13, v12, 3, v13   ; 8gam + r
    v_lshl_add_u32 v13, v15, 5, v13   ; + 32 th
    """)
    a(f"v_mul_u32_u24 v13, {PITCH}, v13")
    a("v_lshl_add_u32 v13, v14, 3, v13")
    a("v_lshl_add_u32 v13, v11, 5, v13")
    a("""
    v_and_b32 v14, 15, v10
    v_lshl_add_u32 v14, v11, 4, v14
    v_lshlrev_b32 v14, 12, v14
    v_lshl_add_u32 v14, v12, 4, v14
    v_lshl_add_u32 v14, v15, 6, v14
    s_lshl_b32 s21, s3, 7
    v_add_u32 v14, s21, v14
    """)
    for it in range(7):
        a(f"ds_read_b64_tr_b16 v[{16+4*it}:{17+4*it}], v13 offset:{it*128}")
        a(f"ds_read_b64_tr_b16 v[{18+4*it}:{19+4*it}], v13 offset:{it*128+4*PITCH}")
    a("s_waitcnt lgkmcnt(0)")
    for it in range(7):
        a(f"s_mov_b32 s22, {it*64*4096}")
        a(f"buffer_store_dwordx4 v[{16+4*it}:{19+4*it}], v14, s[16:19], s22 offen")
    rt_end(a,0)


def kgen3(a):
    UP=528; WREG=16*UP; CHREG=4*WREG
    KD_OFF=12288
    a(f"s_setprio {os.environ.get('KGP','2')}")
    srd(a, 8, 66, 67, 448*512)
    srd(a, 12, 68, 69, 448*512)
    srd(a, 16, 70, 71, 448*512)
    srd(a, 20, 72, 73, 448*512)
    srd(a, 24, 74, 75, 448*2)
    ws_srd(a, 44, KR_OFF, KR_SZ)
    a("""
    s_lshl_b32 s28, s3, 10
    v_lshlrev_b32 v1, 1, v0
    v_add_u32 v1, s28, v1
    v_lshrrev_b32 v3, 8, v0            ; chsel
    s_lshl_b32 s29, s3, 1
    v_add_u32 v2, s29, v3              ; channel d
    v_lshlrev_b32 v10, 1, v2
    buffer_load_ushort v4, v1, s[8:11], 0 offen
    buffer_load_ushort v5, v1, s[12:15], 0 offen
    buffer_load_ushort v6, v1, s[16:19], 0 offen
    buffer_load_ushort v7, v1, s[20:23], 0 offen
    buffer_load_ushort v8, v10, s[24:27], 0 offen
    """)
    a("v_and_b32 v1, 63, v0")
    a("v_lshrrev_b32 v0, 6, v0")
    a(f"v_mul_u32_u24 v14, {WREG}, v0")
    a("v_lshrrev_b32 v10, 4, v1")
    a("v_and_b32 v15, 15, v1")
    a(f"v_mul_u32_u24 v15, {UP}, v15")
    a("v_lshl_add_u32 v15, v10, 4, v15")
    a("v_add_u32 v15, v15, v14")
    a("v_lshl_add_u32 v14, v1, 2, v14")
    a("""
    s_waitcnt vmcnt(0)
    v_lshlrev_b32 v4, 16, v4
    v_lshlrev_b32 v5, 16, v5
    v_lshlrev_b32 v6, 16, v6
    v_lshlrev_b32 v7, 16, v7
    v_lshlrev_b32 v8, 16, v8
    """)
    if RT: a("s_memrealtime s[56:57]")
    acc_exp(a, 9, 8, 10, 11)
    bf16r(a, 9, 9)
    acc_exp(a, 12, 4, 10, 11)
    bf16r(a, 12, 12)
    a("v_mul_f32 v12, v12, v9")
    a("v_mul_f32 v13, v5, v9")
    a("v_mul_f32 v6, v6, v9")
    a("v_mul_f32 v7, v7, v9")
    a("v_add_f32 v6, v6, v6")
    a("v_add_f32 v7, v7, v7")
    a(f"v_mul_f32 v12, {hex(f2u(-1.4426950408889634))}, v12")
    a(f"v_mul_f32 v13, {hex(f2u(0.15915494309189535))}, v13")
    T=16
    def direct(d,p):
        a(f"v_mul_f32 v{T}, {hex(f2u(float(p)))}, v12")
        a(f"v_mul_f32 v{T+1}, {hex(f2u(float(p)))}, v13")
        a(f"v_exp_f32 v{T}, v{T}")
        a(f"v_fract_f32 v{T+1}, v{T+1}")
        a(f"v_cos_f32 v{d}, v{T+1}")
        a(f"v_sin_f32 v{d+1}, v{T+1}")
        a("s_nop 0")
        a(f"v_mul_f32 v{d}, v{d}, v{T}")
        a(f"v_mul_f32 v{d+1}, v{d+1}, v{T}")
    def split_write(src,row):
        a(f"v_cvt_pk_bf16_f32 v4, v{src}, v{src+1}")
        a("v_lshlrev_b32 v8, 16, v4")
        a("v_and_b32 v9, 0xffff0000, v4")
        a(f"v_pk_add_f32 v[8:9], v[{src}:{src+1}], v[8:9] neg_lo:[0,1] neg_hi:[0,1]")
        a("v_cvt_pk_bf16_f32 v5, v8, v9")
        a(f"ds_write_b32 v14, v4 offset:{row*UP}")
        a(f"ds_write_b32 v14, v5 offset:{row*UP+256}")
    BH=64; BL=80; AF=96; ACC=112
    V={1:20,2:22,4:24,8:26,3:28,5:30,6:32,7:34}
    direct(V[1],8); pk_cmul(a,V[2],V[1],V[1],T); pk_cmul(a,V[4],V[2],V[2],T); pk_cmul(a,V[8],V[4],V[4],T)
    pk_cmul(a,V[3],V[1],V[2],T); pk_cmul(a,V[5],V[4],V[1],T); pk_cmul(a,V[6],V[4],V[2],T); pk_cmul(a,V[7],V[4],V[3],T)
    a("v_mov_b32 v36, 0x3f80"); a("v_mov_b32 v37, 0")
    a("ds_write_b32 v14, v36"); a("ds_write_b32 v14, v37 offset:256")
    for j in range(1,9): split_write(V[j],j)
    for j in range(9,16):
        pk_cmul(a,36,V[8],V[j-8],T); split_write(36,j)
    a("s_waitcnt lgkmcnt(0)")
    for s in range(4):
        a(f"ds_read_b128 v[{BH+4*s}:{BH+4*s+3}], v15 offset:{64*s}")
        a(f"ds_read_b128 v[{BL+4*s}:{BL+4*s+3}], v15 offset:{256+64*s}")
    S={1:20,2:22,3:24,4:26,5:28,6:30,7:32}
    direct(S[1],1); pk_cmul(a,S[2],S[1],S[1],T); pk_cmul(a,S[4],S[2],S[2],T)
    pk_cmul(a,S[3],S[1],S[2],T); pk_cmul(a,S[5],S[1],S[4],T); pk_cmul(a,S[6],S[2],S[4],T); pk_cmul(a,S[7],S[3],S[4],T)
    G={1:48,2:50,4:52,8:54,16:56}
    direct(G[1],128)
    for m in (2,4,8,16): pk_cmul(a,G[m],G[m//2],G[m//2],T)
    W={0:6}
    for m in range(1,8): W[m]=32+2*m
    pk_cmul(a,W[1],6,G[1],T); pk_cmul(a,W[2],6,G[2],T); pk_cmul(a,W[3],W[1],G[2],T); pk_cmul(a,W[4],6,G[4],T)
    pk_cmul(a,W[5],W[1],G[4],T); pk_cmul(a,W[6],W[2],G[4],T); pk_cmul(a,W[7],W[3],G[4],T)
    for i in range(12): a(f"v_mov_b32 v{ACC+i}, 0")
    R=58
    rows={}
    rows[0]=[('ws',i//8,i%8) for i in range(16)]
    rows[1]=[('ws',2+i//4,2*(i%4)) for i in range(8)]+[('ws',4+i//2,4*(i%2)) for i in range(8)]
    rows[2]=[('wg',i,8) for i in range(8)]+[('wg',0,16)]+[None]*7
    for t in (2,1,0):
        a("s_waitcnt lgkmcnt(0)")
        for i,rw in enumerate(rows[t]):
            if rw is None:
                a(f"v_mov_b32 v{R}, 0")
                a(f"ds_write_b32 v14, v{R} offset:{i*UP}")
                a(f"ds_write_b32 v14, v{R} offset:{i*UP+256}")
                continue
            elif rw[0]=='wg':
                pk_cmul(a,R,W[rw[1]],G[rw[2]],T,negim=True)
            elif rw[2]==0:
                a(f"v_mov_b32 v{R}, v{W[rw[1]]}")
                a(f"v_sub_f32 v{R+1}, 0, v{W[rw[1]]+1}")
            else:
                pk_cmul(a,R,W[rw[1]],S[rw[2]],T,negim=True)
            split_write(R,i)
        a("s_waitcnt lgkmcnt(0)")
        acc=ACC+4*t
        for s in range(4): a(f"ds_read_b128 v[{AF+4*s}:{AF+4*s+3}], v15 offset:{64*s}")
        for s in range(4):
            a(f"s_waitcnt lgkmcnt({3-s})")
            a(f"v_mfma_f32_16x16x32_bf16 v[{acc}:{acc+3}], v[{AF+4*s}:{AF+4*s+3}], v[{BH+4*s}:{BH+4*s+3}], v[{acc}:{acc+3}]")
            a(f"v_mfma_f32_16x16x32_bf16 v[{acc}:{acc+3}], v[{AF+4*s}:{AF+4*s+3}], v[{BL+4*s}:{BL+4*s+3}], v[{acc}:{acc+3}]")
        for s in range(4): a(f"ds_read_b128 v[{AF+4*s}:{AF+4*s+3}], v15 offset:{256+64*s}")
        for s in range(4):
            a(f"s_waitcnt lgkmcnt({3-s})")
            a(f"v_mfma_f32_16x16x32_bf16 v[{acc}:{acc+3}], v[{AF+4*s}:{AF+4*s+3}], v[{BH+4*s}:{BH+4*s+3}], v[{acc}:{acc+3}]")
    if RT: a("s_memrealtime s[58:59]")
    a("s_nop 15")
    a("s_barrier")
    a(f"v_mul_u32_u24 v16, {CHREG}, v3")
    a("v_and_b32 v17, 3, v0")
    a("v_mul_u32_u24 v18, 3072, v17")
    a("v_add_u32 v18, v18, v16")
    a("v_lshl_add_u32 v18, v1, 4, v18")
    for t in range(3):
        a(f"ds_write_b128 v18, v[{ACC+4*t}:{ACC+4*t+3}] offset:{t*1024}")
    a("s_waitcnt lgkmcnt(0)")
    a("s_barrier")
    skip=a.newlabel("kg_skip")
    a("v_readfirstlane_b32 s28, v17")
    a("s_nop 3")
    a("s_cmp_ge_u32 s28, 3")
    a(f"s_cbranch_scc1 {skip}")
    a("v_lshlrev_b32 v18, 10, v17")
    a("v_add_u32 v18, v18, v16")
    a("v_lshl_add_u32 v18, v1, 4, v18")
    for w in range(4):
        a(f"ds_read_b128 v[{20+4*w}:{23+4*w}], v18 offset:{w*3072}")
    a("s_waitcnt lgkmcnt(0)")
    for r in range(4):
        a(f"v_add_f32 v{20+r}, v{20+r}, v{24+r}")
        a(f"v_add_f32 v{28+r}, v{28+r}, v{32+r}")
        a(f"v_add_f32 v{20+r}, v{20+r}, v{28+r}")
    a("v_lshrrev_b32 v4, 4, v1")
    a("v_and_b32 v5, 15, v1")
    a("v_lshlrev_b32 v5, 5, v5")
    a("v_add_u32 v5, v5, v16")
    t1=a.newlabel("kg_t1"); t2=a.newlabel("kg_t2"); done=a.newlabel("kg_td")
    a("s_cmp_eq_u32 s28, 1"); a(f"s_cbranch_scc1 {t1}")
    a("s_cmp_eq_u32 s28, 2"); a(f"s_cbranch_scc1 {t2}")
    a("v_lshrrev_b32 v6, 1, v4"); a("v_lshlrev_b32 v6, 7, v6"); a("v_and_b32 v7, 1, v4"); a("v_lshl_add_u32 v6, v7, 2, v6")
    a("v_lshl_add_u32 v6, v6, 2, v5")
    for r in range(4): a(f"ds_write_b32 v6, v{20+r} offset:{KD_OFF+4*r}")
    a(f"s_branch {done}")
    a.label(t1)
    a("v_lshlrev_b32 v6, 7, v4"); a("v_add_u32 v6, 256, v6")
    a("v_lshlrev_b32 v7, 8, v4")
    a("v_cmp_gt_u32 vcc, 2, v4")
    a("s_nop 1")
    for r in range(4):
        a(f"v_add_u32 v8, {2*r}, v6")
        a(f"v_add_u32 v9, {128*(r//2)+4*(r%2)}, v7")
        a("v_cndmask_b32 v8, v9, v8, vcc")
        a("v_lshl_add_u32 v8, v8, 2, v5")
        a(f"ds_write_b32 v8, v{20+r} offset:{KD_OFF}")
    a(f"s_branch {done}")
    a.label(t2)
    a("v_lshlrev_b32 v6, 9, v4"); a("v_add_u32 v6, 1024, v6")
    for r in range(4):
        a(f"v_add_u32 v8, {128*r}, v6")
        a("v_min_u32 v8, 2176, v8")
        a("v_lshl_add_u32 v8, v8, 2, v5")
        a(f"ds_write_b32 v8, v{20+r} offset:{KD_OFF}")
    a.label(done)
    a.label(skip)
    a("s_waitcnt lgkmcnt(0)")
    a("s_barrier")
    a("v_lshl_add_u32 v18, v17, 6, v1")
    a("v_lshlrev_b32 v19, 3, v18")
    a("v_sub_u32 v19, 2047, v19")
    for e in range(8):
        a(f"v_subrev_u32 v4, {e}, v19")
        a("v_cvt_f32_u32 v4, v4")
        a("v_cvt_pk_bf16_f32 v4, v4, v4")
        a("v_lshlrev_b32 v4, 16, v4")
        a("v_cvt_u32_f32 v4, v4")
        a("v_lshl_add_u32 v4, v4, 2, v16")
        a(f"ds_read_b32 v{20+e}, v4 offset:{KD_OFF}")
    a(f"v_mul_u32_u24 v5, {KRP}, v2")
    a("v_lshl_add_u32 v5, v18, 4, v5")
    a("s_waitcnt lgkmcnt(0)")
    for e in range(4):
        a(f"v_cvt_pk_bf16_f32 v{28+e}, v{20+2*e}, v{21+2*e}")
    a("buffer_store_dwordx4 v[28:31], v5, s[44:47], 0 offen")
    a("v_mov_b32 v32, 0"); a("v_mov_b32 v33, 0"); a("v_mov_b32 v34, 0"); a("v_mov_b32 v35, 0")
    a("v_cmp_gt_u32 vcc, 8, v18")
    a("s_and_saveexec_b64 s[48:49], vcc")
    skipz=a.newlabel("kg_z")
    a(f"s_cbranch_execz {skipz}")
    a("s_mov_b32 s28, 4096")
    a("buffer_store_dwordx4 v[32:35], v5, s[44:47], s28 offen")
    a.label(skipz)
    rt_end(a,0)


def k0(name):
    a=Asm(); a.label(name)
    if RT: a("s_memrealtime s[90:91]")
    a(HEAD_A)
    a("s_cmp_ge_u32 s2, 256")
    a(f"s_cbranch_scc1 {name}_pf")
    a("s_cmp_ge_u32 s2, 224")
    a(f"s_cbranch_scc1 {name}_ln")
    a("s_mov_b32 s3, s2")
    kgen3(a)
    a.label(f"{name}_ln")
    a("s_sub_u32 s3, s2, 224")
    lz=a.newlabel("k0_z")
    a("s_cmp_lg_u32 s3, 0")
    a(f"s_cbranch_scc1 {lz}")
    ws_srd(a, 52, CNT_OFF, 24576)
    a("v_lshlrev_b32 v4, 4, v0")
    a("v_mov_b32 v8, 0\nv_mov_b32 v9, 0\nv_mov_b32 v10, 0\nv_mov_b32 v11, 0")
    a("buffer_store_dwordx4 v[8:11], v4, s[52:55], 0 offen")
    a("s_mov_b32 s26, 8192")
    a("buffer_store_dwordx4 v[8:11], v4, s[52:55], s26 offen")
    a("s_mov_b32 s26, 16384")
    a("buffer_store_dwordx4 v[8:11], v4, s[52:55], s26 offen")
    a.label(lz)
    ln3(a)
    a.label(f"{name}_pf")
    a("s_cmp_ge_u32 s2, 312")
    a(f"s_cbranch_scc1 {name}_exit")
    a("s_sub_u32 s3, s2, 256")
    a("s_cmp_ge_u32 s3, 28")
    a("s_cselect_b32 s48, s82, s80")
    a("s_cselect_b32 s49, s83, s81")
    a(f"s_mov_b32 s50, {448*3584}")
    a("s_mov_b32 s51, 0x00020000")
    a("s_cselect_b32 s23, 28, 0")
    a("s_sub_u32 s3, s3, s23")
    a("s_mul_i32 s23, s3, 57344")
    a("v_lshlrev_b32 v4, 4, v0")
    for i in range(7):
        a(f"buffer_load_dwordx4 v[8:11], v4, s[48:51], s23 offen")
        if i<6: a("s_add_u32 s23, s23, 8192")
    a("s_waitcnt vmcnt(0)")
    a.label(f"{name}_exit")
    a("s_endpgm")
    return a.text()
def k1(name):
    a=Asm(); a.label(name)
    if RT: a("s_memrealtime s[90:91]")
    a(HEAD_A)
    a("s_cmp_ge_u32 s2, 480")
    a(f"s_cbranch_scc1 {name}_exit")
    a("s_cmp_ge_u32 s2, 256")
    a(f"s_cbranch_scc1 {name}_conv")
    gemm1_256(a, f"{name}_exit")
    a.label(f"{name}_conv")
    a("s_sub_u32 s3, s2, 256")
    conv3(a)
    a.label(f"{name}_exit")
    a("s_endpgm")
    return a.text()
def k2(name):
    a=Asm(); a.label(name)
    if RT: a("s_memrealtime s[90:91]")
    a(HEAD_A)
    a("s_cmp_ge_u32 s2, 256")
    a(f"s_cbranch_scc1 {name}_exit")
    gemm2_3(a, f"{name}_exit")
    a.label(f"{name}_exit")
    a("s_endpgm")
    return a.text()
```

```python
from asm import *
import ka as KA, kb as KB
from ka import *
from kb import CS,KC_SZ,XB_SZ,CH_SZ,RP

WT=" sc1" if os.environ.get("WT") else ""
HEAD_A="""
    s_load_dwordx16 s[64:79], s[0:1], 0
    s_load_dwordx8 s[80:87], s[0:1], 64
    s_load_dwordx2 s[6:7], s[0:1], 96
    s_waitcnt lgkmcnt(0)
    s_mov_b32 s4, s64
    s_mov_b32 s5, s65
"""

CNT_OFF=0x1200000
def claim3(a, kern, exit_label, wave_sgpr):
    ws_srd(a, 52, CNT_OFF+kern*4096, 4096)
    a("s_getreg_b32 s27, hwreg(HW_REG_XCC_ID)")
    a("s_and_b32 s27, s27, 7")
    lskip=a.newlabel("cl_skip"); lp=a.newlabel("cl_loop"); ld=a.newlabel("cl_done"); lnx=a.newlabel("cl_nx"); lno=a.newlabel("cl_no")
    a(f"s_cmp_lg_u32 s{wave_sgpr}, 0")
    a(f"s_cbranch_scc1 {lskip}")
    a("s_mov_b64 s[30:31], exec")
    a("s_mov_b64 exec, 1")
    a("s_lshl_b32 s26, s27, 8")
    a("v_mov_b32 v4, s26")
    a("v_mov_b32 v5, 1")
    a("buffer_atomic_add v5, v4, s[52:55], 0 offen sc0")
    a("s_waitcnt vmcnt(0)")
    a("v_readfirstlane_b32 s26, v5")
    a("s_nop 3")
    a("s_cmp_lt_u32 s26, 28")
    a(f"s_cbranch_scc1 {ld}")
    a("s_mov_b64 exec, 0xff")
    a("v_lshlrev_b32 v4, 8, v0")
    a("buffer_load_dword v6, v4, s[52:55], 0 offen sc1")
    a("s_waitcnt vmcnt(0)")
    a("v_cmp_gt_u32 vcc, 28, v6")
    a("s_mov_b64 exec, 1")
    a("s_nop 3")
    a("s_mov_b32 s28, vcc_lo")
    a.label(lp)
    a("s_cmp_eq_u32 s28, 0")
    a(f"s_cbranch_scc1 {lno}")
    a("s_ff1_i32_b32 s27, s28")
    a("s_bitset0_b32 s28, s27")
    a("s_lshl_b32 s26, s27, 8")
    a("v_mov_b32 v4, s26")
    a("v_mov_b32 v5, 1")
    a("buffer_atomic_add v5, v4, s[52:55], 0 offen sc0")
    a("s_waitcnt vmcnt(0)")
    a("v_readfirstlane_b32 s26, v5")
    a("s_nop 3")
    a("s_cmp_lt_u32 s26, 28")
    a(f"s_cbranch_scc1 {ld}")
    a(f"s_branch {lp}")
    a.label(lno)
    a("s_mov_b32 s26, 0xff")
    a.label(ld)
    a("s_lshl_b32 s28, s27, 8")
    a("s_or_b32 s26, s26, s28")
    a("v_mov_b32 v4, 0")
    a("v_mov_b32 v5, s26")
    a("ds_write_b32 v4, v5")
    a("s_waitcnt lgkmcnt(0)")
    a("s_mov_b64 exec, s[30:31]")
    a.label(lskip)
    a("s_barrier")
    a("v_mov_b32 v4, 0")
    a("ds_read_b32 v5, v4")
    a("s_waitcnt lgkmcnt(0)")
    a("v_readfirstlane_b32 s26, v5")
    a("s_barrier")
    a("s_lshr_b32 s27, s26, 8")
    a("s_and_b32 s26, s26, 0xff")
    a("s_cmp_eq_u32 s26, 0xff")
    a(f"s_cbranch_scc1 {exit_label}")

def gemm1_256(a, exit_label):
    NST=14; NSL=10; NP=28
    a(f"s_setprio {os.environ.get('G1P','0')}")
    ws_srd(a, 8, XN_OFF, XN_SZ)
    ws_srd(a, 16, H_OFF, H_SZ)
    srd(a, 12, 80, 81, 448*3584)
    srd(a, 44, 86, 87, 256)
    a("""
    v_and_b32 v1, 63, v0
    v_lshrrev_b32 v2, 6, v0
    s_nop 0
    v_readfirstlane_b32 s22, v2
    s_nop 3
    """)
    claim3(a, 0, exit_label, 22)
    if RT: a("s_memrealtime s[56:57]")
    a("s_cmp_ge_u32 s26, 14")
    a("s_cselect_b32 s20, 1, 0")
    a("s_mul_i32 s21, s20, 14")
    a("s_sub_u32 s21, s26, s21")
    a("s_lshl_b32 s27, s27, 1")
    a("s_add_u32 s20, s20, s27")
    a("s_mov_b32 s29, s26")
    a("""
    v_lshrrev_b32 v3, 3, v1
    v_lshl_add_u32 v3, v2, 4, v3
    s_lshl_b32 s23, s20, 7
    v_add_u32 v3, s23, v3
    v_mul_u32_u24 v3, 896, v3
    v_and_b32 v4, 7, v1
    v_lshrrev_b32 v5, 4, v1
    v_xor_b32 v4, v4, v5
    v_lshl_add_u32 v3, v4, 4, v3       ; voffA i=0
    v_xor_b32 v4, 64, v3               ; voffA i=1  (896 = 7*128)
    v_bfe_u32 v6, v1, 4, 2
    v_lshrrev_b32 v5, 4, v1
    v_lshl_add_u32 v5, v2, 3, v5       ; krow = 8w + l/16 (+4i)
    v_mul_u32_u24 v5, 3584, v5
    v_bfe_u32 v7, v1, 2, 2
    v_xor_b32 v6, v6, v7
    v_and_b32 v7, 3, v1
    v_lshl_add_u32 v6, v6, 2, v7
    v_lshl_add_u32 v5, v6, 4, v5
    s_lshl_b32 s23, s21, 8
    v_add_u32 v5, s23, v5              ; voffB
    s_lshl_b32 s24, s22, 11
    """)
    a("s_mul_hi_u32 s30, s29, 0x24924925")
    a("s_mul_i32 s30, s30, 7")
    a("s_sub_u32 s31, s29, s30")
    for k in range(7):
        a(f"s_lshl_b32 s{32+k}, s31, 7")
        a("s_add_u32 s31, s31, 1")
        a("s_cmp_eq_u32 s31, 7")
        a("s_cselect_b32 s31, 0, s31")
    def issue(p):
        c=p//4; k=p%4; sl=p%NSL
        if k not in (1,2): a(f"s_mul_i32 s30, s{32+c}, 1792")
        for i in range(2):
            a(f"s_add_u32 m0, s24, {sl*8192+i*1024}")
            if k in (1,2):
                a(f"s_add_u32 s25, s{32+c}, {(k-1)*64*896+i*8*896}")
                a(f"buffer_load_dwordx4 v{3+i}, s[8:11], s25 offen lds")
            else:
                a(f"s_add_u32 s25, s30, {(32*3584 if k==3 else 0)+i*4*3584}")
                a(f"buffer_load_dwordx4 v5, s[12:15], s25 offen lds")
            a.vm_issue(p)
    for p in range(NSL): issue(p)
    a("""
    v_and_b32 v8, 31, v1               ; m / n
    v_lshrrev_b32 v9, 5, v1            ; g
    v_lshrrev_b32 v10, 1, v2           ; wr
    v_and_b32 v11, 1, v2               ; wc
    s_lshr_b32 s28, s22, 1
    v_lshlrev_b32 v12, 7, v8
    v_bfe_u32 v13, v8, 1, 3
    v_xor_b32 v13, v13, v9
    v_lshl_add_u32 v12, v13, 4, v12
    v_bfe_u32 v14, v1, 2, 2            ; r
    v_lshl_add_u32 v15, v9, 3, v14
    v_lshlrev_b32 v15, 8, v15
    v_lshlrev_b32 v16, 1, v11
    v_xor_b32 v16, v16, v14
    v_lshl_add_u32 v15, v16, 6, v15
    v_bfe_u32 v16, v1, 4, 1
    v_lshl_add_u32 v15, v16, 5, v15
    v_and_b32 v16, 3, v1
    v_lshl_add_u32 v15, v16, 3, v15
    """)
    ACC=64
    for i in range(64): a(f"v_mov_b32 v{ACC+i}, 0")
    FAs=[32,128]; FBs=[48,144]
    def reads(s):
        c=s//2; h=s%2
        FA=FAs[s&1]; FB=FBs[s&1]
        pB=4*c+(3 if h else 0)
        sl0=((4*c+1)%NSL)*8192; sl1=((4*c+2)%NSL)*8192
        a(f"s_mov_b32 s26, {sl0}")
        a(f"s_mov_b32 s27, {sl1}")
        a("s_cmp_eq_u32 s28, 0")
        a("s_cselect_b32 s26, s26, s27")
        a(f"v_xor_b32 v17, {64*h}, v12")
        a("v_add_u32 v17, s26, v17")
        a("v_xor_b32 v18, 32, v17")
        a(f"v_add_u32 v19, {(pB%NSL)*8192}, v15")
        a("v_xor_b32 v20, 64, v19")
        for ks in range(2):
            for mt in range(2):
                r=FA+8*ks+4*mt
                a(f"ds_read_b128 v[{r}:{r+3}], v{17+ks} offset:{mt*4096}")
            for nt in range(2):
                for i in range(2):
                    r=FB+8*ks+4*nt+2*i
                    a(f"ds_read_b64_tr_b16 v[{r}:{r+1}], v{19+nt} offset:{(16*ks+4*i)*256}")
    def needs(s):
        c=s//2
        return [4*c+3] if s%2 else [4*c,4*c+1,4*c+2]
    def wait_stage(s):
        idx=[i for i,t in enumerate(a.vm) if t in needs(s)]
        if idx: a.vm_wait(a.vm[max(idx)])
    wait_stage(0)
    a("s_barrier")
    if RT: a("s_memrealtime s[58:59]")
    reads(0)
    st={'nxt':NSL}
    for s in range(NST):
        FA=FAs[s&1]; FB=FBs[s&1]
        if s+1<NST: wait_stage(s+1)
        a("s_waitcnt lgkmcnt(0)")
        a("s_barrier")
        nfree = 1 if s%2==0 else 3
        def fill():
            for _ in range(nfree):
                if st['nxt']<NP: issue(st['nxt']); st['nxt']+=1
            if s+1<NST: reads(s+1)
        def prim():
            for ks in range(2):
                for mt in range(2):
                    for nt in range(2):
                        acc=ACC+16*(2*mt+nt)
                        ra=FA+8*ks+4*mt; rb=FB+8*ks+4*nt
                        a(f"v_mfma_f32_32x32x16_bf16 v[{acc}:{acc+15}], v[{rb}:{rb+3}], v[{ra}:{ra+3}], v[{acc}:{acc+15}]")
        interleave(a, capture(a,prim), capture(a,fill))
    if RT: a("s_memrealtime s[60:61]")
    a("s_nop 15")
    a("s_barrier")
    HP=272
    a(f"v_lshl_add_u32 v20, v10, 6, v8")
    a(f"v_mul_u32_u24 v20, {HP}, v20")
    a("v_lshl_add_u32 v20, v11, 7, v20")
    a("v_lshl_add_u32 v20, v9, 3, v20")
    k=0
    for mt in range(2):
        for nt in range(2):
            acc=ACC+16*(2*mt+nt)
            for q in range(4):
                t=48+2*(k%4); k+=1
                for e in range(4): a(f"v_max_f32 v{acc+4*q+e}, 0, v{acc+4*q+e}")
                a(f"v_cvt_pk_bf16_f32 v{t}, v{acc+4*q}, v{acc+4*q+1}")
                a(f"v_cvt_pk_bf16_f32 v{t+1}, v{acc+4*q+2}, v{acc+4*q+3}")
                a(f"ds_write_b64 v20, v[{t}:{t+1}] offset:{mt*32*HP+nt*64+16*q}")
    a("s_waitcnt lgkmcnt(0)")
    a("s_barrier")
    a("v_lshrrev_b32 v21, 4, v0")
    a("v_and_b32 v22, 15, v0")
    a(f"v_mul_u32_u24 v23, {HP}, v21")
    a("v_lshl_add_u32 v23, v22, 4, v23")
    for j in range(8):
        a(f"ds_read_b128 v[{64+4*j}:{67+4*j}], v23 offset:{j*16*HP}")
    a("s_lshl_b32 s23, s20, 7")
    a("v_add_u32 v21, s23, v21")
    a("v_mul_u32_u24 v21, 3584, v21")
    a("v_lshl_add_u32 v21, v22, 4, v21")
    a("s_lshl_b32 s23, s21, 8")
    a("v_add_u32 v21, s23, v21")
    for j in range(8):
        a(f"s_mov_b32 s25, {j*16*3584}")
        a(f"s_waitcnt lgkmcnt({7-j})")
        a(f"buffer_store_dwordx4 v[{64+4*j}:{67+4*j}], v21, s[16:19], s25 offen")
    rt_end(a,1)

def conv3(a):
    a(f"s_setprio {os.environ.get('CVP','2')}")
    ws_srd(a, 8, KR_OFF, KR_SZ)
    ws_srd(a, 12, XNT_OFF, XN_SZ)
    ws_srd(a, 16, ST_OFF, XN_SZ)
    srd(a, 20, 76, 77, 448*2)
    a("""
    v_lshrrev_b32 v1, 7, v0            ; chsel
    v_and_b32 v2, 127, v0              ; tau
    s_lshl_b32 s24, s3, 1
    v_add_u32 v3, s24, v1              ; channel d
    """)
    a(f"v_mul_u32_u24 v4, {KRP}, v3")
    a("v_lshl_add_u32 v4, v2, 4, v4")
    a("v_lshlrev_b32 v5, 12, v3")
    a("v_lshl_add_u32 v5, v2, 4, v5")
    a("v_lshlrev_b32 v6, 1, v3")
    a("buffer_load_dwordx4 v[16:19], v4, s[8:11], 0 offen")
    a("buffer_load_dwordx4 v[20:23], v4, s[8:11], 0 offen offset:16")
    a("buffer_load_dwordx4 v[24:27], v4, s[8:11], 0 offen offset:2048")
    a("buffer_load_dwordx4 v[28:31], v4, s[8:11], 0 offen offset:2064")
    a("buffer_load_dwordx4 v[32:35], v5, s[12:15], 0 offen")
    a("buffer_load_dwordx4 v[36:39], v5, s[12:15], 0 offen offset:2048")
    a("buffer_load_ushort v7, v6, s[20:23], 0 offen")
    a(f"v_mul_u32_u24 v8, {CH_SZ}, v1")
    a("v_lshl_add_u32 v9, v2, 4, v8")
    a("v_mov_b32 v40, 0\nv_mov_b32 v41, 0\nv_mov_b32 v42, 0\nv_mov_b32 v43, 0")
    a(f"ds_write_b128 v9, v[40:43] offset:{KC_SZ}")
    a("v_cmp_gt_u32 vcc, 27, v2")
    a("s_and_saveexec_b64 s[26:27], vcc")
    a(f"ds_write_b128 v9, v[40:43] offset:{KC_SZ+2048}")
    a("s_mov_b64 exec, s[26:27]")
    a("v_lshrrev_b32 v10, 2, v2")
    a(f"v_mul_u32_u24 v10, {CS}, v10")
    a("v_and_b32 v11, 3, v2")
    a("v_lshl_add_u32 v10, v11, 4, v10")
    a("v_add_u32 v10, v10, v8")
    a("v_cmp_gt_u32 vcc, 32, v2")
    a("s_and_saveexec_b64 s[26:27], vcc")
    a("ds_write_b128 v10, v[40:43] offset:4096")
    a("s_mov_b64 exec, s[26:27]")
    a("v_lshrrev_b32 v10, 2, v2")
    a("v_mul_u32_u24 v10, 80, v10")
    a("v_lshl_add_u32 v10, v11, 4, v10")
    a("v_add_u32 v10, v10, v8")
    a("s_waitcnt vmcnt(0)")
    a(f"ds_write_b128 v10, v[32:35] offset:{KC_SZ+31*80}")
    a(f"ds_write_b128 v10, v[36:39] offset:{KC_SZ+31*80+32*80}")
    for half in range(2):
        D=16+8*half
        E=44; D1=52; E1=60
        for k in range(7): a(f"v_alignbit_b32 v{E+k}, v{D+k+1}, v{D+k}, 16")
        for k in range(6): a(f"v_mov_b32 v{D1+k}, v{D+k+1}")
        for k in range(6): a(f"v_alignbit_b32 v{E1+k}, v{D+k+2}, v{D+k+1}, 16")
        src={0:D,4:D+2,2:D1,6:D1+2,1:E,5:E+2,3:E1,7:E1+2}
        for c in range(8):
            a(f"ds_write_b128 v9, v[{src[c]}:{src[c]+3}] offset:{c*CS+half*2048}")
    a("v_lshlrev_b32 v7, 16, v7")
    a("s_waitcnt lgkmcnt(0)")
    a("s_barrier")
    a("""
    v_and_b32 v10, 63, v0
    v_and_b32 v11, 31, v10
    v_lshrrev_b32 v12, 5, v10
    v_sub_u32 v13, 7, v11
    v_and_b32 v13, 7, v13
    """)
    a(f"v_mul_u32_u24 v13, {CS}, v13")
    a("v_lshl_add_u32 v13, v12, 4, v13")
    a("v_lshrrev_b32 v14, 3, v11")
    a("v_lshlrev_b32 v14, 4, v14")
    a("v_sub_u32 v13, v13, v14")
    a("v_add_u32 v13, 48, v13")
    a("v_add_u32 v13, v13, v8")
    a("v_mul_u32_u24 v14, 80, v11")
    a("v_lshl_add_u32 v14, v12, 4, v14")
    a(f"v_add_u32 v14, {KC_SZ}, v14")
    a("v_add_u32 v14, v14, v8")
    ACC0=64; ACC1=80
    for i in range(32): a(f"v_mov_b32 v{64+i}, 0")
    a("v_lshrrev_b32 v15, 6, v0")
    a("v_and_b32 v15, 1, v15")
    a("s_nop 0")
    a("v_readfirstlane_b32 s25, v15")
    lB=a.newlabel("cv_B"); lJ=a.newlabel("cv_J")
    a("s_nop 3")
    a("s_cmp_eq_u32 s25, 1")
    a(f"s_cbranch_scc1 {lB}")
    def mainloop(units):
        NS=3
        def issue(u):
            delta,hs=units[u]; base=96+24*(u%NS); n=0
            for q in range(2):
                a(f"ds_read_b128 v[{base+4*q}:{base+4*q+3}], v13 offset:{64*(63-delta)+32*q}"); n+=1
            for hi,h in enumerate(hs):
                for q in range(2):
                    r=base+8+8*hi+4*q
                    a(f"ds_read_b128 v[{r}:{r+3}], v14 offset:{80*(31+32*h-delta)+32*q}"); n+=1
            return n
        cnt=[]
        for u in range(min(NS-1,len(units))): cnt.append(issue(u))
        for u in range(len(units)):
            if u+NS-1<len(units): cnt.append(issue(u+NS-1))
            rem=sum(cnt[u+1:])
            a(f"s_waitcnt lgkmcnt({min(rem,15)})")
            delta,hs=units[u]; base=96+24*(u%NS)
            for q in range(2):
                for hi,h in enumerate(hs):
                    acc=ACC0 if h==0 else ACC1
                    r=base+8+8*hi+4*q
                    a(f"v_mfma_f32_32x32x16_bf16 v[{acc}:{acc+15}], v[{base+4*q}:{base+4*q+3}], v[{r}:{r+3}], v[{acc}:{acc+15}]")
    mainloop([(d,[0,1]) for d in range(16)]+[(d,[0]) for d in range(16,32)])
    a(f"s_branch {lJ}")
    a.label(lB)
    mainloop([(d,[1]) for d in range(16,64)])
    a.label(lJ)
    a("s_nop 15")
    a("s_barrier")
    a("v_lshl_add_u32 v15, v10, 4, v8")
    lB2=a.newlabel("cv_B2"); lJ2=a.newlabel("cv_J2")
    a("s_cmp_eq_u32 s25, 1")
    a(f"s_cbranch_scc1 {lB2}")
    for i in range(4): a(f"ds_write_b128 v15, v[{ACC1+4*i}:{ACC1+4*i+3}] offset:{i*1024}")
    a("s_waitcnt lgkmcnt(0)")
    a.label(lB2)
    a("s_barrier")
    a("s_cmp_eq_u32 s25, 0")
    a(f"s_cbranch_scc1 {lJ2}")
    for i in range(4): a(f"ds_read_b128 v[{96+4*i}:{96+4*i+3}], v15 offset:{i*1024}")
    a("s_waitcnt lgkmcnt(0)")
    for i in range(16): a(f"v_add_f32 v{ACC0+i}, v{ACC1+i}, v{96+i}")
    a.label(lJ2)
    a("v_lshlrev_b32 v16, 3, v12")
    a("v_sub_u32 v16, v14, v16")
    a("s_mul_i32 s26, s25, 2560")
    a("v_add_u32 v16, s26, v16")
    for rq in range(4): a(f"ds_read_b64 v[{96+2*rq}:{97+2*rq}], v16 offset:{80*31+16*rq}")
    a("v_lshlrev_b32 v17, 12, v3")
    a("v_lshl_add_u32 v17, v11, 6, v17")
    a("v_lshl_add_u32 v17, v12, 3, v17")
    a("s_lshl_b32 s26, s25, 11")
    a("v_add_u32 v17, s26, v17")
    a("s_waitcnt lgkmcnt(0)")
    for rq in range(4):
        for p in range(2):
            x=96+2*rq+p
            y0=ACC0+4*rq+2*p
            a(f"v_lshlrev_b32 v20, 16, v{x}")
            a(f"v_and_b32 v21, 0xffff0000, v{x}")
            a("v_mul_f32 v20, v20, v7")
            a("v_mul_f32 v21, v21, v7")
            a("v_cvt_pk_bf16_f32 v22, v20, v21")
            a(f"v_cvt_pk_bf16_f32 v23, v{y0}, v{y0+1}")
            a("v_lshlrev_b32 v20, 16, v22")
            a("v_and_b32 v21, 0xffff0000, v22")
            a("v_lshlrev_b32 v24, 16, v23")
            a("v_and_b32 v25, 0xffff0000, v23")
            a("v_add_f32 v20, v20, v24")
            a("v_add_f32 v21, v21, v25")
            a(f"v_cvt_pk_bf16_f32 v{26+2*(rq&1)+p}, v20, v21")
        a(f"buffer_store_dwordx2 v[{26+2*(rq&1)}:{27+2*(rq&1)}], v17, s[16:19], 0 offen offset:{16*rq}")
    if not os.environ.get('NOPF2'):
        ws_srd(a, 52, CNT_OFF+2*4096, 4096)
        srd(a, 48, 82, 83, 1792*896)
        a("s_getreg_b32 s27, hwreg(HW_REG_XCC_ID)")
        a("s_and_b32 s27, s27, 7")
        a("s_lshl_b32 s27, s27, 8")
        a("v_lshrrev_b32 v4, 6, v0")
        a("v_mov_b32 v4, s27")
        a("v_mov_b32 v5, 1")
        a("s_mov_b64 s[30:31], exec")
        a("s_mov_b64 exec, 1")
        a("buffer_atomic_add v5, v4, s[52:55], 0 offen sc0")
        a("s_waitcnt vmcnt(0)")
        a("s_mov_b64 exec, s[30:31]")
        a("v_readfirstlane_b32 s26, v5")
        a("v_and_b32 v6, 63, v0")
        a("v_lshlrev_b32 v6, 4, v6")
        a("s_mul_i32 s26, s26, 14336")
        for i2 in range(14):
            a("buffer_load_dwordx4 v[160:163], v6, s[48:51], s26 offen")
            if i2<13: a("s_add_u32 s26, s26, 1024")
    rt_end(a,1)


def gemm2_3(a, exit_label):
    ws_srd(a, 8, H_OFF, H_SZ)
    ws_srd(a, 16, ST_OFF, XN_SZ)
    srd(a, 12, 82, 83, 1792*896)
    srd(a, 40, 64, 65, XN_SZ)
    srd(a, 44, 84, 85, XN_SZ)
    srd(a, 48, 86, 87, 256)
    a("""
    v_and_b32 v1, 63, v0
    v_lshrrev_b32 v2, 6, v0
    s_nop 0
    v_readfirstlane_b32 s22, v2
    s_nop 3
    """)
    claim3(a, 1, exit_label, 22)
    if RT: a("s_memrealtime s[56:57]")
    a("s_mul_hi_u32 s20, s26, 0x24924925")
    a("s_mul_i32 s21, s20, 7")
    a("s_sub_u32 s21, s26, s21")
    a("s_lshl_b32 s27, s27, 2")
    a("s_add_u32 s20, s20, s27")
    a("s_mov_b32 s31, s26")
    a("""
    v_lshrrev_b32 v3, 3, v1
    v_lshl_add_u32 v3, v2, 4, v3
    s_lshl_b32 s23, s20, 6
    v_add_u32 v3, s23, v3
    v_mul_u32_u24 v3, 3584, v3
    v_and_b32 v4, 7, v1
    v_lshrrev_b32 v5, 4, v1
    v_xor_b32 v4, v4, v5
    v_lshl_add_u32 v3, v4, 4, v3       ; voffA i=0
    v_xor_b32 v4, 64, v3               ; voffA i=1
    v_lshrrev_b32 v5, 3, v1
    v_lshl_add_u32 v5, v2, 4, v5
    v_mul_u32_u24 v5, 896, v5
    v_bfe_u32 v6, v1, 2, 1
    v_bfe_u32 v7, v1, 4, 1
    v_xor_b32 v6, v6, v7
    v_and_b32 v7, 3, v1
    v_lshl_add_u32 v6, v6, 2, v7
    v_lshl_add_u32 v5, v6, 4, v5
    s_lshl_b32 s23, s21, 7
    v_add_u32 v5, s23, v5              ; voffB
    s_lshl_b32 s24, s22, 11            ; wave*2048
    """)
    NST=28; NBS=int(os.environ.get("NBS","9"))
    def issue(s):
        sl=(s%NBS)*16384
        a("s_lshl_b32 s26, s31, 7")
        a(f"s_mul_i32 s27, s31, {64*896}")
        for i in range(2):
            a(f"s_add_u32 m0, s24, {sl+i*1024}")
            a(f"s_add_u32 s25, s26, {i*8*3584}")
            a(f"buffer_load_dwordx4 v{3+i}, s[8:11], s25 offen lds")
            a.vm_issue(s)
        for i in range(2):
            a(f"s_add_u32 m0, s24, {sl+8192+i*1024}")
            a(f"s_add_u32 s25, s27, {i*8*896}")
            a(f"buffer_load_dwordx4 v5, s[12:15], s25 offen lds")
            a.vm_issue(s)
        a("s_add_u32 s31, s31, 1")
        a("s_cmp_eq_u32 s31, 28")
        a("s_cselect_b32 s31, 0, s31")
    for s in range(NBS): issue(s)
    a("""
    s_lshl_b32 s23, s20, 6
    v_add_u32 v22, s23, v1
    v_mul_u32_u24 v22, 896, v22
    v_lshl_add_u32 v22, v2, 5, v22
    s_lshl_b32 s23, s21, 7
    v_add_u32 v22, s23, v22
    buffer_load_dwordx4 v[24:27], v22, s[40:43], 0 offen
    buffer_load_dwordx4 v[28:31], v22, s[40:43], 0 offen offset:16
    """)
    a.vm_issue('x'); a.vm_issue('x')
    a("""
    v_and_b32 v8, 31, v1
    v_lshrrev_b32 v9, 5, v1
    v_lshlrev_b32 v12, 7, v8
    v_lshl_add_u32 v13, v2, 1, v9
    v_bfe_u32 v14, v8, 1, 3
    v_xor_b32 v13, v13, v14
    v_lshl_add_u32 v12, v13, 4, v12    ; vA
    v_add_u32 v13, 0x10000, v12
    v_bfe_u32 v14, v1, 2, 2            ; r
    v_lshl_add_u32 v15, v9, 3, v14
    v_lshl_add_u32 v15, v2, 4, v15
    v_lshlrev_b32 v15, 7, v15
    v_lshrrev_b32 v16, 1, v14
    v_lshl_add_u32 v15, v16, 6, v15
    v_bfe_u32 v16, v1, 4, 1
    v_lshl_add_u32 v15, v16, 5, v15
    v_and_b32 v16, 3, v1
    v_lshl_add_u32 v15, v16, 3, v15
    v_add_u32 v15, 8192, v15           ; vB0
    v_xor_b32 v16, 64, v15             ; vB1
    v_add_u32 v10, 0x10000, v15
    v_add_u32 v11, 0x10000, v16
    """)
    ACC=64
    for i in range(64): a(f"v_mov_b32 v{ACC+i}, 0")
    FAs=[32,128]; FBs=[40,136]
    a("""
    s_lshl_b32 s23, s21, 6
    v_lshlrev_b32 v17, 4, v2
    v_add_u32 v17, s23, v17
    v_lshlrev_b32 v17, 12, v17
    v_lshl_add_u32 v17, v1, 1, v17
    s_lshl_b32 s23, s20, 7
    v_add_u32 v17, s23, v17
    s_lshl_b32 s23, s21, 2
    v_mov_b32 v19, s23
    """)
    for j in range(16):
        a(f"s_mov_b32 s25, {j*4096}")
        a(f"buffer_load_ushort v{144+j}, v17, s[16:19], s25 offen")
        a.vm_issue('x')
    def reads(s):
        b=s%NBS
        FA=FAs[s&1]; FB=FBs[s&1]
        a(f"v_add_u32 v13, {b*16384}, v12")
        a(f"v_add_u32 v10, {b*16384}, v15")
        a(f"v_add_u32 v11, {b*16384}, v16")
        for mt in range(2):
            r=FA+4*mt
            a(f"ds_read_b128 v[{r}:{r+3}], v13 offset:{mt*4096}")
        for nt in range(2):
            for i in range(2):
                r=FB+4*nt+2*i
                a(f"ds_read_b64_tr_b16 v[{r}:{r+1}], v{10+nt} offset:{4*i*128}")
    a.vm_wait(0)
    a("s_barrier")
    if RT: a("s_memrealtime s[58:59]")
    reads(0)
    for s in range(NST):
        FA=FAs[s&1]; FB=FBs[s&1]
        if s+1<NST and a.vm_has(s+1): a.vm_wait(s+1)
        a("s_waitcnt lgkmcnt(0)")
        a("s_barrier")
        def fill():
            if s+NBS<NST: issue(s+NBS)
            if s+1<NST: reads(s+1)
        def prim():
            for mt in range(2):
                for nt in range(2):
                    acc=ACC+16*(2*mt+nt)
                    ra=FA+4*mt; rb=FB+4*nt
                    a(f"v_mfma_f32_32x32x16_bf16 v[{acc}:{acc+15}], v[{rb}:{rb+3}], v[{ra}:{ra+3}], v[{acc}:{acc+15}]")
        interleave(a, capture(a,prim), capture(a,fill))
    if RT: a("s_memrealtime s[60:61]")
    a("s_nop 15")
    a("s_barrier")
    a(f"v_mul_u32_u24 v20, {64*RP}, v2")
    a(f"v_mul_u32_u24 v21, {RP}, v8")
    a("v_add_u32 v20, v20, v21")
    a("v_lshl_add_u32 v20, v9, 4, v20")
    for mt in range(2):
        for nt in range(2):
            acc=ACC+16*(2*mt+nt)
            for q in range(4):
                a(f"ds_write_b128 v20, v[{acc+4*q}:{acc+4*q+3}] offset:{mt*32*RP+nt*128+q*32}")
    a("s_waitcnt lgkmcnt(0)")
    a("s_barrier")
    a(f"v_mul_u32_u24 v20, {RP}, v1")
    a("v_lshl_add_u32 v20, v2, 6, v20")
    for wv in range(4):
        for j in range(4):
            r=64+16*wv+4*j
            a(f"ds_read_b128 v[{r}:{r+3}], v20 offset:{wv*64*RP+j*16}")
    a("s_waitcnt lgkmcnt(0)")
    for i in range(16):
        a(f"v_add_f32 v{64+i}, v{64+i}, v{80+i}")
        a(f"v_add_f32 v{96+i}, v{96+i}, v{112+i}")
        a(f"v_add_f32 v{64+i}, v{64+i}, v{96+i}")
    NL2E=hex(f2u(-1.4426950408889634))
    for p in range(8):
        m0,m1=64+2*p,65+2*p
        a(f"v_cvt_pk_bf16_f32 v4, v{m0}, v{m1}")
        a("v_lshlrev_b32 v5, 16, v4")
        a("v_and_b32 v6, 0xffff0000, v4")
        a(f"v_mul_f32 v7, {NL2E}, v5")
        a(f"v_mul_f32 v10, {NL2E}, v6")
        a("v_exp_f32 v7, v7")
        a("v_exp_f32 v10, v10")
        a("s_nop 0")
        a("v_add_f32 v7, 1.0, v7")
        a("v_add_f32 v10, 1.0, v10")
        a("v_rcp_f32 v7, v7")
        a("v_rcp_f32 v10, v10")
        a("s_nop 0")
        a("v_mul_f32 v5, v5, v7")
        a("v_mul_f32 v6, v6, v10")
        a("v_cvt_pk_bf16_f32 v4, v5, v6")
        a("v_lshlrev_b32 v5, 16, v4")
        a("v_and_b32 v6, 0xffff0000, v4")
        if p==0: a("s_waitcnt vmcnt(0)")
        a(f"v_lshlrev_b32 v7, 16, v{144+2*p}")
        a(f"v_lshlrev_b32 v10, 16, v{145+2*p}")
        a("v_mul_f32 v5, v5, v7")
        a("v_mul_f32 v6, v6, v10")
        a("v_cvt_pk_bf16_f32 v4, v5, v6")
        a("v_lshlrev_b32 v5, 16, v4")
        a("v_and_b32 v6, 0xffff0000, v4")
        a(f"v_lshlrev_b32 v7, 16, v{24+p}")
        a(f"v_and_b32 v10, 0xffff0000, v{24+p}")
        a("v_add_f32 v5, v5, v7")
        a("v_add_f32 v6, v6, v10")
        a(f"v_cvt_pk_bf16_f32 v{48+p}, v5, v6")
    a("buffer_store_dwordx4 v[48:51], v22, s[44:47], 0 offen")
    a("buffer_store_dwordx4 v[52:55], v22, s[44:47], 0 offen offset:16")
    a("s_waitcnt vmcnt(0)")
    rt_end(a,2)


def ln3(a):
    PITCH=928
    a("s_setprio 3")
    srd(a, 8, 4, 5, XN_SZ)
    ws_srd(a, 16, XNT_OFF, XN_SZ)
    a("""
    v_lshrrev_b32 v2, 3, v0
    v_and_b32 v3, 7, v0
    s_lshl_b32 s20, s3, 6
    v_add_u32 v4, s20, v2
    v_mul_u32_u24 v1, 896, v4
    v_lshl_add_u32 v1, v3, 4, v1
    """)
    for i in range(7):
        a(f"buffer_load_dwordx4 v[{16+4*i}:{19+4*i}], v1, s[8:11], 0 offen offset:{i*128}")
    a("v_mov_b32 v5, 0x3f803f80")
    a("v_mov_b32 v6, 0")
    a("v_mov_b32 v7, 0")
    a("s_waitcnt vmcnt(0)")
    for i in range(28):
        a(f"v_dot2_f32_bf16 v{6+(i&1)}, v{16+i}, v5, v{6+(i&1)}")
    a("s_nop 3")
    a("v_add_f32 v6, v6, v7")
    dpp_reduce8(a, 6)
    a(f"v_mul_f32 v6, {hex(f2u(1.0/448))}, v6")
    a("v_mov_b32 v7, v6")
    for i in range(28):
        a(f"v_lshlrev_b32 v{44+2*i}, 16, v{16+i}")
        a(f"v_and_b32 v{45+2*i}, 0xffff0000, v{16+i}")
    a("v_mov_b32 v8, 0")
    a("v_mov_b32 v9, 0")
    for i in range(28):
        a(f"v_pk_add_f32 v[10:11], v[{44+2*i}:{45+2*i}], v[6:7] neg_lo:[0,1] neg_hi:[0,1]")
        a("v_pk_fma_f32 v[8:9], v[10:11], v[10:11], v[8:9]")
    a("v_add_f32 v8, v8, v9")
    dpp_reduce8(a, 8)
    a(f"v_mul_f32 v8, {hex(f2u(1.0/448))}, v8")
    bf16r(a, 8, 8)
    a(f"v_add_f32 v8, {hex(f2u(1e-5))}, v8")
    bf16r(a, 8, 8)
    a("v_sqrt_f32 v8, v8")
    a("s_nop 0")
    bf16r(a, 8, 8)
    a("v_rcp_f32 v12, v8")
    a("v_mov_b32 v9, v8")
    bf16r(a, 6, 6)
    a("v_mov_b32 v7, v6")
    a("v_mov_b32 v13, v12")
    for i in range(28):
        lo, hi = 44+2*i, 45+2*i
        a(f"v_pk_add_f32 v[{lo}:{hi}], v[{lo}:{hi}], v[6:7] neg_lo:[0,1] neg_hi:[0,1]")
        a(f"v_cvt_pk_bf16_f32 v10, v{lo}, v{hi}")
        a(f"v_lshlrev_b32 v{lo}, 16, v10")
        a(f"v_and_b32 v{hi}, 0xffff0000, v10")
        a(f"v_pk_mul_f32 v[10:11], v[{lo}:{hi}], v[12:13]")
        a(f"v_pk_fma_f32 v[{lo}:{hi}], v[10:11], v[8:9], v[{lo}:{hi}] neg_lo:[1,0,0] neg_hi:[1,0,0]")
        a(f"v_pk_fma_f32 v[10:11], v[{lo}:{hi}], v[12:13], v[10:11]")
        a(f"v_cvt_pk_bf16_f32 v{16+i}, v10, v11")
    a(f"v_mul_u32_u24 v9, {PITCH}, v2")
    a("v_lshl_add_u32 v9, v3, 4, v9")
    ws_srd(a, 12, XN_OFF, XN_SZ)
    for i in range(7):
        a(f"buffer_store_dwordx4 v[{16+4*i}:{19+4*i}], v1, s[12:15], 0 offen offset:{i*128}{WT}")
        a(f"ds_write_b128 v9, v[{16+4*i}:{19+4*i}] offset:{i*128}")
    a("s_waitcnt lgkmcnt(0)")
    a("s_barrier")
    a("""
    v_and_b32 v10, 63, v0
    v_lshrrev_b32 v11, 6, v0          ; wave
    v_lshrrev_b32 v15, 2, v11         ; th
    v_and_b32 v11, 3, v11             ; dq
    v_lshrrev_b32 v12, 4, v10         ; gam
    v_bfe_u32 v13, v10, 2, 2          ; r
    v_and_b32 v14, 3, v10             ; c
    v_lshl_add_u32 v13, v12, 3, v13   ; 8gam + r
    v_lshl_add_u32 v13, v15, 5, v13   ; + 32 th
    """)
    a(f"v_mul_u32_u24 v13, {PITCH}, v13")
    a("v_lshl_add_u32 v13, v14, 3, v13")
    a("v_lshl_add_u32 v13, v11, 5, v13")
    a("""
    v_and_b32 v14, 15, v10
    v_lshl_add_u32 v14, v11, 4, v14
    v_lshlrev_b32 v14, 12, v14
    v_lshl_add_u32 v14, v12, 4, v14
    v_lshl_add_u32 v14, v15, 6, v14
    s_lshl_b32 s21, s3, 7
    v_add_u32 v14, s21, v14
    """)
    for it in range(7):
        a(f"ds_read_b64_tr_b16 v[{16+4*it}:{17+4*it}], v13 offset:{it*128}")
        a(f"ds_read_b64_tr_b16 v[{18+4*it}:{19+4*it}], v13 offset:{it*128+4*PITCH}")
    a("s_waitcnt lgkmcnt(0)")
    for it in range(7):
        a(f"s_mov_b32 s22, {it*64*4096}")
        a(f"buffer_store_dwordx4 v[{16+4*it}:{19+4*it}], v14, s[16:19], s22 offen{WT}")
    rt_end(a,0)


def kgen3(a):
    UP=528; WREG=16*UP; CHREG=4*WREG
    KD_OFF=12288
    a(f"s_setprio {os.environ.get('KGP','2')}")
    srd(a, 8, 66, 67, 448*512)
    srd(a, 12, 68, 69, 448*512)
    srd(a, 16, 70, 71, 448*512)
    srd(a, 20, 72, 73, 448*512)
    srd(a, 24, 74, 75, 448*2)
    ws_srd(a, 44, KR_OFF, KR_SZ)
    a("""
    s_lshl_b32 s28, s3, 10
    v_lshlrev_b32 v1, 1, v0
    v_add_u32 v1, s28, v1
    v_lshrrev_b32 v3, 8, v0            ; chsel
    s_lshl_b32 s29, s3, 1
    v_add_u32 v2, s29, v3              ; channel d
    v_lshlrev_b32 v10, 1, v2
    buffer_load_ushort v4, v1, s[8:11], 0 offen
    buffer_load_ushort v5, v1, s[12:15], 0 offen
    buffer_load_ushort v6, v1, s[16:19], 0 offen
    buffer_load_ushort v7, v1, s[20:23], 0 offen
    buffer_load_ushort v8, v10, s[24:27], 0 offen
    """)
    a("v_and_b32 v1, 63, v0")
    a("v_lshrrev_b32 v0, 6, v0")
    a(f"v_mul_u32_u24 v14, {WREG}, v0")
    a("v_lshrrev_b32 v10, 4, v1")
    a("v_and_b32 v15, 15, v1")
    a(f"v_mul_u32_u24 v15, {UP}, v15")
    a("v_lshl_add_u32 v15, v10, 4, v15")
    a("v_add_u32 v15, v15, v14")
    a("v_lshl_add_u32 v14, v1, 2, v14")
    a("""
    s_waitcnt vmcnt(0)
    v_lshlrev_b32 v4, 16, v4
    v_lshlrev_b32 v5, 16, v5
    v_lshlrev_b32 v6, 16, v6
    v_lshlrev_b32 v7, 16, v7
    v_lshlrev_b32 v8, 16, v8
    """)
    if RT: a("s_memrealtime s[56:57]")
    acc_exp(a, 9, 8, 10, 11)
    bf16r(a, 9, 9)
    acc_exp(a, 12, 4, 10, 11)
    bf16r(a, 12, 12)
    a("v_mul_f32 v12, v12, v9")
    a("v_mul_f32 v13, v5, v9")
    a("v_mul_f32 v6, v6, v9")
    a("v_mul_f32 v7, v7, v9")
    a("v_add_f32 v6, v6, v6")
    a("v_add_f32 v7, v7, v7")
    a(f"v_mul_f32 v12, {hex(f2u(-1.4426950408889634))}, v12")
    a(f"v_mul_f32 v13, {hex(f2u(0.15915494309189535))}, v13")
    T=16
    def direct(d,p):
        a(f"v_mul_f32 v{T}, {hex(f2u(float(p)))}, v12")
        a(f"v_mul_f32 v{T+1}, {hex(f2u(float(p)))}, v13")
        a(f"v_exp_f32 v{T}, v{T}")
        a(f"v_fract_f32 v{T+1}, v{T+1}")
        a(f"v_cos_f32 v{d}, v{T+1}")
        a(f"v_sin_f32 v{d+1}, v{T+1}")
        a("s_nop 0")
        a(f"v_mul_f32 v{d}, v{d}, v{T}")
        a(f"v_mul_f32 v{d+1}, v{d+1}, v{T}")
    def split_write(src,row):
        a(f"v_cvt_pk_bf16_f32 v4, v{src}, v{src+1}")
        a("v_lshlrev_b32 v8, 16, v4")
        a("v_and_b32 v9, 0xffff0000, v4")
        a(f"v_pk_add_f32 v[8:9], v[{src}:{src+1}], v[8:9] neg_lo:[0,1] neg_hi:[0,1]")
        a("v_cvt_pk_bf16_f32 v5, v8, v9")
        a(f"ds_write_b32 v14, v4 offset:{row*UP}")
        a(f"ds_write_b32 v14, v5 offset:{row*UP+256}")
    BH=64; BL=80; AF=96; ACC=112
    V={1:20,2:22,4:24,8:26,3:28,5:30,6:32,7:34}
    direct(V[1],8); pk_cmul(a,V[2],V[1],V[1],T); pk_cmul(a,V[4],V[2],V[2],T); pk_cmul(a,V[8],V[4],V[4],T)
    pk_cmul(a,V[3],V[1],V[2],T); pk_cmul(a,V[5],V[4],V[1],T); pk_cmul(a,V[6],V[4],V[2],T); pk_cmul(a,V[7],V[4],V[3],T)
    a("v_mov_b32 v36, 0x3f80"); a("v_mov_b32 v37, 0")
    a("ds_write_b32 v14, v36"); a("ds_write_b32 v14, v37 offset:256")
    for j in range(1,9): split_write(V[j],j)
    for j in range(9,16):
        pk_cmul(a,36,V[8],V[j-8],T); split_write(36,j)
    a("s_waitcnt lgkmcnt(0)")
    for s in range(4):
        a(f"ds_read_b128 v[{BH+4*s}:{BH+4*s+3}], v15 offset:{64*s}")
        a(f"ds_read_b128 v[{BL+4*s}:{BL+4*s+3}], v15 offset:{256+64*s}")
    S={1:20,2:22,3:24,4:26,5:28,6:30,7:32}
    direct(S[1],1); pk_cmul(a,S[2],S[1],S[1],T); pk_cmul(a,S[4],S[2],S[2],T)
    pk_cmul(a,S[3],S[1],S[2],T); pk_cmul(a,S[5],S[1],S[4],T); pk_cmul(a,S[6],S[2],S[4],T); pk_cmul(a,S[7],S[3],S[4],T)
    G={1:48,2:50,4:52,8:54,16:56}
    direct(G[1],128)
    for m in (2,4,8,16): pk_cmul(a,G[m],G[m//2],G[m//2],T)
    W={0:6}
    for m in range(1,8): W[m]=32+2*m
    pk_cmul(a,W[1],6,G[1],T); pk_cmul(a,W[2],6,G[2],T); pk_cmul(a,W[3],W[1],G[2],T); pk_cmul(a,W[4],6,G[4],T)
    pk_cmul(a,W[5],W[1],G[4],T); pk_cmul(a,W[6],W[2],G[4],T); pk_cmul(a,W[7],W[3],G[4],T)
    for i in range(12): a(f"v_mov_b32 v{ACC+i}, 0")
    R=58
    rows={}
    rows[0]=[('ws',i//8,i%8) for i in range(16)]
    rows[1]=[('ws',2+i//4,2*(i%4)) for i in range(8)]+[('ws',4+i//2,4*(i%2)) for i in range(8)]
    rows[2]=[('wg',i,8) for i in range(8)]+[('wg',0,16)]+[None]*7
    for t in (2,1,0):
        a("s_waitcnt lgkmcnt(0)")
        for i,rw in enumerate(rows[t]):
            if rw is None:
                a(f"v_mov_b32 v{R}, 0")
                a(f"ds_write_b32 v14, v{R} offset:{i*UP}")
                a(f"ds_write_b32 v14, v{R} offset:{i*UP+256}")
                continue
            elif rw[0]=='wg':
                pk_cmul(a,R,W[rw[1]],G[rw[2]],T,negim=True)
            elif rw[2]==0:
                a(f"v_mov_b32 v{R}, v{W[rw[1]]}")
                a(f"v_sub_f32 v{R+1}, 0, v{W[rw[1]]+1}")
            else:
                pk_cmul(a,R,W[rw[1]],S[rw[2]],T,negim=True)
            split_write(R,i)
        a("s_waitcnt lgkmcnt(0)")
        acc=ACC+4*t
        for s in range(4): a(f"ds_read_b128 v[{AF+4*s}:{AF+4*s+3}], v15 offset:{64*s}")
        for s in range(4):
            a(f"s_waitcnt lgkmcnt({3-s})")
            a(f"v_mfma_f32_16x16x32_bf16 v[{acc}:{acc+3}], v[{AF+4*s}:{AF+4*s+3}], v[{BH+4*s}:{BH+4*s+3}], v[{acc}:{acc+3}]")
            a(f"v_mfma_f32_16x16x32_bf16 v[{acc}:{acc+3}], v[{AF+4*s}:{AF+4*s+3}], v[{BL+4*s}:{BL+4*s+3}], v[{acc}:{acc+3}]")
        for s in range(4): a(f"ds_read_b128 v[{AF+4*s}:{AF+4*s+3}], v15 offset:{256+64*s}")
        for s in range(4):
            a(f"s_waitcnt lgkmcnt({3-s})")
            a(f"v_mfma_f32_16x16x32_bf16 v[{acc}:{acc+3}], v[{AF+4*s}:{AF+4*s+3}], v[{BH+4*s}:{BH+4*s+3}], v[{acc}:{acc+3}]")
    if RT: a("s_memrealtime s[58:59]")
    a("s_nop 15")
    a("s_barrier")
    a(f"v_mul_u32_u24 v16, {CHREG}, v3")
    a("v_and_b32 v17, 3, v0")
    a("v_mul_u32_u24 v18, 3072, v17")
    a("v_add_u32 v18, v18, v16")
    a("v_lshl_add_u32 v18, v1, 4, v18")
    for t in range(3):
        a(f"ds_write_b128 v18, v[{ACC+4*t}:{ACC+4*t+3}] offset:{t*1024}")
    a("s_waitcnt lgkmcnt(0)")
    a("s_barrier")
    skip=a.newlabel("kg_skip")
    a("v_readfirstlane_b32 s28, v17")
    a("s_nop 3")
    a("s_cmp_ge_u32 s28, 3")
    a(f"s_cbranch_scc1 {skip}")
    a("v_lshlrev_b32 v18, 10, v17")
    a("v_add_u32 v18, v18, v16")
    a("v_lshl_add_u32 v18, v1, 4, v18")
    for w in range(4):
        a(f"ds_read_b128 v[{20+4*w}:{23+4*w}], v18 offset:{w*3072}")
    a("s_waitcnt lgkmcnt(0)")
    for r in range(4):
        a(f"v_add_f32 v{20+r}, v{20+r}, v{24+r}")
        a(f"v_add_f32 v{28+r}, v{28+r}, v{32+r}")
        a(f"v_add_f32 v{20+r}, v{20+r}, v{28+r}")
    a("v_lshrrev_b32 v4, 4, v1")
    a("v_and_b32 v5, 15, v1")
    a("v_lshlrev_b32 v5, 5, v5")
    a("v_add_u32 v5, v5, v16")
    t1=a.newlabel("kg_t1"); t2=a.newlabel("kg_t2"); done=a.newlabel("kg_td")
    a("s_cmp_eq_u32 s28, 1"); a(f"s_cbranch_scc1 {t1}")
    a("s_cmp_eq_u32 s28, 2"); a(f"s_cbranch_scc1 {t2}")
    a("v_lshrrev_b32 v6, 1, v4"); a("v_lshlrev_b32 v6, 7, v6"); a("v_and_b32 v7, 1, v4"); a("v_lshl_add_u32 v6, v7, 2, v6")
    a("v_lshl_add_u32 v6, v6, 2, v5")
    for r in range(4): a(f"ds_write_b32 v6, v{20+r} offset:{KD_OFF+4*r}")
    a(f"s_branch {done}")
    a.label(t1)
    a("v_lshlrev_b32 v6, 7, v4"); a("v_add_u32 v6, 256, v6")
    a("v_lshlrev_b32 v7, 8, v4")
    a("v_cmp_gt_u32 vcc, 2, v4")
    a("s_nop 1")
    for r in range(4):
        a(f"v_add_u32 v8, {2*r}, v6")
        a(f"v_add_u32 v9, {128*(r//2)+4*(r%2)}, v7")
        a("v_cndmask_b32 v8, v9, v8, vcc")
        a("v_lshl_add_u32 v8, v8, 2, v5")
        a(f"ds_write_b32 v8, v{20+r} offset:{KD_OFF}")
    a(f"s_branch {done}")
    a.label(t2)
    a("v_lshlrev_b32 v6, 9, v4"); a("v_add_u32 v6, 1024, v6")
    for r in range(4):
        a(f"v_add_u32 v8, {128*r}, v6")
        a("v_min_u32 v8, 2176, v8")
        a("v_lshl_add_u32 v8, v8, 2, v5")
        a(f"ds_write_b32 v8, v{20+r} offset:{KD_OFF}")
    a.label(done)
    a.label(skip)
    a("s_waitcnt lgkmcnt(0)")
    a("s_barrier")
    a("v_lshl_add_u32 v18, v17, 6, v1")
    a("v_lshlrev_b32 v19, 3, v18")
    a("v_sub_u32 v19, 2047, v19")
    for e in range(8):
        a(f"v_subrev_u32 v4, {e}, v19")
        a("v_cvt_f32_u32 v4, v4")
        a("v_cvt_pk_bf16_f32 v4, v4, v4")
        a("v_lshlrev_b32 v4, 16, v4")
        a("v_cvt_u32_f32 v4, v4")
        a("v_lshl_add_u32 v4, v4, 2, v16")
        a(f"ds_read_b32 v{20+e}, v4 offset:{KD_OFF}")
    a(f"v_mul_u32_u24 v5, {KRP}, v2")
    a("v_lshl_add_u32 v5, v18, 4, v5")
    a("s_waitcnt lgkmcnt(0)")
    for e in range(4):
        a(f"v_cvt_pk_bf16_f32 v{28+e}, v{20+2*e}, v{21+2*e}")
    a(f"buffer_store_dwordx4 v[28:31], v5, s[44:47], 0 offen{WT}")
    a("v_mov_b32 v32, 0"); a("v_mov_b32 v33, 0"); a("v_mov_b32 v34, 0"); a("v_mov_b32 v35, 0")
    a("v_cmp_gt_u32 vcc, 8, v18")
    a("s_and_saveexec_b64 s[48:49], vcc")
    skipz=a.newlabel("kg_z")
    a(f"s_cbranch_execz {skipz}")
    a("s_mov_b32 s28, 4096")
    a("buffer_store_dwordx4 v[32:35], v5, s[44:47], s28 offen")
    a.label(skipz)
    rt_end(a,0)


def k0(name):
    a=Asm(); a.label(name)
    if RT: a("s_memrealtime s[90:91]")
    a(HEAD_A)
    a("s_cmp_ge_u32 s2, 256")
    a(f"s_cbranch_scc1 {name}_pf")
    a("s_cmp_ge_u32 s2, 224")
    a(f"s_cbranch_scc1 {name}_ln")
    a("s_mov_b32 s3, s2")
    kgen3(a)
    a.label(f"{name}_ln")
    a("s_sub_u32 s3, s2, 224")
    lz=a.newlabel("k0_z")
    a("s_cmp_lg_u32 s3, 0")
    a(f"s_cbranch_scc1 {lz}")
    ws_srd(a, 52, CNT_OFF, 24576)
    a("v_lshlrev_b32 v4, 4, v0")
    a("v_mov_b32 v8, 0\nv_mov_b32 v9, 0\nv_mov_b32 v10, 0\nv_mov_b32 v11, 0")
    a("buffer_store_dwordx4 v[8:11], v4, s[52:55], 0 offen")
    a("s_mov_b32 s26, 8192")
    a("buffer_store_dwordx4 v[8:11], v4, s[52:55], s26 offen")
    a("s_mov_b32 s26, 16384")
    a("buffer_store_dwordx4 v[8:11], v4, s[52:55], s26 offen")
    a.label(lz)
    ln3(a)
    a.label(f"{name}_pf")
    a("s_cmp_ge_u32 s2, 312")
    a(f"s_cbranch_scc1 {name}_exit")
    a("s_sub_u32 s3, s2, 256")
    a("s_cmp_ge_u32 s3, 28")
    a("s_cselect_b32 s48, s82, s80")
    a("s_cselect_b32 s49, s83, s81")
    a(f"s_mov_b32 s50, {448*3584}")
    a("s_mov_b32 s51, 0x00020000")
    a("s_cselect_b32 s23, 28, 0")
    a("s_sub_u32 s3, s3, s23")
    a("s_mul_i32 s23, s3, 57344")
    a("v_lshlrev_b32 v4, 4, v0")
    for i in range(7):
        a(f"buffer_load_dwordx4 v[8:11], v4, s[48:51], s23 offen")
        if i<6: a("s_add_u32 s23, s23, 8192")
    a("s_waitcnt vmcnt(0)")
    a.label(f"{name}_exit")
    a("s_endpgm")
    return a.text()
def k1(name):
    a=Asm(); a.label(name)
    if RT: a("s_memrealtime s[90:91]")
    a(HEAD_A)
    a("s_cmp_ge_u32 s2, 480")
    a(f"s_cbranch_scc1 {name}_exit")
    a("s_cmp_ge_u32 s2, 256")
    a(f"s_cbranch_scc1 {name}_conv")
    gemm1_256(a, f"{name}_exit")
    a.label(f"{name}_conv")
    a("s_sub_u32 s3, s2, 256")
    conv3(a)
    a.label(f"{name}_exit")
    a("s_endpgm")
    return a.text()
def k2(name):
    a=Asm(); a.label(name)
    if RT: a("s_memrealtime s[90:91]")
    a(HEAD_A)
    a("s_cmp_ge_u32 s2, 256")
    a(f"s_cbranch_scc1 {name}_exit")
    gemm2_3(a, f"{name}_exit")
    a.label(f"{name}_exit")
    a("s_endpgm")
    return a.text()
```
